```python
import torch

def _softmax(x, axis=-1):
    return torch.softmax(x, dim=axis)

def _gelu(x):
    return torch.nn.functional.gelu(x, approximate='tanh')

def _silu(x):
    return torch.nn.functional.silu(x)

def _sigmoid(x):
    return torch.sigmoid(x)

def _layernorm(x, axis=-1, eps=1e-05):
    m = x.mean(dim=axis, keepdim=True)
    v = x.var(dim=axis, keepdim=True, unbiased=False)
    return (x - m) / torch.sqrt(v + eps)

def _scatter_add(tgt, idx, src, axis=0):
    return tgt.clone().index_add_(axis, idx, src)

def _segment_sum(src, seg, n):
    out = torch.zeros((n,) + src.shape[1:], dtype=src.dtype)
    return out.index_add_(0, seg, src)

def _pad(x, pw):
    flat = tuple((v for pair in reversed(pw) for v in pair))
    return torch.nn.functional.pad(x, flat)
kernel_name = 'adaLN_cond__mha_block_cached__geglu_ffn__prompt'

def setup_inputs():

    _w = lambda a: (lambda t: t.to(torch.bfloat16) if t.is_floating_point() else t)(torch.as_tensor(a))

    def _A_setup():
        B, Sq, D = (1, 2048, 1024)
        H, Sk, Dh = (32, 2048, 128)
        return {'x': _w((lambda *s: torch.randn(*s, dtype=torch.bfloat16) * 0.05)(B, Sq, D)), 'k_cache': _w((lambda *s: torch.randn(*s, dtype=torch.bfloat16) * 3.2)(B, H, Sk, Dh)), 'v_cache': _w((lambda *s: torch.randn(*s, dtype=torch.bfloat16) * 0.4)(B, H, Sk, Dh)), 'wq': _w((lambda *s: torch.randn(*s, dtype=torch.bfloat16) * 3.2)(D, H * Dh) * D ** (-0.5)), 'wo': _w((lambda *s: torch.randn(*s, dtype=torch.bfloat16) * 0.4)(H * Dh, D) * (H * Dh) ** (-0.5))}
    _A_in = _A_setup()

    def _B_setup():
        B, S, D, F = (1, 2048, 1024, 3584)
        return {'x': _w((lambda *s: torch.randn(*s, dtype=torch.bfloat16) * 0.05)(B, S, D)), 'w_gate': _w((lambda *s: torch.randn(*s, dtype=torch.bfloat16) * 0.05)(D, F)), 'w_up': _w((lambda *s: torch.randn(*s, dtype=torch.bfloat16) * 0.05)(D, F)), 'w_down': _w((lambda *s: torch.randn(*s, dtype=torch.bfloat16) * 0.05)(F, D))}
    _B_in = _B_setup()
    return {'A_x': _A_in['x'], 'A_k_cache': _A_in['k_cache'], 'A_v_cache': _A_in['v_cache'], 'A_wq': _A_in['wq'], 'A_wo': _A_in['wo'], 'B_x': _B_in['x'], 'B_w_gate': _B_in['w_gate'], 'B_w_up': _B_in['w_up'], 'B_w_down': _B_in['w_down'], 'c': _w((lambda *s: torch.randn(*s, dtype=torch.bfloat16) * 0.1)(1, 1024) * 8.0), 'w_mod': _w((lambda *s: torch.randn(*s, dtype=torch.bfloat16) * 0.1)(1024, 6 * 1024) * 1024 ** (-0.5) * 8.0)}

def reference(A_x, A_k_cache, A_v_cache, A_wq, A_wo, B_x, B_w_gate, B_w_up, B_w_down, c, w_mod):

    def _A_ref(x, k_cache, v_cache, wq, wo):
        B, Sq, D = x.shape
        H, Dh = (32, 128)
        q = (lambda x, *d: x.permute(*d))((x @ wq).reshape(B, Sq, H, Dh), 0, 2, 1, 3)
        scores = torch.einsum('bhqd,bhkd->bhqk', q, k_cache) * Dh ** (-0.5)
        p = _softmax(scores, axis=-1)
        o = torch.einsum('bhqk,bhkd->bhqd', p, v_cache)
        return (lambda x, *d: x.permute(*d))(o, 0, 2, 1, 3).reshape(B, Sq, H * Dh) @ wo

    def _B_ref(x, w_gate, w_up, w_down):
        return _gelu(x @ w_gate) * (x @ w_up) @ w_down
    x = A_x
    mod = (_silu(c) @ w_mod).reshape(c.shape[0], 6, 1, -1)
    sa, ca, ga, sb, cb, gb = (mod[:, 0].clone(), mod[:, 1].clone(), mod[:, 2].clone(), mod[:, 3].clone(), mod[:, 4].clone(), mod[:, 5].clone())
    h = _layernorm(x, axis=-1) * (1 + ca) + sa
    x = x + ga * _A_ref(h, A_k_cache, A_v_cache, A_wq, A_wo)
    h = _layernorm(x, axis=-1) * (1 + cb) + sb
    x = x + gb * _B_ref(h, B_w_gate, B_w_up, B_w_down)
    return x
```

```python
import re

REG_RE = re.compile(r'^(-|\|)?(abs\()?([vas])(\d+|\[(\d+):(\d+)\])\)?\|?$')


def parse_reg(tok):
    tok = tok.strip()
    if tok in ('vcc',):
        return [('s', 106), ('s', 107)]
    if tok == 'vcc_lo':
        return [('s', 106)]
    if tok == 'vcc_hi':
        return [('s', 107)]
    if tok == 'exec':
        return [('s', 126), ('s', 127)]
    if tok == 'm0':
        return [('s', 124)]
    m = REG_RE.match(tok)
    if not m:
        return []
    f = m.group(3)
    if m.group(5) is not None:
        return [(f, i) for i in range(int(m.group(5)), int(m.group(6)) + 1)]
    return [(f, int(m.group(4)))]


def split_ops(s):
    out, depth, cur = [], 0, ''
    for ch in s:
        if ch in '[(':
            depth += 1
        if ch in '])':
            depth -= 1
        if ch == ',' and depth == 0:
            out.append(cur.strip())
            cur = ''
        else:
            cur += ch
    if cur.strip():
        out.append(cur.strip())
    return out


TRANS = ('v_exp_f32', 'v_log_f32', 'v_rcp_f32', 'v_rsq_f32', 'v_sqrt_f32', 'v_sin_f32', 'v_cos_f32',
         'v_rcp_iflag_f32', 'v_exp_f16', 'v_rcp_f16')
RMW = ('v_fmac_f32', 'v_dot2c_f32_bf16', 'v_pk_fmac_f16', 'v_mac_f32', 'v_dot2c_f32_f16')


class Ins:
    __slots__ = ('text', 'op', 'ops', 'mods', 'dst', 'src', 'kind', 'label', 'target', 'srcA', 'srcB', 'srcC',
                 'passes', 'addr', 'data', 'lds', 'nwait', 'auto')

    def __init__(self, text, auto=False):
        self.text = text
        self.auto = auto
        self.label = None
        self.target = None
        self.dst = []
        self.src = []
        self.srcA = self.srcB = self.srcC = []
        self.passes = 0
        self.data = []
        self.lds = False
        self.nwait = 1
        t = text.split(';')[0].strip()
        if t.endswith(':'):
            self.kind = 'label'
            self.label = t[:-1]
            self.op = ''
            self.nwait = 0
            return
        if t.startswith('.') or t == '':
            self.kind = 'dir'
            self.op = ''
            self.nwait = 0
            return
        parts = t.split(None, 1)
        op = parts[0]
        for suf in ('_e32', '_e64', '_dpp', '_sdwa'):
            if op.endswith(suf):
                op = op[:-len(suf)]
        self.op = op
        rest = parts[1] if len(parts) > 1 else ''
        ops = split_ops(rest)
        mods = []
        if ops:
            last = ops[-1].split()
            ops[-1] = last[0]
            mods = last[1:]
        self.ops = ops
        self.mods = mods
        R = [parse_reg(o) for o in ops]
        if op.startswith('v_mfma'):
            self.kind = 'mfma'
            self.dst = R[0]
            self.srcA, self.srcB, self.srcC = R[1], R[2], R[3]
            self.src = R[1] + R[2] + R[3]
            self.passes = 8 if '32x32x16' in op else 4
        elif op.startswith('v_'):
            self.kind = 'valu'
            if op.startswith('v_cmp'):
                self.dst = R[0]
                self.src = sum(R[1:], [])
            elif op.startswith('v_permlane') and 'swap' in op:
                self.dst = R[0] + R[1]
                self.src = R[0] + R[1]
            elif op in ('v_add_co_u32', 'v_sub_co_u32', 'v_addc_co_u32', 'v_subb_co_u32', 'v_subrev_co_u32'):
                self.dst = R[0] + R[1]
                self.src = sum(R[2:], [])
            elif op == 'v_nop':
                pass
            else:
                self.dst = R[0]
                self.src = sum(R[1:], [])
                if op in RMW:
                    self.src = self.src + R[0]
                if 'dpp' in parts[0] or any(m.startswith(('row_', 'quad_perm', 'wave_')) for m in mods):
                    self.src = self.src + R[0]
                if op == 'v_cndmask_b32' and len(ops) == 3:
                    self.src = self.src + parse_reg('vcc')
        elif op.startswith('ds_'):
            self.kind = 'ds'
            if op.startswith(('ds_read', 'ds_bpermute', 'ds_permute', 'ds_swizzle')):
                self.dst = R[0]
                self.src = sum(R[1:], [])
            else:
                self.src = sum(R, [])
                self.data = sum(R[1:], [])
        elif op.startswith(('buffer_', 'global_')):
            self.kind = 'vmem'
            if op in ('buffer_wbl2', 'buffer_inv'):
                pass
            elif 'lds' in mods or op.startswith('global_load_lds'):
                self.lds = True
                self.src = sum(R, []) + parse_reg('m0')
            elif '_load' in op:
                self.dst = R[0]
                self.src = sum(R[1:], [])
            elif op.startswith('buffer_store'):
                self.data = R[0]
                self.src = sum(R, [])
            elif op.startswith('global_store'):
                self.data = R[1]
                self.src = sum(R, [])
            elif 'atomic' in op:
                if op.startswith('buffer'):
                    self.src = sum(R, [])
                    if 'sc0' in mods:
                        self.dst = R[0]
                else:
                    if 'sc0' in mods:
                        self.dst = R[0]
                        self.src = sum(R[1:], [])
                    else:
                        self.src = sum(R, [])
        elif op.startswith('s_'):
            if op.startswith(('s_load', 's_buffer_load', 's_memtime', 's_memrealtime', 's_atomic')):
                self.kind = 'smem'
                self.dst = R[0]
                self.src = sum(R[1:], [])
            elif op in ('s_branch',) or op.startswith('s_cbranch'):
                self.kind = 'branch'
                self.target = ops[0]
                if 'vcc' in op:
                    self.src = parse_reg('vcc')
            elif op == 's_call_b64':
                self.kind = 'call'
                self.target = ops[1]
                self.dst = R[0]
            elif op == 's_setpc_b64':
                self.kind = 'ret'
                self.src = R[0]
            elif op == 's_waitcnt':
                self.kind = 'wait'
            elif op == 's_nop':
                self.kind = 'nop'
                self.nwait = int(ops[0], 0) + 1
            elif op in ('s_barrier', 's_endpgm', 's_setprio', 's_sleep'):
                self.kind = 'sctl'
            elif op.startswith(('s_cmp', 's_bitcmp')):
                self.kind = 'salu'
                self.src = sum(R, [])
            else:
                self.kind = 'salu'
                self.dst = R[0]
                self.src = sum(R[1:], [])
                if 'saveexec' in op:
                    self.dst = self.dst + parse_reg('exec')
        else:
            raise ValueError('unknown instr ' + text)

    def waitvals(self):
        vm = lg = None
        m = re.search(r'vmcnt\((\d+)\)', self.text)
        if m:
            vm = int(m.group(1))
        m = re.search(r'lgkmcnt\((\d+)\)', self.text)
        if m:
            lg = int(m.group(1))
        return vm, lg


def ov(a, b):
    return bool(set(a) & set(b))


def required(p, c):
    n = 0
    isv = lambda regs: [r for r in regs if r[0] in 'va']
    iss = lambda regs: [r for r in regs if r[0] == 's']
    if p.kind == 'valu':
        pv = isv(p.dst)
        ps = iss(p.dst)
        if c.kind == 'mfma' and ov(pv, c.src):
            n = max(n, 2)
        if c.kind == 'valu':
            if p.op in TRANS and ov(pv, c.src):
                n = max(n, 1)
            if c.op.startswith('v_permlane') and ov(pv, c.src):
                n = max(n, 2)
            if c.op in ('v_readlane_b32', 'v_readfirstlane_b32') and ov(pv, c.src):
                n = max(n, 1)
            if ('dpp' in c.text or 'row_' in c.text or 'quad_perm' in c.text) and ov(pv, c.src):
                n = max(n, 2)
            if ps and ov(ps, c.src):
                n = max(n, 4 if c.op in ('v_readlane_b32', 'v_writelane_b32') else 2)
            if ('sdwa' in p.text or 'op_sel' in p.text or 'dst_sel' in p.text) and (ov(pv, c.src) or ov(pv, c.dst)):
                n = max(n, 1)
        if c.kind == 'vmem' and ps and ov(ps, c.src):
            n = max(n, 5)
        if c.kind in ('salu', 'smem') and ps and ov(ps, c.src):
            n = max(n, 1)
        if ov(ps, parse_reg('exec')):
            if c.kind == 'mfma':
                n = max(n, 4)
            if c.kind == 'valu':
                n = max(n, 5)
    elif p.kind == 'mfma':
        big = p.passes == 8
        if c.kind == 'mfma':
            if ov(p.dst, c.srcC):
                if not (c.srcC == p.dst and c.passes == p.passes):
                    n = max(n, 10 if big else 6)
            if ov(p.dst, c.srcA) or ov(p.dst, c.srcB):
                n = max(n, 12 if big else 8)
            if ov(p.dst, c.dst) and not ov(p.dst, c.srcC):
                n = max(n, 10 if big else 6)
        elif c.kind in ('valu', 'vmem', 'ds'):
            if ov(p.dst, c.src) or ov(p.dst, c.dst):
                n = max(n, 12 if big else 8)
            if c.kind == 'valu' and ov(p.srcC, c.dst):
                n = max(n, 7 if big else 3)
    elif p.kind == 'salu':
        if ov(p.dst, parse_reg('m0')) and c.kind == 'vmem' and c.lds:
            n = max(n, 1)
    elif p.kind == 'vmem':
        if p.data and len(p.data) >= 3:
            if c.kind == 'valu' and ov(p.data, c.dst):
                n = max(n, 2)
            elif ov(p.data, c.dst):
                n = max(n, 1)
    return n


class Kernel:
    def __init__(self, name, vgprs=256, agprs=0, sgprs=96, grid=1, block=256, lds=0):
        self.name = name
        self.ins = []
        self.vgprs, self.agprs, self.sgprs = vgprs, agprs, sgprs
        self.grid, self.block, self.lds = grid, block, lds
        self.uid = 0

    def __call__(self, text):
        for line in text.split('\n'):
            line = line.strip()
            if line:
                self.ins.append(Ins(line))

    def L(self, name):
        return f'L_{self.name}_{name}'

    def label(self, name):
        self.ins.append(Ins(self.L(name) + ':'))

    def newlabel(self, base='x'):
        self.uid += 1
        return f'{base}{self.uid}'

    def _cfg(self):
        ins = self.ins
        labels = {i.label: k for k, i in enumerate(ins) if i.kind == 'label'}
        succ = [[] for _ in ins]
        calls = [k for k, i in enumerate(ins) if i.kind == 'call']
        for k, i in enumerate(ins):
            if i.kind == 'branch':
                succ[k].append(labels[i.target])
                if i.op != 's_branch' and k + 1 < len(ins):
                    succ[k].append(k + 1)
            elif i.kind == 'call':
                succ[k].append(labels[i.target])
            elif i.kind == 'ret':
                for c in calls:
                    if ins[c].dst == i.src:
                        succ[k].append(c + 1)
            elif i.op == 's_endpgm':
                pass
            elif k + 1 < len(ins):
                succ[k].append(k + 1)
        pred = [[] for _ in ins]
        for k, s in enumerate(succ):
            for t in s:
                pred[t].append(k)
        return succ, pred

    def insert_waits(self):
        changed = True
        rounds = 0
        while changed:
            rounds += 1
            assert rounds < 200
            changed = False
            ins = self.ins
            succ, pred = self._cfg()
            state_in = [None] * len(ins)
            state_in[0] = ((), (), False)
            work = [0]
            need = {}
            visits = 0

            def merge(a, b):
                def m(x, y):
                    n = max(len(x), len(y))
                    x2 = (frozenset(),) * (n - len(x)) + x
                    y2 = (frozenset(),) * (n - len(y)) + y
                    return tuple(p | q for p, q in zip(x2, y2))
                return (m(a[0], b[0]), m(a[1], b[1]), a[2] or b[2])

            while work:
                k = work.pop()
                visits += 1
                assert visits < 2000000
                vm, lg, smem = state_in[k]
                i = ins[k]
                touched = set(i.src) | set(i.dst)
                nv = nl = None
                if touched and i.kind not in ('label', 'dir', 'wait'):
                    for pos, regs in enumerate(vm):
                        if regs & touched:
                            if i.kind == 'vmem' and not (regs & set(i.src)):
                                continue
                            nv = len(vm) - 1 - pos
                    for pos, regs in enumerate(lg):
                        if regs & touched:
                            if i.kind == 'ds' and not smem and not (regs & set(i.src)):
                                continue
                            nl = len(lg) - 1 - pos
                    if nl is not None and smem:
                        nl = 0
                if nv is not None or nl is not None:
                    o = need.get(k, (None, None))
                    mv = nv if o[0] is None else (o[0] if nv is None else min(o[0], nv))
                    ml = nl if o[1] is None else (o[1] if nl is None else min(o[1], nl))
                    need[k] = (mv, ml)
                    if nv is not None:
                        vm = vm[len(vm) - min(nv, 63):] if min(nv, 63) else ()
                    if nl is not None:
                        lg = lg[len(lg) - min(nl, 15):] if min(nl, 15) else ()
                        if nl == 0:
                            smem = False
                if i.kind == 'wait':
                    wv, wl = i.waitvals()
                    if wv is not None and len(vm) > wv:
                        vm = vm[len(vm) - wv:] if wv else ()
                    if wl is not None and len(lg) > wl:
                        if smem and wl > 0:
                            pass
                        else:
                            lg = lg[len(lg) - wl:] if wl else ()
                    if wl == 0:
                        smem = False
                elif i.kind == 'vmem':
                    vm = vm + (frozenset(i.dst),)
                    if len(vm) > 64:
                        vm = vm[-64:]
                elif i.kind == 'ds':
                    lg = lg + (frozenset(i.dst),)
                    if len(lg) > 40:
                        lg = lg[-40:] if not any(lg[:-40]) else lg
                elif i.kind == 'smem':
                    lg = lg + (frozenset(i.dst),)
                    smem = True
                def trim(x):
                    j = 0
                    while j < len(x) and not x[j]:
                        j += 1
                    return x[j:]
                out = (trim(vm), trim(lg), smem)
                for t in succ[k]:
                    if state_in[t] is None:
                        state_in[t] = out
                        work.append(t)
                    else:
                        mm = merge(state_in[t], out)
                        if mm != state_in[t]:
                            state_in[t] = mm
                            work.append(t)
            if need:
                ins_at = {}
                for k in sorted(need):
                    v, l = need[k]
                    pos = k
                    if ins[k].kind == 'mfma':
                        j = k - 1
                        pv = pl = 0
                        ok = False
                        while j >= 0:
                            p = ins[j]
                            if p.kind == 'mfma':
                                ok = True
                                break
                            if p.kind in ('label', 'branch', 'call', 'ret', 'sctl', 'smem', 'dir'):
                                break
                            if p.kind == 'vmem':
                                pv += 1
                            if p.kind == 'ds':
                                pl += 1
                            j -= 1
                        if ok and (v is None or v >= pv) and (l is None or l >= pl):
                            pos = j + 1
                            if v is not None:
                                v -= pv
                            if l is not None:
                                l -= pl
                    ins_at.setdefault(pos, []).append((v, l))
                new = []
                for k, i in enumerate(ins):
                    if k in ins_at:
                        vs = [x[0] for x in ins_at[k] if x[0] is not None]
                        ls = [x[1] for x in ins_at[k] if x[1] is not None]
                        if i.kind == 'wait':
                            wv, wl = i.waitvals()
                            if wv is not None:
                                vs.append(wv)
                            if wl is not None:
                                ls.append(wl)
                        s = 's_waitcnt'
                        if vs:
                            s += f' vmcnt({min(min(vs), 63)})'
                        if ls:
                            s += f' lgkmcnt({min(min(ls), 15)})'
                        new.append(Ins(s, auto=True))
                        if i.kind == 'wait':
                            continue
                    new.append(i)
                self.ins = new
                changed = True

    def pad_hazards(self):
        MAXW = 13
        again = True
        while again:
            again = False
            ins = self.ins
            succ, pred = self._cfg()
            add = {}
            for k, c in enumerate(ins):
                if c.kind in ('label', 'dir', 'nop', 'wait', 'sctl', 'branch'):
                    continue
                worst = 0
                stack = [(p, 0) for p in pred[k]]
                seen = {}
                while stack:
                    j, dist = stack.pop()
                    if dist >= MAXW:
                        continue
                    if j in seen and seen[j] <= dist:
                        continue
                    seen[j] = dist
                    p = ins[j]
                    if p.kind in ('valu', 'mfma', 'salu', 'vmem'):
                        r = required(p, c)
                        if r > dist:
                            worst = max(worst, r - dist)
                    nd = dist + p.nwait + add.get(j, 0)
                    for q in pred[j]:
                        stack.append((q, nd))
                if worst:
                    add[k] = worst
            if add:
                new = []
                for k, i in enumerate(ins):
                    if k in add:
                        n = add[k]
                        while n > 0:
                            m = min(n, 16)
                            new.append(Ins(f's_nop {m - 1}', auto=True))
                            n -= m
                    new.append(i)
                self.ins = new
                again = True

    def finalize(self):
        self.insert_waits()
        self.pad_hazards()
        for i in self.ins:
            for f, n in list(i.src) + list(i.dst):
                if f == 'v':
                    assert n < self.vgprs, (self.name, i.text)
                elif f == 'a':
                    assert n < self.agprs, (self.name, i.text)
                elif f == 's' and n < 102:
                    assert n < self.sgprs, (self.name, i.text)

    def text(self):
        out = [f'.globl {self.name}', '.p2align 8', f'.type {self.name},@function', f'{self.name}:']
        for i in self.ins:
            if i.kind == 'label':
                out.append(i.text)
            else:
                out.append(i.text)
        out.append(f'L_{self.name}_codeend:')
        return '\n'.join(out)

    def desc(self):
        acc = (self.vgprs + 3) // 4 * 4
        nfv = acc + self.agprs if self.agprs else self.vgprs
        return f""".p2align 6
.amdhsa_kernel {self.name}
  .amdhsa_next_free_vgpr {nfv}
  .amdhsa_next_free_sgpr {self.sgprs}
  .amdhsa_accum_offset {acc}
  .amdhsa_group_segment_fixed_size 0
  .amdhsa_kernarg_size 112
  .amdhsa_user_sgpr_count 2
  .amdhsa_user_sgpr_kernarg_segment_ptr 1
  .amdhsa_system_sgpr_workgroup_id_x 1
.end_amdhsa_kernel"""

    def launch(self):
        return f'; @launch kernel={self.name} grid=({self.grid},1,1) block=({self.block},1,1) lds={self.lds}'

    def stats(self):
        from collections import Counter
        c = Counter(i.kind for i in self.ins)
        a = sum(1 for i in self.ins if i.auto and i.kind == 'nop')
        return f'{self.name}: {len(self.ins)} lines {dict(c)} auto-nops={a}'


def write_file(path, kernels, header='', launches=None):
    for k in kernels:
        k.finalize()
    launches = launches or kernels
    s = header
    s += '\n'.join(k.launch() for k in launches) + '\n'
    s += '.amdgcn_target "amdgcn-amd-amdhsa--gfx950"\n.text\n'
    s += '\n'.join(k.text() for k in kernels) + '\n'
    s += '.section .rodata,"a"\n'
    s += '\n'.join(k.desc() for k in kernels) + '\n'
    open(path, 'w').write(s)
    for k in kernels:
        print(k.stats())
```

```python
import sys
sys.path.insert(0, 'dev')
from asmlib import *

A_X, A_K, A_V, A_WQ, A_WO, B_X, B_WG, B_WU, B_WD, C_IN, W_MOD, D_OUT, D_DBG, D_WS = [8 * i for i in range(14)]

WS_MOD = 0
WS_H1 = 1 << 20
WS_O = 8 << 20
WS_X1 = 24 << 20
WS_H2 = 28 << 20
WS_ACT = 32 << 20

def srd(k, d, base_pair, off, nbytes):
    if off == 0:
        k(f's_mov_b32 s{d}, s{base_pair}')
        k(f's_mov_b32 s{d+1}, s{base_pair+1}')
    else:
        k(f's_add_u32 s{d}, s{base_pair}, {off}')
        k(f's_addc_u32 s{d+1}, s{base_pair+1}, 0')
    k(f's_mov_b32 s{d+2}, {nbytes}')
    k(f's_mov_b32 s{d+3}, 0x00020000')

def wave_allreduce_add(k, regs, tmps):
    for ror in (1, 2, 4, 8):
        for r in regs:
            k(f'v_add_f32_dpp v{r}, v{r}, v{r} row_ror:{ror} row_mask:0xf bank_mask:0xf')
    for sw in ('v_permlane16_swap_b32', 'v_permlane32_swap_b32'):
        for r, t in zip(regs, tmps):
            k(f'v_mov_b32 v{t}, v{r}')
        for r, t in zip(regs, tmps):
            k(f'{sw} v{t}, v{r}')
        for r, t in zip(regs, tmps):
            k(f'v_add_f32 v{r}, v{r}, v{t}')

def f32(x):
    import struct
    return '0x%08x' % struct.unpack('<I', struct.pack('<f', x))[0]


WS_STAMP = 64 << 20
class Stamper:
    def __init__(self, k, on, base=64, tmp=62):
        self.k, self.on, self.base, self.n, self.tmp = k, on, base, 0, tmp
    def stamp(self):
        if not self.on: return
        k = self.k
        k(f's_memtime s[{self.tmp}:{self.tmp+1}]')
        k('s_waitcnt lgkmcnt(0)')
        k(f's_mov_b32 s{self.base + self.n}, s{self.tmp}')
        self.n += 1
    def dump(self, ws_pair, wave_sgpr, slot, srd_base=92):
        if not self.on: return
        k = self.k
        k(f's_memrealtime s[{self.tmp}:{self.tmp+1}]')
        k('s_waitcnt lgkmcnt(0)')
        k(f's_mov_b32 s{self.base + self.n}, s{self.tmp}')
        self.n += 1
        srd(k, srd_base, ws_pair, WS_STAMP + slot * (1 << 20), 1 << 20)
        k(f's_lshl_b32 s{self.tmp}, s2, 3')
        k(f's_add_u32 s{self.tmp}, s{self.tmp}, s{wave_sgpr}')
        k(f's_lshl_b32 s{self.tmp}, s{self.tmp}, 7')
        k('v_mov_b32 v2, 0')
        for i in range(self.n):
            k(f'v_mov_b32 v3, s{self.base + i}')
            k(f'buffer_store_dword v3, v2, s[{srd_base}:{srd_base+3}], s{self.tmp} offen offset:{4*i}')
    def start(self):
        if not self.on: return
        k = self.k
        k(f's_memrealtime s[{self.tmp}:{self.tmp+1}]')
        k('s_waitcnt lgkmcnt(0)')
        k(f's_mov_b32 s{self.base + self.n}, s{self.tmp}')
        self.n += 1
        self.stamp()
```

```python
from common import *
import math

V_LANE = 1
V_T0 = 2
V_KA = 8
V_VA = 12
V_KD = 20
V_VD = 24
V_WD = 26
V_HD = 30
V_LT = 34
V_L = 38
V_KG = 42
V_CK = 43
V_TM = 44
V_CI = 48
V_S = (64, 128)
V_Q = 192
A_O = 0
A_KF = 128
A_VF = 160
A_X2 = 192

S_K, S_V, S_WQ, S_H, S_OO = 8, 12, 16, 20, 24
S_W = 30
S_KOFF = 31
S_VOFF = 32
S_M0K = 33
S_CNT = 34
S_TOFF = 35
S_THR = 36
S_RET = 38
S_T = 40

LDS_K = 0
LDS_V = 65536
LDS_W = 98304
BIAS = 32.0

PI = [0, 2, 1, 3]


def Sreg(st, kt, qt):
    return V_S[st] + ((kt >> 1) * 4 + qt) * 8 + (kt & 1) * 4


def Preg(st, qt, ks):
    return V_S[st] + (ks * 4 + qt) * 8


def Qreg(qt, s):
    return V_Q + (qt * 4 + s) * 4


def Oreg(dt, qt):
    return A_O + (dt * 4 + qt) * 4


def r4(f, b):
    return f'{f}[{b}:{b + 3}]'


def mf(d, a, b, c):
    return f'v_mfma_f32_16x16x32_bf16 {d}, {a}, {b}, {c}'


def kread(kt, s, slot):
    b = A_KF + (kt & 1) * 16 + s * 4
    return f'ds_read_b128 {r4("a", b)}, v{V_KA + s} offset:{slot * 16384 + kt * 4096}'


def vread(dt, ks, half, slot):
    b = A_VF + (dt & 3) * 8 + ks * 4 + half * 2
    return f'ds_read_b64_tr_b16 a[{b}:{b + 1}], v{V_VA + dt} offset:{slot * 16384 + ks * 8192 + half * 4096}'


def softmax_half_ops(st, ks, first):
    ex, ad, cv = [], [], []
    for qt in range(4):
        b = Preg(st, qt, ks)
        for e in range(8):
            ex.append(f'v_exp_f32 v{b + e}, v{b + e}')
            if first and e == 0:
                ad.append(f'v_add_f32 v{V_L + qt}, v{V_L + qt}, v{V_LT + qt}')
            elif first and e == 1:
                ad.append(f'v_add_f32 v{V_LT + qt}, v{b}, v{b + 1}')
            else:
                ad.append(f'v_add_f32 v{V_LT + qt}, v{V_LT + qt}, v{b + e}')
        for j in range(4):
            cv.append(f'v_cvt_pk_bf16_f32 v{b + j}, v{b + 2 * j}, v{b + 2 * j + 1}')
    return ex, ad, cv


def _cls(t):
    if t.endswith(':'):
        return 0
    if t.startswith('s_'):
        return 0
    if t.startswith(('ds_', 'buffer_', 'global_')):
        return 1
    return 2


def emit_phase(k, mfmas, gaps):
    for i, m in enumerate(mfmas):
        if m:
            k(m)
        for f in sorted(gaps.get(i, []), key=_cls):
            k(f)


def place_softmax(gaps, ex, ad, cv):
    for i in range(32):
        gaps.setdefault(2 * i, []).append(ex[i])
        gaps.setdefault(2 * i + 1, []).append(ad[i])
    for j in range(16):
        gaps.setdefault(4 * j + 3, []).append(cv[j])


SM0 = 60


def softmax_stream(st):
    e0, a0, c0 = softmax_half_ops(st, 0, True)
    e1, a1, c1 = softmax_half_ops(st, 1, False)
    ex, ad, cv = e0 + e1, a0 + a1, c0 + c1
    out = []
    E = [SM0 + 2 * i for i in range(62)] + [SM0 + 123, SM0 + 124]
    A = [e + 1 for e in E]
    for i in range(64):
        out.append((E[i], 0, ex[i]))
        out.append((A[i], 1, ad[i]))
    for j in range(32):
        out.append((A[2 * j + 1], 2, cv[j]))
    out.sort(key=lambda x: (x[0], (1, 0, 2)[x[1]]))
    return out


def gen_attn(dbg=False):
    k = Kernel('attn_kernel', vgprs=256, agprs=256, sgprs=96, grid=256, block=256, lds=160 * 1024)
    k('s_cmp_ge_u32 s2, 256')
    k(f's_cbranch_scc1 {k.L("end")}')
    T = Stamper(k, dbg)
    T.start()
    k(f's_load_dwordx4 s[4:7], s[0:1], {A_K}')
    k(f's_load_dwordx2 s[28:29], s[0:1], {A_WQ}')
    k(f's_load_dwordx2 s[44:45], s[0:1], {D_WS}')
    k(f'v_lshrrev_b32 v2, 6, v0')
    k(f'v_and_b32 v{V_LANE}, 63, v0')
    k(f'v_readfirstlane_b32 s{S_W}, v2')
    k('s_and_b32 s40, s2, 7')
    k('s_lshl_b32 s40, s40, 2')
    k('s_lshr_b32 s41, s2, 6')
    k('s_add_u32 s40, s40, s41')
    k('s_bfe_u32 s41, s2, 0x30003')
    k('s_lshl_b32 s42, s40, 19')
    k('s_lshl_b32 s43, s40, 8')
    k(f'v_and_b32 v2, 15, v{V_LANE}')
    k(f'v_lshrrev_b32 v3, 4, v{V_LANE}')
    k(f's_lshl_b32 s{S_M0K}, s{S_W}, 12')
    k(f'v_lshlrev_b32 v4, 8, v3')
    k(f'v_add_u32 v4, s{S_M0K}, v4')
    for j in range(4):
        k(f'v_add_u32 v5, {4 * j}, v3')
        k(f'v_xor_b32 v5, v5, v2')
        k(f'v_lshl_add_u32 v{V_KD + j}, v5, 4, v4')
    for j in range(2):
        k(f'v_add_u32 v5, {4 * j}, v3')
        k(f'v_lshlrev_b32 v5, 1, v5')
        k(f'v_xor_b32 v5, v5, v2')
        k(f'v_lshl_add_u32 v{V_VD + j}, v5, 4, v4')
    k(f's_lshl_b32 s46, s{S_W}, 17')
    k(f'v_lshlrev_b32 v4, 13, v3')
    k(f'v_add_u32 v4, s46, v4')
    for j in range(4):
        k(f'v_add_u32 v5, {4 * (j >> 1)}, v3')
        k(f'v_lshlrev_b32 v5, 1, v5')
        k(f'v_xor_b32 v5, v5, v2')
        k(f'v_lshl_add_u32 v5, v5, 4, v4')
        k(f'v_add_u32 v{V_WD + j}, {4 * j * 8192 - 1024 * j}, v5')
    k(f'v_lshlrev_b32 v4, 4, v{V_LANE}')
    k(f'v_mov_b32 v{V_HD}, v4')
    k('v_and_b32 v4, 1, v3')
    k('v_lshlrev_b32 v4, 1, v4')
    k('v_lshrrev_b32 v5, 1, v3')
    k('v_or_b32 v4, v4, v5')
    k('v_lshlrev_b32 v6, 8, v2')
    k(f'v_lshl_add_u32 v{V_KG}, v4, 4, v6')
    for s in range(4):
        k(f'v_add_u32 v5, {4 * s}, v4')
        k('v_xor_b32 v5, v5, v2')
        k(f'v_lshl_add_u32 v{V_KA + s}, v5, 4, v6')
    k('v_lshrrev_b32 v4, 2, v2')
    k('v_and_b32 v5, 1, v3')
    k('v_lshl_or_b32 v5, v5, 2, v4')
    k('v_lshlrev_b32 v5, 1, v5')
    k('v_bfe_u32 v6, v2, 1, 1')
    k('v_xor_b32 v5, v5, v6')
    k('v_lshl_add_u32 v4, v3, 3, v4')
    k('v_lshlrev_b32 v4, 8, v4')
    k('v_and_b32 v6, 1, v2')
    k('v_lshl_add_u32 v4, v6, 3, v4')
    k(f'v_add_u32 v4, {LDS_W}, v4')
    for dt in range(8):
        k(f'v_xor_b32 v6, {2 * dt}, v5')
        k(f'v_lshl_add_u32 v{V_VA + dt}, v6, 4, v4')
    k(f'v_lshlrev_b32 v{V_TM}, 10, v3')
    k(f'v_add_u32 v{V_TM}, {LDS_W - LDS_V}, v{V_TM}')
    k('s_waitcnt lgkmcnt(0)')
    srd(k, S_K, 4, 's42', 524288)
    srd(k, S_V, 6, 's42', 524288)
    srd(k, S_WQ, 28, 's43', 1024 * 8192 - 31 * 256)
    srd(k, S_H, 44, WS_H1, 2048 * 2048)
    srd(k, S_OO, 44, WS_O, 2048 * 8192)
    k('s_lshl_b32 s46, s41, 2')
    k(f's_add_u32 s46, s46, s{S_W}')
    k('s_lshl_b32 s47, s46, 12')
    k('s_lshl_b32 s48, s46, 12')
    k('s_lshl_b32 s49, s40, 19')
    k('s_add_u32 s48, s48, s49')
    k(f's_mov_b32 s{S_THR}, {f32(2.0 ** BIAS)}')

    vm = []

    def vwait(tag):
        last = max(i for i, t in enumerate(vm) if t == tag)
        return min(63, len(vm) - 1 - last)

    def wq_dma(st):
        ops = [f's_add_u32 m0, s{S_M0K}, {LDS_W + (st & 3) * 16384}', f's_mov_b32 s50, {st * 64 * 8192}']
        for j in range(4):
            ops.append((f'buffer_load_dwordx4 v{V_WD + j}, s[{S_WQ}:{S_WQ + 3}], s50 offen offset:{j * 1024} lds', ('W', st)))
        return ops

    def h_loads(st):
        ops = []
        for s in range(2):
            ops.append(f's_add_u32 s51, s47, {(st * 2 + s) * 131072}')
            for qt in range(4):
                b = (st & 3) * 32 + (qt * 2 + s) * 4
                ops.append((f'buffer_load_dwordx4 {r4("a", b)}, v{V_HD}, s[{S_H}:{S_H + 3}], s51 offen offset:{qt * 1024}', ('H', st)))
        return ops

    def kv_dma(which, t, soff):
        ops = []
        if which == 'K':
            ops.append(f's_add_u32 m0, s{S_M0K}, {LDS_K + (t & 3) * 16384}')
            for j in range(4):
                ops.append((f'buffer_load_dwordx4 v{V_KD + j}, s[{S_K}:{S_K + 3}], {soff} offen offset:{j * 1024} lds', ('K', t)))
        else:
            ops.append(f's_add_u32 m0, s{S_M0K}, {LDS_V + (t & 3) * 16384}')
            for j in range(4):
                ops.append((f'buffer_load_dwordx4 v{V_VD + (j & 1)}, s[{S_V}:{S_V + 3}], {soff} offen offset:{j * 1024} lds', ('V', t)))
        return ops

    def emit_ops(ops):
        for o in ops:
            if isinstance(o, tuple):
                k(o[0]); vm.append(o[1])
            else:
                k(o)

    def wread(dt, s, half, st):
        b = A_X2 + (dt & 3) * 8 + s * 4 + half * 2
        return f'ds_read_b64_tr_b16 a[{b}:{b + 1}], v{V_VA + dt} offset:{(st & 3) * 16384 + s * 8192 + half * 1024}'

    def qacc(dt, qt):
        return 64 + (qt * 8 + dt) * 4

    for st in range(3):
        emit_ops(wq_dma(st))
        emit_ops(h_loads(st))
    k(f's_waitcnt vmcnt({vwait(("W", 0))})')
    k('s_barrier')
    T.stamp()
    for dt in range(2):
        for s in range(2):
            for h in range(2):
                k(wread(dt, s, h, 0))
    NST = 16
    early = {4: ('K', 0), 5: ('V', 0), 6: ('K', 1), 7: ('V', 1), 8: ('K', 2), 9: ('K', 3)}
    for st in range(NST):
        side = []
        if st + 3 < NST:
            side += wq_dma(st + 3) + h_loads(st + 3)
        if st in early:
            w, t = early[st]
            side += [f's_mov_b32 s52, {t * 16384}'] + kv_dma(w, t, 's52')
        idx = 0
        for dt in range(8):
            rd = []
            if dt + 2 < 8:
                rd = [wread(dt + 2, s, h, st) for s in range(2) for h in range(2)]
            elif st + 1 < NST:
                rd = [wread(dt + 2 - 8, s, h, st + 1) for s in range(2) for h in range(2)]
            if dt == 6 and st + 1 < NST:
                k(f's_waitcnt vmcnt({vwait(("W", st + 1))}) lgkmcnt(0)')
                k('s_barrier')
            for qt in range(4):
                for s in range(2):
                    d = r4('v', qacc(dt, qt))
                    a = r4('a', A_X2 + (dt & 3) * 8 + s * 4)
                    b = r4('a', (st & 3) * 32 + (qt * 2 + s) * 4)
                    c = '0' if (st == 0 and s == 0) else d
                    k(mf(d, a, b, c))
                    if rd and (qt * 2 + s) % 2 == 0:
                        k(rd.pop(0))
                    elif side and dt < 6:
                        o = side.pop(0)
                        emit_ops([o])
                        if not isinstance(o, tuple) and side:
                            pass
        assert not side, side
        if dbg == 2: T.stamp()
    T.stamp()
    k(f's_waitcnt vmcnt({vwait(("K", 0))})')
    k('s_barrier')
    for s in range(4):
        k(kread(0, s, 0))
    for s in range(4):
        k(kread(1, s, 0))
    emit_ops([f's_mov_b32 s52, {2 * 16384}'] + kv_dma('V', 2, 's52'))
    for dt in range(8):
        k(f'v_sub_u32 v{V_VA + dt}, v{V_VA + dt}, v{V_TM}')
    for qt in range(4):
        for s in range(4):
            q = Qreg(qt, s)
            t0, t1 = qacc(2 * s, qt), qacc(2 * s + 1, qt)
            k(f'v_cvt_pk_bf16_f32 v{q}, v{t0}, v{t0 + 1}')
            k(f'v_cvt_pk_bf16_f32 v{q + 1}, v{t0 + 2}, v{t0 + 3}')
            k(f'v_cvt_pk_bf16_f32 v{q + 2}, v{t1}, v{t1 + 1}')
            k(f'v_cvt_pk_bf16_f32 v{q + 3}, v{t1 + 2}, v{t1 + 3}')
        for s in range(4):
            q = Qreg(qt, s)
            k(f'v_permlane16_swap_b32 v{q}, v{q + 2}')
            k(f'v_permlane16_swap_b32 v{q + 1}, v{q + 3}')
    zero = [f'v_accvgpr_write_b32 a{A_O + i}, 0' for i in range(128)]
    for kt in range(4):
        for qt in range(4):
            for s in range(4):
                d = r4('v', Sreg(0, kt, qt))
                k(mf(d, r4('a', A_KF + (kt & 1) * 16 + s * 4), r4('v', Qreg(qt, s)), '0' if s == 0 else d))
                k(zero.pop(0)); k(zero.pop(0))
        if kt + 2 < 4:
            for s in range(4):
                k(kread(kt + 2, s, 0))
    k(f's_waitcnt vmcnt({min(vwait(("V", 0)), vwait(("K", 1)))})')
    k('s_barrier')
    for s in range(4):
        k(kread(0, s, 1))

    def rowmax(st, dst):
        for qt in range(4):
            regs = [Sreg(st, kt, qt) + r for kt in range(4) for r in range(4)]
            d = dst + qt
            k(f'v_max3_f32 v{d}, v{regs[0]}, v{regs[1]}, v{regs[2]}')
            for i in range(3, 15, 2):
                k(f'v_max3_f32 v{d}, v{d}, v{regs[i]}, v{regs[i + 1]}')
            k(f'v_max_f32 v{d}, v{d}, v{regs[15]}')
        for sw in ('v_permlane16_swap_b32', 'v_permlane32_swap_b32'):
            for qt in range(4):
                k(f'v_mov_b32 v{V_T0 + qt}, v{dst + qt}')
            for qt in range(4):
                k(f'{sw} v{V_T0 + qt}, v{dst + qt}')
            for qt in range(4):
                k(f'v_max_f32 v{dst + qt}, v{dst + qt}, v{V_T0 + qt}')

    rowmax(0, V_TM)
    k(f's_mov_b32 s53, {f32(BIAS)}')
    for qt in range(4):
        k(f'v_add_f32 v{V_TM + qt}, s53, v{V_TM + qt}')
        for r in range(4):
            k(f'v_sub_f32 v{V_CI + qt * 4 + r}, 0, v{V_TM + qt}')
        k(f'v_mov_b32 v{V_L + qt}, 0')
        k(f'v_mov_b32 v{V_LT + qt}, 0')
    for kt in range(4):
        for qt in range(4):
            for r in range(4):
                x = Sreg(0, kt, qt) + r
                k(f'v_sub_f32 v{x}, v{x}, v{V_TM + qt}')
    for pos, _, op in softmax_stream(0):
        if pos < 128:
            k(op)

    k(f's_mov_b32 s{S_KOFF}, {4 * 16384}')
    k(f's_mov_b32 s{S_VOFF}, {3 * 16384}')
    k(f's_mov_b32 s{S_TOFF}, 0')
    k(f's_mov_b32 s{S_CNT}, 0')
    tramps = []

    def tile(t4, last=False, tag=''):
        st, sn = t4 & 1, (t4 + 1) & 1
        M = []
        gaps = {}

        def put(g, op):
            gaps.setdefault(g, []).append(op)
        for pos, _, op in softmax_stream(st):
            if pos >= 128:
                put(pos - 128, op)
        put(58, f'v_max3_f32 v{V_CK}, v{V_LT}, v{V_LT + 1}, v{V_LT + 2}')
        put(58, f'v_max_f32 v{V_CK}, v{V_CK}, v{V_LT + 3}')
        put(59, f'v_cmp_nge_f32 vcc, s{S_THR}, v{V_CK}')
        lab = k.newlabel('tr')
        put(60, f's_cbranch_vccnz {k.L(lab)}')
        put(60, k.L(lab + 'r') + ':')
        tramps.append((lab, st))
        if not last:
            for pos, _, op in softmax_stream(sn):
                if pos < 128:
                    put(pos, op)
        else:
            for qt in range(4):
                put(64 + qt, f'v_add_f32 v{V_L + qt}, v{V_L + qt}, v{V_LT + qt}')
        kslot = (t4 + 1) & 3
        if not last:
            for kt in range(4):
                for qt in range(4):
                    for s in range(4):
                        d = r4('v', Sreg(sn, kt, qt))
                        c = r4('v', V_CI + qt * 4) if s == 0 else d
                        M.append(mf(d, r4('a', A_KF + (kt & 1) * 16 + s * 4), r4('v', Qreg(qt, s)), c))
                if kt + 1 < 4:
                    for s, g in enumerate([1, 3, 5, 9]):
                        put(16 * kt + g, kread(kt + 1, s, kslot))
            ops = kv_dma('V', t4 + 3, f's{S_VOFF}') + [f's_add_u32 s{S_VOFF}, s{S_VOFF}, 16384'] \
                + kv_dma('K', t4, f's{S_KOFF}') + [f's_add_u32 s{S_KOFF}, s{S_KOFF}, 16384']
            ops = [o[0] if isinstance(o, tuple) else o for o in ops]
            slots = [10, 11, 13, 27, 29, 30, 42, 43, 45, 47, 49, 50]
            for o, g in zip(ops, slots):
                put(g, o)
        else:
            M = [None] * 64
        vr = [vread(dt, ks, h, t4) for dt in range(3) for ks in range(2) for h in range(2)]
        for i, g in enumerate([7, 15, 23, 31, 39, 51, 53, 55, 57, 59, 61, 63]):
            put(g, vr[i])
        for dt in range(8):
            for qt in range(4):
                for ks in range(2):
                    d = r4('a', Oreg(dt, qt))
                    M.append(mf(d, r4('a', A_VF + (dt & 3) * 8 + ks * 4), r4('v', Preg(st, qt, ks)), d))
            if dt + 3 < 8:
                vr = [vread(dt + 3, ks, h, t4) for ks in range(2) for h in range(2)]
                for i, g in enumerate([1, 3, 5, 7]):
                    put(64 + 8 * dt + g, vr[i])
        put(66, f's_add_u32 s{S_TOFF}, s{S_TOFF}, 16384')
        if not last:
            put(111, 's_waitcnt vmcnt(16) lgkmcnt(0)')
            put(112, 's_barrier')
            for s, g in enumerate([113, 115, 117, 121]):
                put(g, kread(0, s, (t4 + 2) & 3))
        emit_phase(k, M, gaps)

    T.stamp()
    k('.p2align 6')
    k.label('loop')
    for t4 in range(4):
        tile(t4)
    k(f's_add_u32 s{S_CNT}, s{S_CNT}, 1')
    k(f's_cmp_lt_u32 s{S_CNT}, 7')
    k(f's_cbranch_scc1 {k.L("loop")}')
    T.stamp()
    for t4 in range(4):
        tile(t4, last=(t4 == 3))
    T.stamp()

    regs = [V_L + qt for qt in range(4)]
    for sw in ('v_permlane16_swap_b32', 'v_permlane32_swap_b32'):
        for qt in range(4):
            k(f'v_mov_b32 v{V_T0 + qt}, v{V_L + qt}')
        for qt in range(4):
            k(f'{sw} v{V_T0 + qt}, v{V_L + qt}')
        for qt in range(4):
            k(f'v_add_f32 v{V_L + qt}, v{V_L + qt}, v{V_T0 + qt}')
    for qt in range(4):
        k(f'v_rcp_f32 v{V_L + qt}, v{V_L + qt}')
    k(f'v_lshlrev_b32 v2, 4, v{V_LANE}')
    for j in range(4):
        k(f's_add_u32 s49, s48, {j * 131072}')
        for qt in range(4):
            t = 64 + (qt * 4 + j) * 8
            for h in range(2):
                for r in range(4):
                    k(f'v_accvgpr_read_b32 v{t + h * 4 + r}, a{Oreg(2 * j + h, qt) + r}')
            for e in range(8):
                k(f'v_mul_f32 v{t + e}, v{t + e}, v{V_L + qt}')
            for e in range(4):
                k(f'v_cvt_pk_bf16_f32 v{t + e}, v{t + 2 * e}, v{t + 2 * e + 1}')
            k(f'buffer_store_dwordx4 {r4("v", t)}, v2, s[{S_OO}:{S_OO + 3}], s49 offen offset:{qt * 1024}')
    k('s_waitcnt vmcnt(0)') if dbg else None
    T.stamp()
    T.dump(44, S_W, 0)
    k.label('end')
    k('s_endpgm')

    for lab, st in tramps:
        k.label(lab)
        k(f's_call_b64 s[{S_RET}:{S_RET + 1}], {k.L("slow%d" % st)}')
        k(f's_branch {k.L(lab + "r")}')
    for st in range(2):
        sn = st ^ 1
        k.label(f'slow{st}')
        for kt in range(4):
            k(f's_add_u32 s52, s{S_TOFF}, {kt * 4096}')
            for s in range(4):
                k(f'buffer_load_dwordx4 {r4("a", A_X2 + (kt * 4 + s) * 4)}, v{V_KG}, s[{S_K}:{S_K + 3}], s52 offen offset:{s * 64}')
        k('s_waitcnt vmcnt(0)')
        for kt in range(4):
            for qt in range(4):
                for s in range(4):
                    d = r4('v', Sreg(st, kt, qt))
                    c = r4('v', V_CI + qt * 4) if s == 0 else d
                    k(mf(d, r4('a', A_X2 + (kt * 4 + s) * 4), r4('v', Qreg(qt, s)), c))
        rowmax(st, V_TM)
        k(f's_mov_b32 s53, {f32(BIAS)}')
        for qt in range(4):
            k(f'v_add_f32 v{V_TM + qt}, s53, v{V_TM + qt}')
            k(f'v_max_f32 v{V_TM + qt}, 0, v{V_TM + qt}')
            k(f'v_sub_f32 v{V_T0 + qt}, 0, v{V_TM + qt}')
            k(f'v_exp_f32 v{V_T0 + qt}, v{V_T0 + qt}')
            for r in range(4):
                k(f'v_sub_f32 v{V_CI + qt * 4 + r}, v{V_CI + qt * 4 + r}, v{V_TM + qt}')
            k(f'v_mul_f32 v{V_L + qt}, v{V_L + qt}, v{V_T0 + qt}')
        for ss in (st, sn):
            for kt in range(4):
                for qt in range(4):
                    for r in range(4):
                        x = Sreg(ss, kt, qt) + r
                        k(f'v_sub_f32 v{x}, v{x}, v{V_TM + qt}')
        for dt in range(8):
            for qt in range(4):
                for r in range(4):
                    a = Oreg(dt, qt) + r
                    k(f'v_accvgpr_read_b32 v6, a{a}')
                    k(f'v_mul_f32 v6, v6, v{V_T0 + qt}')
                    k(f'v_accvgpr_write_b32 a{a}, v6')
        for qt in range(4):
            k(f'v_mov_b32 v{V_LT + qt}, 0')
        for ks in range(2):
            ex, ad, cv = softmax_half_ops(st, ks, False)
            g0 = {}
            place_softmax(g0, ex, ad, cv)
            emit_phase(k, [None] * 64, g0)
        k(f's_setpc_b64 s[{S_RET}:{S_RET + 1}]')
    return k
```

```python
from common import *
import math


def r4(f, b):
    return f'{f}[{b}:{b + 3}]'


def mf(d, a, b, c):
    return f'v_mfma_f32_16x16x32_bf16 {d}, {a}, {b}, {c}'


def _cls(t):
    if t.startswith('s_'):
        return 0
    if t.startswith(('ds_', 'buffer_', 'global_')):
        return 1
    return 2


def lane_decomp(k):
    k('v_lshrrev_b32 v2, 6, v0')
    k('v_and_b32 v1, 63, v0')
    k('v_readfirstlane_b32 s30, v2')
    k('v_and_b32 v2, 15, v1')
    k('v_lshrrev_b32 v3, 4, v1')


def mainloop(k, NST, R, D, NT, MT, KS, WB, PD, acc, wfrag, afrag, wread, dma_ops, act_ops, adv_ops, T=None, need_lgkm=True):
    assert NST % R == 0
    nv = lambda ops: sum(1 for o in ops if o.startswith('buffer_'))
    per_stage = dma_ops(0) + act_ops(0) + adv_ops
    ndma, nact = nv(dma_ops(0)), nv(act_ops(0))
    for st in range(D):
        for o in dma_ops(st % R) + act_ops(st % R) + adv_ops:
            k(o)
    yield 'after_issue'
    k(f's_waitcnt vmcnt({min(63, nact + (D - 1) * (ndma + nact))})')
    k('s_barrier')
    if T: T.stamp()
    for g in range(PD):
        for s in range(KS):
            for h in range(2):
                k(wread(g, s, h, 0, g % WB))
    k('s_mov_b32 s34, 0')
    k('.p2align 6')
    k.label('loop')
    GL = MT * KS
    BG = NT - PD + (1 if need_lgkm else 0)
    assert (NT * R) % WB == 0
    for st in range(R):
        gaps = {}

        def put(g, op):
            gaps.setdefault(g, []).append(op)
        M = []
        pend = []
        busy = set()
        for nt in range(NT):
            G = st * NT + nt
            tgt = nt + PD
            rd = [wread(tgt % NT, s, h, (st + tgt // NT) % R, (G + PD) % WB) for s in range(KS) for h in range(2)]
            if tgt >= NT and nt < BG:
                pend += rd
                rd = []
            elif tgt >= NT:
                rd = pend + rd
                pend = []
            first = 1 if nt == BG else 0
            step = 1 if len(rd) * 2 > GL - first else 2
            for i, r in enumerate(rd):
                g = nt * GL + min(first + i * step, GL - 1)
                put(g, r)
                busy.add(g)
            for mt in range(MT):
                for s in range(KS):
                    d = acc(nt, mt)
                    M.append(mf(d, wfrag(G % WB, s), afrag(st, mt, s), d))
        assert not pend
        side = dma_ops((st + D) % R) + act_ops((st + D) % R) + adv_ops
        limit = BG * GL - 1
        free = [g for g in range(limit) if g not in busy]
        nvm = nv(side)
        if len(free) < nvm + 1:
            free = list(range(limit))
        pos = [free[1 + (i * (len(free) - 1)) // nvm] for i in range(nvm)]
        vi = 0
        for i, o in enumerate(side):
            if o.startswith('buffer_'):
                put(pos[vi], o)
                vi += 1
            else:
                g = pos[vi] - 1 if vi < nvm else pos[-1] + 1
                if vi > 0:
                    g = max(g, pos[vi - 1] + (1 if vi >= nvm else 0))
                    if g == pos[vi - 1]:
                        put(g, ('late', o))
                        continue
                put(g, o)
        w = f's_waitcnt vmcnt({min(63, nact + (D - 1) * (ndma + nact))})' + (' lgkmcnt(0)' if need_lgkm else '')
        put(BG * GL - 1, ('late', w))
        put(BG * GL, 's_barrier')
        if st == R - 1:
            put(NT * GL - 3, 's_add_u32 s34, s34, 1')
            put(NT * GL - 2, f's_cmp_lt_u32 s34, {NST // R}')
        for i, m in enumerate(M):
            k(m)
            ops = gaps.get(i, [])
            early = sorted([o for o in ops if not isinstance(o, tuple)], key=_cls)
            for o in early:
                k(o)
            for o in ops:
                if isinstance(o, tuple):
                    k(o[1])
    k(f's_cbranch_scc1 {k.L("loop")}')
    if T: T.stamp()


def gen_gateup(dbg=False):
    k = Kernel('gateup_kernel', vgprs=256, agprs=256, sgprs=96, grid=224, block=256, lds=128 * 1024)
    T = Stamper(k, dbg)
    k('s_cmp_ge_u32 s2, 224')
    k(f's_cbranch_scc1 {k.L("end")}')
    T.start()
    k(f's_load_dwordx4 s[4:7], s[0:1], {B_WG}')
    k(f's_load_dwordx2 s[44:45], s[0:1], {D_WS}')
    lane_decomp(k)
    k('s_and_b32 s40, s2, 7')
    k('s_lshr_b32 s41, s2, 3')
    k('s_and_b32 s42, s40, 1')
    k('s_lshl_b32 s42, s42, 2')
    k('s_and_b32 s43, s41, 3')
    k('s_add_u32 s42, s42, s43')
    k('s_lshr_b32 s43, s40, 1')
    k('s_mul_i32 s43, s43, 7')
    k('s_lshr_b32 s46, s41, 2')
    k('s_add_u32 s43, s43, s46')
    k('s_lshl_b32 s46, s43, 8')
    k('s_lshl_b32 s33, s30, 12')
    V_WD, V_HD, V_WA = 8, 12, 16
    k('s_mul_i32 s47, s30, %d' % (16 * 7168))
    k('s_movk_i32 s48, 7168')
    k('v_mul_lo_u32 v4, v3, s48')
    k('v_add_u32 v4, s47, v4')
    for j in range(4):
        k(f'v_add_u32 v5, {4 * (j >> 1)}, v3')
        k('v_lshlrev_b32 v5, 1, v5')
        k('v_xor_b32 v5, v5, v2')
        k('v_lshl_add_u32 v5, v5, 4, v4')
        k(f'v_add_u32 v{V_WD + j}, {4 * j * 7168 - 1024 * j}, v5')
    k(f'v_lshlrev_b32 v{V_HD}, 4, v1')
    k('s_waitcnt lgkmcnt(0)')
    srd(k, 8, 4, 's46', 1024 * 7168 - 27 * 256)
    srd(k, 12, 6, 's46', 1024 * 7168 - 27 * 256)
    srd(k, 16, 44, WS_H2, 2048 * 2048)
    srd(k, 20, 44, WS_ACT, 2048 * 7168)
    k('s_lshl_b32 s47, s42, 2')
    k('s_add_u32 s47, s47, s30')
    k('s_lshl_b32 s47, s47, 12')
    k('s_mov_b32 s31, 0')
    k('s_mov_b32 s32, s47')

    def dma_ops(slot):
        ops = []
        for mat in range(2):
            ops.append(f's_add_u32 m0, s33, {mat * 65536 + slot * 16384}')
            for j in range(4):
                ops.append(f'buffer_load_dwordx4 v{V_WD + j}, s[{8 + 4 * mat}:{11 + 4 * mat}], s31 offen offset:{j * 1024} lds')
        return ops

    def afrag(slot, mt, s):
        return r4('a', 128 + slot * 32 + (mt * 2 + s) * 4)

    def act_ops(slot):
        ops = []
        for s in range(2):
            for mt in range(4):
                ops.append(f'buffer_load_dwordx4 {afrag(slot, mt, s)}, v{V_HD}, s[16:19], s32 offen offset:{mt * 1024}')
            ops.append('s_add_u32 s32, s32, 131072')
        return ops
    adv = [f's_add_u32 s31, s31, {64 * 7168}']

    def acc(nt, mt):
        return r4('v', 128 + (nt * 4 + mt) * 4) if nt < 8 else r4('a', ((nt - 8) * 4 + mt) * 4)

    def wfrag(buf, s):
        return r4('v', 64 + buf * 8 + s * 4)

    def wread(nt, s, h, slot, buf):
        b = 64 + buf * 8 + s * 4 + h * 2
        return f'ds_read_b64_tr_b16 v[{b}:{b + 1}], v{V_WA + nt} offset:{slot * 16384 + s * 8192 + h * 1024}'

    gen = mainloop(k, 16, 4, 3, 16, 4, 2, 4, 3, acc, wfrag, afrag, wread, dma_ops, act_ops, adv, T)
    next(gen)
    k('v_lshrrev_b32 v4, 2, v2')
    k('v_and_b32 v5, 1, v3')
    k('v_lshl_or_b32 v5, v5, 2, v4')
    k('v_lshlrev_b32 v5, 1, v5')
    k('v_bfe_u32 v6, v2, 1, 1')
    k('v_xor_b32 v5, v5, v6')
    k('v_lshl_add_u32 v4, v3, 3, v4')
    k('v_lshlrev_b32 v4, 8, v4')
    k('v_and_b32 v6, 1, v2')
    k('v_lshl_add_u32 v4, v6, 3, v4')
    for nt in range(8):
        k(f'v_xor_b32 v6, {2 * nt}, v5')
        k(f'v_lshl_add_u32 v{V_WA + nt}, v6, 4, v4')
        k(f'v_add_u32 v{V_WA + 8 + nt}, 0x10000, v{V_WA + nt}')
    for i in range(128):
        k(f'v_mov_b32 v{128 + i}, 0')
        k(f'v_accvgpr_write_b32 a{i}, 0')
    for _ in gen:
        pass
    c0 = -2.0 * math.sqrt(2.0 / math.pi) * math.log2(math.e)
    c1 = c0 * 0.044715
    k(f'v_mov_b32 v8, {f32(c0)}')
    k(f'v_mov_b32 v9, {f32(c0)}')
    k(f'v_mov_b32 v10, {f32(c1)}')
    k(f'v_mov_b32 v11, {f32(c1)}')
    k('v_mov_b32 v14, 1.0')
    k('v_mov_b32 v15, 1.0')
    k('s_lshl_b32 s48, s43, 19')
    k('s_add_u32 s48, s48, s47')
    for j in range(4):
        k(f's_add_u32 s49, s48, {j * 131072}')
        for mt in range(4):
            tb = 32 + ((j * 4 + mt) & 1) * 24
            G = [128 + ((2 * j + h) * 4 + mt) * 4 + r for h in range(2) for r in range(4)]
            U = [((2 * j + h) * 4 + mt) * 4 + r for h in range(2) for r in range(4)]
            P = lambda b: f'v[{b}:{b + 1}]'
            for e in range(8):
                k(f'v_accvgpr_read_b32 v{tb + e}, a{U[e]}')
            for e in range(0, 8, 2):
                k(f'v_pk_mul_f32 {P(tb + 8 + e)}, {P(G[e])}, {P(G[e])}')
            for e in range(0, 8, 2):
                k(f'v_pk_fma_f32 {P(tb + 8 + e)}, {P(tb + 8 + e)}, v[10:11], v[8:9]')
            for e in range(0, 8, 2):
                k(f'v_pk_mul_f32 {P(tb + 8 + e)}, {P(tb + 8 + e)}, {P(G[e])}')
            for e in range(8):
                k(f'v_exp_f32 v{tb + 8 + e}, v{tb + 8 + e}')
            for e in range(0, 8, 2):
                k(f'v_pk_mul_f32 {P(tb + e)}, {P(tb + e)}, {P(G[e])}')
            for e in range(0, 8, 2):
                k(f'v_pk_add_f32 {P(tb + 8 + e)}, {P(tb + 8 + e)}, v[14:15]')
            for e in range(8):
                k(f'v_rcp_f32 v{tb + 8 + e}, v{tb + 8 + e}')
            for e in range(0, 8, 2):
                k(f'v_pk_mul_f32 {P(tb + e)}, {P(tb + e)}, {P(tb + 8 + e)}')
            for e in range(4):
                k(f'v_cvt_pk_bf16_f32 v{tb + 16 + e}, v{tb + 2 * e}, v{tb + 2 * e + 1}')
            k(f'buffer_store_dwordx4 {r4("v", tb + 16)}, v{V_HD}, s[20:23], s49 offen offset:{mt * 1024}')
    if dbg:
        k('s_waitcnt vmcnt(0)')
    T.stamp()
    T.dump(44, 30, 2)
    k.label('end')
    k('s_endpgm')
    return k


def gen_small(name, K, w_arg, act_off, res_arg, res_off, out_arg, out_off, gate_seg, R, D, slot_dbg, dbg=False):
    NST = K // 128
    EPI = R * 16384
    k = Kernel(name, vgprs=160, agprs=256, sgprs=96, grid=256, block=256, lds=R * 16384 + 4 * 8704 if R * 16384 + 4 * 8704 <= 163840 else R * 16384)
    alias_epi = R * 16384 + 4 * 8704 > 163840
    if alias_epi:
        EPI = 0
    T = Stamper(k, dbg)
    k('s_cmp_ge_u32 s2, 256')
    k(f's_cbranch_scc1 {k.L("end")}')
    T.start()
    k(f's_load_dwordx2 s[4:5], s[0:1], {w_arg}')
    k(f's_load_dwordx2 s[6:7], s[0:1], {res_arg}')
    k(f's_load_dwordx2 s[28:29], s[0:1], {out_arg}')
    k(f's_load_dwordx2 s[44:45], s[0:1], {D_WS}')
    lane_decomp(k)
    k('s_and_b32 s40, s2, 7')
    k('s_lshr_b32 s41, s2, 3')
    k('s_lshr_b32 s42, s40, 1')
    k('s_lshl_b32 s42, s42, 2')
    k('s_and_b32 s43, s41, 3')
    k('s_add_u32 s42, s42, s43')
    k('s_and_b32 s43, s40, 1')
    k('s_lshl_b32 s43, s43, 3')
    k('s_lshr_b32 s46, s41, 2')
    k('s_add_u32 s43, s43, s46')
    k('s_lshl_b32 s46, s43, 7')
    k('s_lshl_b32 s33, s30, 12')
    V_WD, V_HD, V_WA = 8, 12, 16
    k('v_lshrrev_b32 v4, 3, v1')
    k('v_lshlrev_b32 v4, 11, v4')
    k('s_lshl_b32 s47, s30, 16')
    k('v_add_u32 v4, s47, v4')
    k('v_and_b32 v5, 7, v1')
    k('v_lshlrev_b32 v6, 1, v3')
    k('v_xor_b32 v5, v5, v6')
    k('v_lshl_add_u32 v4, v5, 4, v4')
    for j in range(4):
        k(f'v_add_u32 v{V_WD + j}, {j * (16384 - 1024)}, v4')
    k(f'v_lshlrev_b32 v{V_HD}, 4, v1')
    k('s_waitcnt lgkmcnt(0)')
    srd(k, 8, 4, 's46', K * 2048 - 15 * 128)
    srd(k, 16, 44, act_off, 2048 * K * 2)
    srd(k, 12, 6, res_off, 2048 * 2048)
    srd(k, 20, 28, out_off, 2048 * 2048)
    srd(k, 24, 44, WS_MOD, 6144 * 4)
    k('s_lshl_b32 s47, s42, 2')
    k('s_add_u32 s47, s47, s30')
    k('s_lshl_b32 s32, s47, 11')
    k('s_mov_b32 s31, 0')

    def dma_ops(slot):
        ops = [f's_add_u32 m0, s33, {slot * 16384}']
        for j in range(4):
            ops.append(f'buffer_load_dwordx4 v{V_WD + j}, s[8:11], s31 offen offset:{j * 1024} lds')
        return ops

    def afrag(slot, mt, s):
        return r4('a', slot * 32 + (mt * 4 + s) * 4)

    def act_ops(slot):
        ops = []
        for s in range(4):
            for mt in range(2):
                ops.append(f'buffer_load_dwordx4 {afrag(slot, mt, s)}, v{V_HD}, s[16:19], s32 offen offset:{mt * 1024}')
            ops.append('s_add_u32 s32, s32, 131072')
        return ops
    adv = [f's_add_u32 s31, s31, {128 * 2048}']

    def acc(nt, mt):
        return r4('v', 128 + (nt * 2 + mt) * 4)

    def wfrag(buf, s):
        return r4('v', 64 + buf * 16 + s * 4)

    def wread(nt, s, h, slot, buf):
        b = 64 + buf * 16 + s * 4 + h * 2
        return f'ds_read_b64_tr_b16 v[{b}:{b + 1}], v{V_WA + nt + 4 * (slot // 4)} offset:{(slot % 4) * 16384 + s * 4096 + h * 2048}'

    gen = mainloop(k, NST, R, D, 4, 2, 4, 4, 2, acc, wfrag, afrag, wread, dma_ops, act_ops, adv, T, need_lgkm=(R < D + 2))
    next(gen)
    k('v_lshrrev_b32 v4, 2, v2')
    k('v_lshl_add_u32 v4, v3, 2, v4')
    k('v_and_b32 v5, 6, v4')
    k('v_bfe_u32 v6, v2, 1, 1')
    k('v_xor_b32 v5, v5, v6')
    k('v_lshlrev_b32 v4, 7, v4')
    k('v_and_b32 v6, 1, v2')
    k('v_lshl_add_u32 v4, v6, 3, v4')
    for nt in range(4):
        k(f'v_xor_b32 v6, {2 * nt}, v5')
        k(f'v_lshl_add_u32 v{V_WA + nt}, v6, 4, v4')
        k(f'v_add_u32 v{V_WA + 4 + nt}, 0x10000, v{V_WA + nt}')
    for i in range(32):
        k(f'v_mov_b32 v{128 + i}, 0')
    k(f's_mul_i32 s48, s30, 8704')
    k(f's_add_u32 s48, s48, {EPI}')
    k('s_movk_i32 s49, 272')
    k('v_mul_lo_u32 v24, v2, s49')
    k('v_lshl_add_u32 v24, v3, 4, v24')
    k('v_add_u32 v24, s48, v24')
    k('v_lshrrev_b32 v4, 3, v1')
    k('v_and_b32 v5, 7, v1')
    k('v_mul_lo_u32 v25, v4, s49')
    k('v_lshl_add_u32 v25, v5, 5, v25')
    k('v_add_u32 v25, s48, v25')
    k('v_lshlrev_b32 v26, 11, v4')
    k('v_lshl_add_u32 v26, v5, 4, v26')
    k('v_lshlrev_b32 v27, 5, v5')
    k('s_lshl_b32 s50, s47, 16')
    k('s_add_u32 s50, s50, s46')
    k('s_lshl_b32 s51, s43, 8')
    k(f's_add_u32 s51, s51, {gate_seg * 4096}')
    for _ in gen:
        pass
    for j in range(4):
        k(f's_add_u32 s52, s50, {j * 16384}')
        k(f'buffer_load_dwordx4 {r4("v", 32 + 4 * j)}, v26, s[12:15], s52 offen')
    k('buffer_load_dwordx4 v[48:51], v27, s[24:27], s51 offen')
    k('buffer_load_dwordx4 v[52:55], v27, s[24:27], s51 offen offset:16')
    if alias_epi:
        k('s_waitcnt vmcnt(6) lgkmcnt(0)')
        k('s_barrier')
    for nt in range(4):
        for mt in range(2):
            k(f'ds_write_b128 v24, {acc(nt, mt)} offset:{mt * 16 * 272 + nt * 64}')
    k('s_waitcnt lgkmcnt(0)')
    for j in range(4):
        k(f'ds_read_b128 {r4("v", 64 + 8 * j)}, v25 offset:{j * 8 * 272}')
        k(f'ds_read_b128 {r4("v", 68 + 8 * j)}, v25 offset:{j * 8 * 272 + 16}')
    for j in range(4):
        for d in range(4):
            x = 32 + 4 * j + d
            a = 64 + 8 * j + 2 * d
            k(f'v_lshlrev_b32 v4, 16, v{x}')
            k(f'v_and_b32 v5, 0xffff0000, v{x}')
            k(f'v_fma_f32 v4, v{a}, v{48 + 2 * d}, v4')
            k(f'v_fma_f32 v5, v{a + 1}, v{49 + 2 * d}, v5')
            k(f'v_cvt_pk_bf16_f32 v{x}, v4, v5')
        k(f's_add_u32 s52, s50, {j * 16384}')
        k(f'buffer_store_dwordx4 {r4("v", 32 + 4 * j)}, v26, s[20:23], s52 offen')
    if dbg:
        k('s_waitcnt vmcnt(0)')
    T.stamp()
    T.dump(44, 30, slot_dbg)
    k.label('end')
    k('s_endpgm')
    return k
```

```python
from common import *
import math

def gen_mod():
    k = Kernel('mod_kernel', vgprs=64, sgprs=40, grid=192, block=512, lds=8 * 32 * 4)
    k('s_cmp_ge_u32 s2, 192')
    k(f's_cbranch_scc1 {k.L("end")}')
    k(f's_load_dwordx4 s[4:7], s[0:1], {C_IN}')
    k(f's_load_dwordx2 s[8:9], s[0:1], {D_WS}')
    k('s_lshr_b32 s20, s2, 4')
    k('s_lshl_b32 s20, s20, 3')
    k('s_and_b32 s21, s2, 7')
    k('s_add_u32 s20, s20, s21')
    k('s_lshl_b32 s20, s20, 1')
    k('s_bfe_u32 s21, s2, 0x10003')
    k('s_add_u32 s20, s20, s21')
    k('s_lshl_b32 s22, s20, 6')
    k('v_lshrrev_b32 v1, 2, v0')
    k('v_and_b32 v2, 3, v0')
    k('s_movk_i32 s23, 12288')
    k('v_mul_lo_u32 v3, v1, s23')
    k('v_lshl_add_u32 v3, v2, 4, v3')
    k('v_lshlrev_b32 v4, 1, v1')
    k('s_waitcnt lgkmcnt(0)')
    srd(k, 12, 4, 0, 2048)
    srd(k, 16, 6, 0, 1024 * 12288)
    srd(k, 24, 8, WS_MOD, 6144 * 4)
    for i in range(8):
        k(f'buffer_load_ushort v{8 + i}, v4, s[12:15], 0 offen offset:{i * 256}')
    for i in range(8):
        k(f's_add_u32 s28, s22, {i * 128 * 12288}')
        k(f'buffer_load_dwordx4 v[{16 + 4 * i}:{19 + 4 * i}], v3, s[16:19], s28 offen')
    k(f's_mov_b32 s29, {f32(-math.log2(math.e))}')
    for i in range(8):
        k(f'v_lshlrev_b32 v{8 + i}, 16, v{8 + i}')
    for i in range(8):
        k(f'v_mul_f32 v{48 + i}, s29, v{8 + i}')
    for i in range(8):
        k(f'v_exp_f32 v{48 + i}, v{48 + i}')
    for i in range(8):
        k(f'v_add_f32 v{48 + i}, 1.0, v{48 + i}')
    for i in range(8):
        k(f'v_rcp_f32 v{48 + i}, v{48 + i}')
    for i in range(8):
        k(f'v_mul_f32 v{8 + i}, v{8 + i}, v{48 + i}')
    for i in range(8):
        k(f'v_cvt_pk_bf16_f32 v{8 + i}, v{8 + i}, v{8 + i}')
    for i in range(8):
        k(f'v_and_b32 v{8 + i}, 0xffff0000, v{8 + i}')
    for j in range(8):
        k(f'v_mov_b32 v{48 + j}, 0')
    for i in range(8):
        for d in range(4):
            r = 16 + 4 * i + d
            k(f'v_lshlrev_b32 v5, 16, v{r}')
            k(f'v_and_b32 v6, 0xffff0000, v{r}')
            k(f'v_fmac_f32 v{48 + 2 * d}, v5, v{8 + i}')
            k(f'v_fmac_f32 v{49 + 2 * d}, v6, v{8 + i}')
    regs = list(range(48, 56)); tmps = list(range(56, 64))
    for ror in (4, 8):
        for r in regs:
            k(f'v_add_f32_dpp v{r}, v{r}, v{r} row_ror:{ror} row_mask:0xf bank_mask:0xf')
    for sw in ('v_permlane16_swap_b32', 'v_permlane32_swap_b32'):
        for r, t in zip(regs, tmps):
            k(f'v_mov_b32 v{t}, v{r}')
        for r, t in zip(regs, tmps):
            k(f'{sw} v{t}, v{r}')
        for r, t in zip(regs, tmps):
            k(f'v_add_f32 v{r}, v{r}, v{t}')
    k('v_lshrrev_b32 v5, 6, v0')
    k('v_lshlrev_b32 v5, 7, v5')
    k('v_lshl_add_u32 v5, v2, 5, v5')
    k('ds_write_b128 v5, v[48:51]')
    k('ds_write_b128 v5, v[52:55] offset:16')
    k('s_waitcnt lgkmcnt(0)')
    k('s_barrier')
    k('v_and_b32 v6, 31, v0')
    k('v_lshlrev_b32 v6, 2, v6')
    for w in range(8):
        k(f'ds_read_b32 v{16 + w}, v6 offset:{w * 128}')
    k('v_add_f32 v16, v16, v17')
    k('v_add_f32 v18, v18, v19')
    k('v_add_f32 v20, v20, v21')
    k('v_add_f32 v22, v22, v23')
    k('v_add_f32 v16, v16, v18')
    k('v_add_f32 v20, v20, v22')
    k('v_add_f32 v16, v16, v20')
    k('v_cvt_pk_bf16_f32 v16, v16, v16')
    k('v_and_b32 v16, 0xffff0000, v16')
    k('s_lshr_b32 s21, s20, 5')
    k('s_cmp_eq_u32 s21, 1')
    k('s_cselect_b32 s30, 1.0, 0')
    k('s_cmp_eq_u32 s21, 4')
    k('s_cselect_b32 s30, 1.0, s30')
    k('v_add_f32 v16, s30, v16')
    k('v_cvt_pk_bf16_f32 v16, v16, v16')
    k('v_and_b32 v16, 0xffff0000, v16')
    k('s_lshl_b32 s22, s20, 7')
    k('v_cmp_gt_u32 vcc, 32, v0')
    k('s_and_saveexec_b64 s[32:33], vcc')
    k(f's_cbranch_execz {k.L("end")}')
    k('buffer_store_dword v16, v6, s[24:27], s22 offen')
    k.label('end')
    k('s_endpgm')
    return k


def gen_ln(name, src_arg, src_off, dst_off, seg_shift, seg_scale, post=None):
    k = Kernel(name, vgprs=96, sgprs=40, grid=256, block=256, lds=0)
    k('s_cmp_ge_u32 s2, 256')
    k(f's_cbranch_scc1 {k.L("end")}')
    k(f's_load_dwordx2 s[4:5], s[0:1], {src_arg}')
    k(f's_load_dwordx2 s[8:9], s[0:1], {D_WS}')
    k('v_lshrrev_b32 v1, 6, v0')
    k('v_and_b32 v2, 63, v0')
    k('s_nop 0')
    k('v_readfirstlane_b32 s20, v1')
    k('v_lshlrev_b32 v3, 4, v2')
    k('v_lshlrev_b32 v4, 5, v2')
    k('v_lshrrev_b32 v5, 2, v2')
    k('v_lshlrev_b32 v5, 17, v5')
    k('v_and_b32 v6, 3, v2')
    k('v_lshl_add_u32 v5, v6, 8, v5')
    k('s_lshl_b32 s21, s2, 3')
    k('s_lshl_b32 s22, s20, 1')
    k('s_add_u32 s21, s21, s22')
    k('s_lshl_b32 s23, s21, 11')
    k('s_lshr_b32 s24, s21, 4')
    k('s_lshl_b32 s24, s24, 10')
    k('s_and_b32 s25, s21, 15')
    k('s_lshl_b32 s25, s25, 4')
    k('s_add_u32 s24, s24, s25')
    k('s_waitcnt lgkmcnt(0)')
    srd(k, 12, 4, src_off, 2048 * 2048)
    srd(k, 16, 8, WS_MOD, 6144 * 4)
    srd(k, 28, 8, dst_off, 2048 * 2048)
    for r in range(2):
        for h in range(2):
            b = 8 + 8 * r + 4 * h
            k(f'buffer_load_dwordx4 v[{b}:{b + 3}], v3, s[12:15], s23 offen offset:{r * 2048 + h * 1024}')
    k(f's_movk_i32 s26, {seg_scale * 4096}')
    k(f's_movk_i32 s27, {seg_shift * 4096}')
    for h in range(2):
        for j in range(2):
            b = 24 + 8 * h + 4 * j
            k(f'buffer_load_dwordx4 v[{b}:{b + 3}], v4, s[16:19], s26 offen offset:{h * 2048 + j * 16}')
    for h in range(2):
        for j in range(2):
            b = 40 + 8 * h + 4 * j
            k(f'buffer_load_dwordx4 v[{b}:{b + 3}], v4, s[16:19], s27 offen offset:{h * 2048 + j * 16}')
    for r in range(2):
        for d in range(8):
            s = 8 + 8 * r + d
            o = 56 + 16 * r + 2 * d
            k(f'v_lshlrev_b32 v{o}, 16, v{s}')
            k(f'v_and_b32 v{o + 1}, 0xffff0000, v{s}')
    for r in range(2):
        o = 56 + 16 * r
        k(f'v_add_f32 v{8 + r}, v{o}, v{o + 1}')
        k(f'v_add_f32 v{10 + r}, v{o + 2}, v{o + 3}')
    for e in range(4, 16, 2):
        for r in range(2):
            o = 56 + 16 * r
            k(f'v_add_f32 v{8 + r}, v{8 + r}, v{o + e}')
            k(f'v_add_f32 v{10 + r}, v{10 + r}, v{o + e + 1}')
    for r in range(2):
        k(f'v_add_f32 v{8 + r}, v{8 + r}, v{10 + r}')
    wave_allreduce_add(k, [8, 9], [10, 11])
    k(f's_mov_b32 s34, {f32(-1.0 / 1024)}')
    for r in range(2):
        k(f'v_mul_f32 v{8 + r}, s34, v{8 + r}')
    for r in range(2):
        for e in range(16):
            o = 56 + 16 * r + e
            k(f'v_add_f32 v{o}, v{o}, v{8 + r}')
    for r in range(2):
        o = 56 + 16 * r
        k(f'v_mul_f32 v{8 + r}, v{o}, v{o}')
        k(f'v_mul_f32 v{10 + r}, v{o + 1}, v{o + 1}')
    for e in range(2, 16, 2):
        for r in range(2):
            o = 56 + 16 * r
            k(f'v_fmac_f32 v{8 + r}, v{o + e}, v{o + e}')
            k(f'v_fmac_f32 v{10 + r}, v{o + e + 1}, v{o + e + 1}')
    for r in range(2):
        k(f'v_add_f32 v{8 + r}, v{8 + r}, v{10 + r}')
    wave_allreduce_add(k, [8, 9], [10, 11])
    k(f's_mov_b32 s34, {f32(1.0 / 1024)}')
    k(f'v_mov_b32 v12, {f32(1e-5)}')
    for r in range(2):
        k(f'v_fma_f32 v{8 + r}, v{8 + r}, s34, v12')
    for r in range(2):
        k(f'v_rsq_f32 v{8 + r}, v{8 + r}')
    if post is not None:
        k(f's_mov_b32 s34, {f32(post)}')
        for r in range(2):
            k(f'v_mul_f32 v{8 + r}, s34, v{8 + r}')
        for e in range(16):
            k(f'v_mul_f32 v{40 + e}, s34, v{40 + e}')
    for r in range(2):
        for e in range(16):
            o = 56 + 16 * r + e
            k(f'v_mul_f32 v{o}, v{o}, v{8 + r}')
        for e in range(16):
            o = 56 + 16 * r + e
            k(f'v_fma_f32 v{o}, v{o}, v{24 + e}, v{40 + e}')
        for d in range(8):
            o = 56 + 16 * r + 2 * d
            k(f'v_cvt_pk_bf16_f32 v{56 + 16 * r + d}, v{o}, v{o + 1}')
        k(f's_add_u32 s35, s24, {16 * r}')
        k(f's_add_u32 s36, s24, {16 * r + 16 * 131072}')
        o = 56 + 16 * r
        k(f'buffer_store_dwordx4 v[{o}:{o + 3}], v5, s[28:31], s35 offen')
        k(f'buffer_store_dwordx4 v[{o + 4}:{o + 7}], v5, s[28:31], s36 offen')
    k.label('end')
    k('s_endpgm')
    return k
```

```python
import sys, math
from common import *
import k_small, k_attn, k_gemm
dbg = len(sys.argv) > 1 and sys.argv[1] == 'dbg'
out = 'cur.s' if dbg else 'adaLN_cond__mha_block_cached__geglu_ffn__prompt.s'
ks = [k_small.gen_mod(),
      k_small.gen_ln('ln1_kernel', A_X, 0, WS_H1, 0, 1, post=math.log2(math.e) / math.sqrt(128)),
      k_attn.gen_attn(dbg=dbg),
      k_gemm.gen_small('oproj_kernel', 4096, A_WO, WS_O, A_X, 0, D_WS, WS_X1, 2, 8, 5, 1, dbg=dbg),
      k_small.gen_ln('ln2_kernel', D_WS, WS_X1, WS_H2, 3, 4),
      k_gemm.gen_gateup(dbg=dbg),
      k_gemm.gen_small('down_kernel', 3584, B_WD, WS_ACT, D_WS, WS_X1, D_OUT, 0, 5, 7, 5, 3, dbg=dbg),
      ]
write_file(out, ks)
```

```python
import sys
sys.path.insert(0, 'dev')
from asmlib import *

A_X, A_K, A_V, A_WQ, A_WO, B_X, B_WG, B_WU, B_WD, C_IN, W_MOD, D_OUT, D_DBG, D_WS = [8 * i for i in range(14)]

WS_MOD = 0
WS_H1 = 1 << 20
WS_O = 8 << 20
WS_X1 = 24 << 20
WS_H2 = 28 << 20
WS_ACT = 32 << 20

def srd(k, d, base_pair, off, nbytes):
    if off == 0:
        k(f's_mov_b32 s{d}, s{base_pair}')
        k(f's_mov_b32 s{d+1}, s{base_pair+1}')
    else:
        k(f's_add_u32 s{d}, s{base_pair}, {off}')
        k(f's_addc_u32 s{d+1}, s{base_pair+1}, 0')
    k(f's_mov_b32 s{d+2}, {nbytes}')
    k(f's_mov_b32 s{d+3}, 0x00020000')

def wave_allreduce_add(k, regs, tmps):
    for ror in (1, 2, 4, 8):
        for r in regs:
            k(f'v_add_f32_dpp v{r}, v{r}, v{r} row_ror:{ror} row_mask:0xf bank_mask:0xf')
    for sw in ('v_permlane16_swap_b32', 'v_permlane32_swap_b32'):
        for r, t in zip(regs, tmps):
            k(f'v_mov_b32 v{t}, v{r}')
        for r, t in zip(regs, tmps):
            k(f'{sw} v{t}, v{r}')
        for r, t in zip(regs, tmps):
            k(f'v_add_f32 v{r}, v{r}, v{t}')

def f32(x):
    import struct
    return '0x%08x' % struct.unpack('<I', struct.pack('<f', x))[0]


WS_STAMP = 64 << 20
class Stamper:
    def __init__(self, k, on, base=62, tmp=60):
        self.k, self.on, self.base, self.n, self.tmp = k, on, base, 0, tmp
    def stamp(self):
        if not self.on: return
        k = self.k
        k(f's_memtime s[{self.tmp}:{self.tmp+1}]')
        k('s_waitcnt lgkmcnt(0)')
        k(f's_mov_b32 s{self.base + self.n}, s{self.tmp}')
        self.n += 1
    def dump(self, ws_pair, wave_sgpr, slot, srd_base=92):
        if not self.on: return
        k = self.k
        k(f's_memrealtime s[{self.tmp}:{self.tmp+1}]')
        k('s_waitcnt lgkmcnt(0)')
        k(f's_mov_b32 s{self.base + self.n}, s{self.tmp}')
        self.n += 1
        srd(k, srd_base, ws_pair, WS_STAMP + slot * (1 << 20), 1 << 20)
        k(f's_lshl_b32 s{self.tmp}, s2, 3')
        k(f's_add_u32 s{self.tmp}, s{self.tmp}, s{wave_sgpr}')
        k(f's_lshl_b32 s{self.tmp}, s{self.tmp}, 7')
        k('v_mov_b32 v2, 0')
        for i in range(self.n):
            k(f'v_mov_b32 v3, s{self.base + i}')
            k(f'buffer_store_dword v3, v2, s[{srd_base}:{srd_base+3}], s{self.tmp} offen offset:{4*i}')
    def start(self):
        if not self.on: return
        k = self.k
        k(f's_memrealtime s[{self.tmp}:{self.tmp+1}]')
        k('s_waitcnt lgkmcnt(0)')
        k(f's_mov_b32 s{self.base + self.n}, s{self.tmp}')
        self.n += 1
        self.stamp()


def code_prefetch(k, sbase, vtmp, vdst, tid_reg, nthreads, nbytes_max):
    k(f's_getpc_b64 s[{sbase}:{sbase+1}]')
    lab = k.newlabel('pc')
    k(k.L(lab) + ':')
    k(f's_mov_b32 s{sbase+2}, {k.L("codeend")}-{k.L(lab)}')
    k(f's_mov_b32 s{sbase+3}, 0x00020000')
    k(f'v_lshlrev_b32 v{vtmp}, 7, v{tid_reg}')
    per = nthreads * 128
    n = (nbytes_max + per - 1) // per
    for i in range(n):
        if i:
            k(f'v_add_u32 v{vtmp}, {per}, v{vtmp}')
        k(f'buffer_load_dword v{vdst}, v{vtmp}, s[{sbase}:{sbase+3}], 0 offen')
    return n
```

```python
from common import *
import math

V_LANE = 1
V_T0 = 2
V_KA = 8
V_VA = 12
V_KD = 20
V_VD = 24
V_WD = 26
V_HD = 30
V_PF = 31
V_PFD = 32
V_MD = 33
V_LT = 34
V_L = 38
V_KG = 42
V_CK = 43
V_TM = 44
V_CI = 48
V_S = (64, 128)
V_Q = 192
A_O = 0
A_KF = 128
A_VF = 160
A_X2 = 192

S_K, S_V, S_WQ, S_H, S_OO = 8, 12, 16, 20, 24
S_W = 30
S_KOFF = 31
S_VOFF = 32
S_M0K = 33
S_CNT = 34
S_TOFF = 35
S_THR = 36
S_RET = 38
S_T = 40
S_PF = 56
S_PT = 96 - 8 - 4
S_WM = 4
LDS_M = 131072
S_PFO = 54
S_PFN = 55

LDS_K = 0
LDS_V = 65536
LDS_W = 98304
BIAS = 48.0

PI = [0, 2, 1, 3]


def Sreg(st, kt, qt):
    return V_S[st] + ((kt >> 1) * 4 + qt) * 8 + (kt & 1) * 4


def Preg(st, qt, ks):
    return V_S[st] + (ks * 4 + qt) * 8


def Qreg(qt, s):
    return V_Q + (qt * 4 + s) * 4


def Oreg(dt, qt):
    return A_O + (dt * 4 + qt) * 4


def r4(f, b):
    return f'{f}[{b}:{b + 3}]'


def mf(d, a, b, c):
    return f'v_mfma_f32_16x16x32_bf16 {d}, {a}, {b}, {c}'


def kread(kt, s, slot):
    b = A_KF + (kt & 1) * 16 + s * 4
    return f'ds_read_b128 {r4("a", b)}, v{V_KA + s} offset:{slot * 16384 + kt * 4096}'


def vread(dt, ks, half, slot):
    b = A_VF + (dt & 3) * 8 + ks * 4 + half * 2
    return f'ds_read_b64_tr_b16 a[{b}:{b + 1}], v{V_VA + dt} offset:{slot * 16384 + ks * 8192 + half * 4096}'


def softmax_half_ops(st, ks, first):
    ex, ad, cv = [], [], []
    for qt in range(4):
        b = Preg(st, qt, ks)
        for e in range(8):
            ex.append(f'v_exp_f32 v{b + e}, v{b + e}')
            if first and e == 0:
                ad.append(f'v_add_f32 v{V_L + qt}, v{V_L + qt}, v{V_LT + qt}')
            elif first and e == 1:
                ad.append(f'v_add_f32 v{V_LT + qt}, v{b}, v{b + 1}')
            else:
                ad.append(f'v_add_f32 v{V_LT + qt}, v{V_LT + qt}, v{b + e}')
        for j in range(4):
            cv.append(f'v_cvt_pk_bf16_f32 v{b + j}, v{b + 2 * j}, v{b + 2 * j + 1}')
    return ex, ad, cv


def _cls(t):
    if t.endswith(':'):
        return 0
    if t.startswith('s_'):
        return 0
    if t.startswith(('ds_', 'buffer_', 'global_')):
        return 1
    return 2


def emit_phase(k, mfmas, gaps):
    for i, m in enumerate(mfmas):
        if m:
            k(m)
        ops = gaps.get(i, [])
        for f in sorted([o for o in ops if not isinstance(o, tuple)], key=_cls):
            k(f)
        for f in ops:
            if isinstance(f, tuple):
                k(f[1])


def place_softmax(gaps, ex, ad, cv):
    for i in range(32):
        gaps.setdefault(2 * i, []).append(ex[i])
        gaps.setdefault(2 * i + 1, []).append(ad[i])
    for j in range(16):
        gaps.setdefault(4 * j + 3, []).append(cv[j])


SM0 = 60


def softmax_stream(st):
    e0, a0, c0 = softmax_half_ops(st, 0, True)
    e1, a1, c1 = softmax_half_ops(st, 1, False)
    ex, ad, cv = e0 + e1, a0 + a1, c0 + c1
    out = []
    E = [SM0 + 2 * i for i in range(62)] + [SM0 + 123, SM0 + 124]
    A = [e + 1 for e in E]
    for i in range(64):
        out.append((E[i], 0, ex[i]))
        out.append((A[i], 1, ad[i]))
    for j in range(32):
        out.append((A[2 * j + 1], 2, cv[j]))
    out.sort(key=lambda x: (x[0], (1, 0, 2)[x[1]]))
    return out


def gen_attn(dbg=False, mallpf=True, bias=None, stflag='sc1', qp0=16, qpn=16, wqpf=True, kvpf=0, cpf=True):
    global BIAS
    if bias is not None: BIAS = bias
    k = Kernel('attn_kernel', vgprs=256, agprs=256, sgprs=96, grid=256, block=256, lds=160 * 1024)
    k('s_cmp_ge_u32 s2, 256')
    k(f's_cbranch_scc1 {k.L("end")}')
    T = Stamper(k, dbg)
    T.start()
    k(f's_load_dwordx2 s[28:29], s[0:1], {A_WQ}')
    k(f's_load_dwordx2 s[44:45], s[0:1], {D_WS}')
    k(f's_load_dwordx4 s[4:7], s[0:1], {A_K}')
    k(f's_load_dwordx2 s[{S_PF}:{S_PF + 1}], s[0:1], {A_WO}')
    k(f's_load_dwordx4 s[{S_PT}:{S_PT + 3}], s[0:1], {B_WG}')
    k(f's_load_dwordx2 s[{S_PT + 4}:{S_PT + 5}], s[0:1], {B_WD}')
    k(f's_load_dwordx2 s[{S_PT + 6}:{S_PT + 7}], s[0:1], {W_MOD}')
    if cpf:
        code_prefetch(k, 80, 4, V_PFD, 0, 256, 49152)
    k(f'v_lshrrev_b32 v2, 6, v0')
    k(f'v_and_b32 v{V_LANE}, 63, v0')
    k(f'v_readfirstlane_b32 s{S_W}, v2')
    k('s_and_b32 s40, s2, 7')
    k('s_lshl_b32 s40, s40, 2')
    k('s_lshr_b32 s41, s2, 6')
    k('s_add_u32 s40, s40, s41')
    k('s_bfe_u32 s41, s2, 0x30003')
    k('s_lshl_b32 s42, s40, 19')
    k('s_lshl_b32 s43, s40, 8')
    k(f'v_and_b32 v2, 15, v{V_LANE}')
    k(f'v_lshrrev_b32 v3, 4, v{V_LANE}')
    k(f's_lshl_b32 s{S_M0K}, s{S_W}, 12')
    k(f's_lshl_b32 s46, s{S_W}, 17')
    k(f'v_lshlrev_b32 v4, 13, v3')
    k(f'v_add_u32 v4, s46, v4')
    for j in range(4):
        k(f'v_add_u32 v5, {4 * (j >> 1)}, v3')
        k(f'v_lshlrev_b32 v5, 1, v5')
        k(f'v_xor_b32 v5, v5, v2')
        k(f'v_lshl_add_u32 v5, v5, 4, v4')
        k(f'v_add_u32 v{V_WD + j}, {4 * j * 8192 - 1024 * j}, v5')
    k(f'v_lshlrev_b32 v{V_HD}, 4, v{V_LANE}')
    k('s_lshl_b32 s46, s41, 2')
    k(f's_add_u32 s46, s46, s{S_W}')
    k('s_lshl_b32 s47, s46, 12')
    k('s_lshl_b32 s48, s46, 12')
    k('s_lshl_b32 s49, s40, 19')
    k('s_add_u32 s48, s48, s49')
    k('s_waitcnt lgkmcnt(0)')
    srd(k, S_WQ, 28, 's43', 1024 * 8192 - 31 * 256)
    srd(k, S_H, 44, WS_H1, 2048 * 2048)

    def setup_rest():
        srd(k, S_K, 4, 's42', 524288)
        srd(k, S_V, 6, 's42', 524288)
        srd(k, S_OO, 44, WS_O, 2048 * 8192)
        k(f'v_lshlrev_b32 v4, 8, v3')
        k(f'v_add_u32 v4, s{S_M0K}, v4')
        for j in range(4):
            k(f'v_add_u32 v5, {4 * j}, v3')
            k(f'v_xor_b32 v5, v5, v2')
            k(f'v_lshl_add_u32 v{V_KD + j}, v5, 4, v4')
        for j in range(2):
            k(f'v_add_u32 v5, {4 * j}, v3')
            k(f'v_lshlrev_b32 v5, 1, v5')
            k(f'v_xor_b32 v5, v5, v2')
            k(f'v_lshl_add_u32 v{V_VD + j}, v5, 4, v4')
        k('v_and_b32 v4, 1, v3')
        k('v_lshlrev_b32 v4, 1, v4')
        k('v_lshrrev_b32 v5, 1, v3')
        k('v_or_b32 v4, v4, v5')
        k('v_lshlrev_b32 v6, 8, v2')
        k(f'v_lshl_add_u32 v{V_KG}, v4, 4, v6')
        for s in range(4):
            k(f'v_add_u32 v5, {4 * s}, v4')
            k('v_xor_b32 v5, v5, v2')
            k(f'v_lshl_add_u32 v{V_KA + s}, v5, 4, v6')
        k('v_lshrrev_b32 v4, 2, v2')
        k('v_and_b32 v5, 1, v3')
        k('v_lshl_or_b32 v5, v5, 2, v4')
        k('v_lshlrev_b32 v5, 1, v5')
        k('v_bfe_u32 v6, v2, 1, 1')
        k('v_xor_b32 v5, v5, v6')
        k('v_lshl_add_u32 v4, v3, 3, v4')
        k('v_lshlrev_b32 v4, 8, v4')
        k('v_and_b32 v6, 1, v2')
        k('v_lshl_add_u32 v4, v6, 3, v4')
        k(f'v_add_u32 v4, {LDS_W}, v4')
        for dt in range(8):
            k(f'v_xor_b32 v6, {2 * dt}, v5')
            k(f'v_lshl_add_u32 v{V_VA + dt}, v6, 4, v4')
        k(f'v_lshlrev_b32 v{V_CK}, 10, v3')
        k(f'v_add_u32 v{V_CK}, {LDS_W - LDS_V}, v{V_CK}')
        k(f's_mov_b32 s{S_THR}, {f32(2.0 ** BIAS)}')
        k(f's_mov_b32 s{S_PF + 2}, {4096 * 2048}')
        k(f's_mov_b32 s{S_PF + 3}, 0x00020000')
        k(f's_lshl_b32 s{S_PFO}, s2, 2')
        k(f's_add_u32 s{S_PFO}, s{S_PFO}, s{S_W}')
        k(f's_lshl_b32 s{S_PFO}, s{S_PFO}, 13')
        k(f'v_lshlrev_b32 v{V_PF}, 7, v{V_LANE}')
        k(f'v_cmp_gt_u32 vcc, 16, v{V_LANE}')
        k(f'v_mov_b32 v5, 0x40000000')
        k(f'v_cndmask_b32 v{V_PF}, v5, v{V_PF}, vcc')
        for qt in range(4):
            k(f'v_mov_b32 v{V_L + qt}, 0')
            k(f'v_mov_b32 v{V_LT + qt}, 0')
        srd(k, S_WM, S_PT + 6, 0, 1024 * 12288)
        k(f'v_lshrrev_b32 v4, 1, v{V_LANE}')
        k('s_movk_i32 s53, 12288')
        k('v_mul_lo_u32 v4, v4, s53')
        k(f'v_and_b32 v5, 1, v{V_LANE}')
        k(f'v_lshl_add_u32 v{V_MD}, v5, 4, v4')
        k('s_and_b32 s28, s2, 7')
        k('s_lshl_b32 s28, s28, 5')
        k('s_lshr_b32 s29, s2, 3')
        k('s_add_u32 s28, s28, s29')
        k(f's_mul_i32 s29, s{S_W}, {256 * 12288}')
        k('s_lshl_b32 s53, s28, 5')
        k('s_add_u32 s29, s29, s53')
        k('s_add_u32 s29, s29, 4096')
        k(f's_lshr_b32 s{S_PFN}, s{S_PFO}, 13')
        k(f's_mul_i32 s{S_PFN}, s{S_PFN}, 12288')
        k(f's_add_u32 s{S_PFN}, s{S_PFN}, 4096')

    vm = []

    def vwait(tag):
        last = max(i for i, t in enumerate(vm) if t == tag)
        return min(63, len(vm) - 1 - last)

    def wq_dma(st):
        ops = [f's_add_u32 m0, s{S_M0K}, {LDS_W + (st & 3) * 16384}', f's_mov_b32 s50, {st * 64 * 8192}']
        for j in range(4):
            ops.append((f'buffer_load_dwordx4 v{V_WD + j}, s[{S_WQ}:{S_WQ + 3}], s50 offen offset:{j * 1024} lds', ('W', st)))
        return ops

    def h_loads(st):
        ops = []
        for s in range(2):
            ops.append(f's_add_u32 s51, s47, {(st * 2 + s) * 131072}')
            for qt in range(4):
                b = (st & 3) * 32 + (qt * 2 + s) * 4
                ops.append((f'buffer_load_dwordx4 {r4("a", b)}, v{V_HD}, s[{S_H}:{S_H + 3}], s51 offen offset:{qt * 1024}', ('H', st)))
        return ops

    def kv_dma(which, t, soff):
        ops = []
        if which == 'K':
            ops.append(f's_add_u32 m0, s{S_M0K}, {LDS_K + (t & 3) * 16384}')
            for j in range(4):
                ops.append((f'buffer_load_dwordx4 v{V_KD + j}, s[{S_K}:{S_K + 3}], {soff} offen offset:{j * 1024} lds', ('K', t)))
        else:
            ops.append(f's_add_u32 m0, s{S_M0K}, {LDS_V + (t & 3) * 16384}')
            for j in range(4):
                ops.append((f'buffer_load_dwordx4 v{V_VD + (j & 1)}, s[{S_V}:{S_V + 3}], {soff} offen offset:{j * 1024} lds', ('V', t)))
        return ops

    def emit_ops(ops):
        for o in ops:
            if isinstance(o, tuple):
                k(o[0]); vm.append(o[1])
            else:
                k(o)

    def wread(dt, s, half, st):
        b = A_X2 + (dt & 3) * 8 + s * 4 + half * 2
        return f'ds_read_b64_tr_b16 a[{b}:{b + 1}], v{V_VA + dt} offset:{(st & 3) * 16384 + s * 8192 + half * 1024}'

    def qacc(dt, qt):
        return 64 + (qt * 8 + dt) * 4

    NST = 16
    queue = []
    for st in range(NST):
        queue.append((st - 3, wq_dma(st)))
        queue.append((st - 3, h_loads(st)))
    for w, t, e in [('K', 0, 0), ('V', 0, 0), ('K', 1, 0), ('V', 1, 0), ('K', 2, 0), ('V', 2, 13), ('K', 3, 0)]:
        queue.append((e, [f's_mov_b32 s52, {t * 16384}'] + kv_dma(w, t, 's52')))
    flat = [(e, o) for e, ops in queue for o in ops]
    nvm = lambda ops: sum(1 for o in ops if isinstance(o, tuple))

    def take(stage, maxv):
        out = []
        while flat and flat[0][0] <= stage:
            if isinstance(flat[0][1], tuple) and nvm(out) >= maxv:
                break
            if not isinstance(flat[0][1], tuple) and nvm(out) >= maxv:
                break
            out.append(flat.pop(0)[1])
        return out
    emit_ops(take(-1, 12))
    setup_rest()
    emit_ops(take(-1, qp0 - 12))
    if wqpf:
        k('s_lshr_b32 s50, s2, 3')
        k('s_lshl_b32 s50, s50, 2')
        k(f's_add_u32 s50, s50, s{S_W}')
        k('s_lshl_b32 s50, s50, 16')
        k('s_lshr_b32 s51, s2, 6')
        k('s_lshl_b32 s51, s51, 8')
        k('s_add_u32 s50, s50, 8192')
        k('s_sub_u32 s50, s50, s51')
        k(f'v_lshrrev_b32 v4, 3, v{V_LANE}')
        k('v_lshlrev_b32 v4, 13, v4')
        k(f'v_and_b32 v5, 7, v{V_LANE}')
        k('v_lshl_add_u32 v4, v5, 7, v4')
        emit_ops([(f'buffer_load_dword v{V_PFD}, v4, s[{S_WQ}:{S_WQ + 3}], s50 offen', ('P', 0))])
    k(f's_waitcnt vmcnt({vwait(("W", 0))})')
    k('s_barrier')
    T.stamp()
    PD = 3
    for dt in range(PD):
        for s in range(2):
            for h in range(2):
                k(wread(dt, s, h, 0))

    def qcvt(sp):
        ops = []
        for qt in range(4):
            q = Qreg(qt, sp)
            t0, t1 = qacc(2 * sp, qt), qacc(2 * sp + 1, qt)
            ops += [f'v_cvt_pk_bf16_f32 v{q}, v{t0}, v{t0 + 1}', f'v_cvt_pk_bf16_f32 v{q + 1}, v{t0 + 2}, v{t0 + 3}',
                    f'v_cvt_pk_bf16_f32 v{q + 2}, v{t1}, v{t1 + 1}', f'v_cvt_pk_bf16_f32 v{q + 3}, v{t1 + 2}, v{t1 + 3}']
        for qt in range(4):
            q = Qreg(qt, sp)
            ops += [f'v_permlane16_swap_b32 v{q}, v{q + 2}', f'v_permlane16_swap_b32 v{q + 1}, v{q + 3}']
        return ops
    for st in range(NST):
        gaps = {}

        def put(g, op):
            gaps.setdefault(g, []).append(op)
        M = []
        busy = set()
        BG = 6
        for dt in range(8):
            tgt = dt + PD
            rd = []
            if tgt < 8:
                rd = [wread(tgt, s, h, st) for s in range(2) for h in range(2)]
                pos = [0, 2, 4, 6]
            elif st + 1 < NST:
                if dt == 6:
                    rd = [wread(x, s, h, st + 1) for x in (0, 1) for s in range(2) for h in range(2)][:7]
                    pos = [1, 2, 3, 4, 5, 6, 7]
                elif dt == 7:
                    rd = [wread(1, 1, 1, st + 1)] + [wread(2, s, h, st + 1) for s in range(2) for h in range(2)]
                    pos = [0, 1, 2, 4, 6]
            else:
                if dt == 6:
                    rd = [kread(0, s, 0) for s in range(4)]
                    pos = [1, 3, 5, 7]
                elif dt == 7:
                    rd = [kread(1, s, 0) for s in range(4)]
                    pos = [0, 2, 4, 6]
            for r, p in zip(rd, pos):
                put(dt * 8 + p, r)
                busy.add(dt * 8 + p)
            for qt in range(4):
                for s in range(2):
                    d = r4('v', qacc(dt, qt))
                    a = r4('a', A_X2 + (dt & 3) * 8 + s * 4)
                    b = r4('a', (st & 3) * 32 + (qt * 2 + s) * 4)
                    M.append(mf(d, a, b, '0' if (st == 0 and s == 0) else d))
        side = take(st, qpn)
        if kvpf and st == kvpf:
            side = [f's_lshl_b32 s53, s46, 11',
                    (f'buffer_load_dword v{V_PFD}, v{V_PF}, s[{S_K}:{S_K + 3}], s53 offen', ('P', 1)),
                    (f'buffer_load_dword v{V_PFD}, v{V_PF}, s[{S_V}:{S_V + 3}], s53 offen', ('P', 1))] + side
        free = [g for g in range(1, 63) if g not in busy and g not in (47, 48)]
        n = nvm(side)
        pos = [free[(i * len(free)) // n] for i in range(n)] if n else []
        vi = 0
        pend_s = []
        for o in side:
            if isinstance(o, tuple):
                put(pos[vi], ('V', pend_s, o))
                pend_s = []
                vi += 1
            else:
                pend_s.append(o)
        assert not pend_s
        if st >= 13:
            z = [f'v_accvgpr_write_b32 a{((st - 13) & 3) * 32 + i}, 0' for i in range(32)]
            for i, o in enumerate(z):
                put(2 * i + (1 if st < 15 else 0) if st < 15 else i // 2, o)
        if st == 15:
            for sp in range(3):
                for i, o in enumerate(qcvt(sp)):
                    put(16 * (sp + 1) + 3 + i // 2, o)
        for i, m in enumerate(M):
            k(m)
            ops = gaps.get(i, [])
            if i == 47:
                if st + 1 < NST:
                    k(f's_waitcnt vmcnt({vwait(("W", st + 1))}) lgkmcnt(0)')
                else:
                    k(f's_waitcnt vmcnt({vwait(("K", 0))})')
            if i == 48:
                k('s_barrier')
            nxt = [o for o in gaps.get(i + 1, []) if isinstance(o, tuple)]
            cur = [o for o in ops if isinstance(o, tuple)]
            if not cur:
                for o in nxt:
                    for sc in o[1]:
                        k(sc)
            for o in cur:
                emit_ops([o[2]])
            if cur:
                for o in nxt:
                    for sc in o[1]:
                        k(sc)
            for o in sorted([o for o in ops if not isinstance(o, tuple)], key=_cls):
                k(o)
        if dbg == 3: T.stamp()
    assert not flat, flat
    T.stamp()
    for o in qcvt(3):
        k(o)
    extras = [f'v_accvgpr_write_b32 a{96 + i}, 0' for i in range(32)]
    extras += [f'v_sub_u32 v{V_VA + dt}, v{V_VA + dt}, v{V_CK}' for dt in range(8)]
    gaps = {}
    for i, o in enumerate(extras):
        gaps.setdefault(i // 2, []).append(o)
    M = []
    for kt in range(4):
        for qt in range(4):
            for s in range(4):
                d = r4('v', Sreg(0, kt, qt))
                M.append(mf(d, r4('a', A_KF + (kt & 1) * 16 + s * 4), r4('v', Qreg(qt, s)), '0' if s == 0 else d))
            if kt < 3:
                b = Sreg(0, kt, qt)
                g = 16 * kt + 4 * qt + 12
                if kt == 0:
                    gaps.setdefault(g + 8, []).append(f'v_max3_f32 v{V_TM + qt}, v{b}, v{b + 1}, v{b + 2}')
                    gaps.setdefault(g + 9, []).append(f'v_max_f32 v{V_TM + qt}, v{V_TM + qt}, v{b + 3}')
                else:
                    gaps.setdefault(g, []).append(f'v_max3_f32 v{V_TM + qt}, v{V_TM + qt}, v{b}, v{b + 1}')
                    gaps.setdefault(g + 1, []).append(f'v_max3_f32 v{V_TM + qt}, v{V_TM + qt}, v{b + 2}, v{b + 3}')
        if kt + 2 < 4:
            for s in range(4):
                gaps.setdefault(16 * (kt + 1) + 2 * s, []).append(kread(kt + 2, s, 0))
    gaps.setdefault(55, []).append(f's_waitcnt vmcnt({min(vwait(("V", 0)), vwait(("K", 1)))}) lgkmcnt(0)')
    gaps.setdefault(56, []).append('s_barrier')
    for s in range(4):
        gaps.setdefault(57 + s, []).append(kread(0, s, 1))
    emit_phase(k, M, gaps)
    for qt in range(4):
        b = Sreg(0, 3, qt)
        k(f'v_max3_f32 v{V_TM + qt}, v{V_TM + qt}, v{b}, v{b + 1}')
        k(f'v_max3_f32 v{V_TM + qt}, v{V_TM + qt}, v{b + 2}, v{b + 3}')

    def rowmax(st, dst, local=True):
        for qt in range(4 if local else 0):
            regs = [Sreg(st, kt, qt) + r for kt in range(4) for r in range(4)]
            d = dst + qt
            k(f'v_max3_f32 v{d}, v{regs[0]}, v{regs[1]}, v{regs[2]}')
            for i in range(3, 15, 2):
                k(f'v_max3_f32 v{d}, v{d}, v{regs[i]}, v{regs[i + 1]}')
            k(f'v_max_f32 v{d}, v{d}, v{regs[15]}')
        for sw in ('v_permlane16_swap_b32', 'v_permlane32_swap_b32'):
            for qt in range(4):
                k(f'v_mov_b32 v{V_T0 + qt}, v{dst + qt}')
            for qt in range(4):
                k(f'{sw} v{V_T0 + qt}, v{dst + qt}')
            for qt in range(4):
                k(f'v_max_f32 v{dst + qt}, v{dst + qt}, v{V_T0 + qt}')

    rowmax(0, V_TM, local=False)
    k(f's_mov_b32 s53, {f32(BIAS)}')
    for qt in range(4):
        k(f'v_add_f32 v{V_TM + qt}, s53, v{V_TM + qt}')
        for r in range(4):
            k(f'v_sub_f32 v{V_CI + qt * 4 + r}, 0, v{V_TM + qt}')
    for kt in range(4):
        for qt in range(4):
            for r in range(4):
                x = Sreg(0, kt, qt) + r
                k(f'v_sub_f32 v{x}, v{x}, v{V_TM + qt}')
    pre = [(pos + (0 if kind == 0 else 3), op) for pos, kind, op in softmax_stream(0) if pos < 128]
    pre.sort(key=lambda x: x[0])
    for pos, op in pre:
        k(op)

    k(f's_mov_b32 s{S_KOFF}, {4 * 16384}')
    k(f's_mov_b32 s{S_VOFF}, {3 * 16384}')
    k(f's_mov_b32 s{S_TOFF}, 0')
    k(f's_mov_b32 s{S_CNT}, 0')
    tramps = []

    def epi_ops(j):
        ops = [f's_add_u32 s49, s48, {j * 131072}']
        for qt in range(4):
            gi = j * 4 + qt
            t = (64 + gi * 8) if gi < 8 else (192 + (gi - 8) * 8)
            for h in range(2):
                for r in range(4):
                    ops.append(f'v_accvgpr_read_b32 v{t + h * 4 + r}, a{Oreg(2 * j + h, qt) + r}')
            for e in range(8):
                ops.append(f'v_mul_f32 v{t + e}, v{t + e}, v{V_L + qt}')
            for e in range(4):
                ops.append(f'v_cvt_pk_bf16_f32 v{t + e}, v{t + 2 * e}, v{t + 2 * e + 1}')
            ops.append(f'buffer_store_dwordx4 {r4("v", t)}, v{V_HD}, s[{S_OO}:{S_OO + 3}], s49 offen offset:{qt * 1024} {stflag}')
        return ops

    def tile(t4, last=False, tag='', pf=False, peel=False):
        st, sn = t4 & 1, (t4 + 1) & 1
        M = []
        gaps = {}

        def put(g, op):
            gaps.setdefault(g, []).append(op)
        for pos, _, op in softmax_stream(st):
            if pos >= 128:
                put(pos - 128, op)
        put(58, f'v_max3_f32 v{V_CK}, v{V_LT}, v{V_LT + 1}, v{V_LT + 2}')
        put(58, f'v_max_f32 v{V_CK}, v{V_CK}, v{V_LT + 3}')
        put(59, f'v_cmp_nge_f32 vcc, s{S_THR}, v{V_CK}')
        lab = k.newlabel('tr')
        put(60, f's_cbranch_vccnz {k.L(lab)}')
        put(60, k.L(lab + 'r') + ':')
        tramps.append((lab, st))
        if not last:
            for pos, _, op in softmax_stream(sn):
                if pos < 128:
                    put(pos, op)
        else:
            lops = [f'v_add_f32 v{V_L + qt}, v{V_L + qt}, v{V_LT + qt}' for qt in range(4)]
            for sw in ('v_permlane16_swap_b32', 'v_permlane32_swap_b32'):
                lops += [f'v_mov_b32 v{V_T0 + qt}, v{V_L + qt}' for qt in range(4)]
                lops += [f'{sw} v{V_T0 + qt}, v{V_L + qt}' for qt in range(4)]
                lops += [f'v_add_f32 v{V_L + qt}, v{V_L + qt}, v{V_T0 + qt}' for qt in range(4)]
            lops += [f'v_rcp_f32 v{V_L + qt}, v{V_L + qt}' for qt in range(4)]
            for i, o in enumerate(lops):
                put(64 + i // 2, o)
            put(61, f's_add_u32 s{S_H}, s44, {WS_MOD}')
            put(61, f's_addc_u32 s{S_H + 1}, s45, 0')
            put(61, f's_mov_b32 s{S_H + 2}, 65536')
            put(62, f's_lshl_b32 s50, s{S_W}, 9')
            put(62, f's_add_u32 s50, s50, 32768')
            put(62, f'v_and_b32 v{V_KG}, 0x30, v{V_LANE}')
            put(63, f's_waitcnt vmcnt(0)')
            put(63, f'v_lshlrev_b32 v{V_CK}, 4, v{V_KG}')
            put(63, f'v_and_b32 v{V_MD}, 15, v{V_LANE}')
            put(63, f'v_lshl_add_u32 v{V_CK}, v{V_MD}, 3, v{V_CK}')
            put(63, f's_lshl_b32 s51, s{S_M0K}, 1')
            put(63, f's_add_u32 s51, s51, {LDS_M}')
            put(63, ('raw', f'v_add_u32 v{V_CK}, s51, v{V_CK}'))
            for s8 in range(8):
                put(64 + 2 * s8, f'buffer_load_dwordx4 {r4("a", A_X2 + 4 * s8)}, v{V_KG}, s[{S_H}:{S_H + 3}], s50 offen offset:{s8 * 64}')
                for h in range(2):
                    b = A_X2 + 32 + 4 * s8 + 2 * h
                    put(106 + 2 * s8 + h, f'ds_read_b64_tr_b16 a[{b}:{b + 1}], v{V_CK} offset:{s8 * 1024 + h * 128}')
            for j in range(3):
                eo = epi_ops(j)
                g0 = 64 + 16 * (j + 1) + 2
                span = min(16, 128 - g0)
                for i, o in enumerate(eo):
                    put(g0 + (i * span) // len(eo), ('raw', o))
        kslot = (t4 + 1) & 3
        if not last:
            for kt in range(4):
                for qt in range(4):
                    for s in range(4):
                        d = r4('v', Sreg(sn, kt, qt))
                        c = r4('v', V_CI + qt * 4) if s == 0 else d
                        M.append(mf(d, r4('a', A_KF + (kt & 1) * 16 + s * 4), r4('v', Qreg(qt, s)), c))
                if kt + 1 < 4:
                    for s, g in enumerate([1, 3, 5, 9]):
                        put(16 * kt + g, kread(kt + 1, s, kslot))
            ops = kv_dma('V', t4 + 3, f's{S_VOFF}') + [f's_add_u32 s{S_VOFF}, s{S_VOFF}, 16384'] \
                + kv_dma('K', t4, f's{S_KOFF}') + [f's_add_u32 s{S_KOFF}, s{S_KOFF}, 16384']
            ops = [o[0] if isinstance(o, tuple) else o for o in ops]
            slots = [10, 11, 13, 27, 29, 30, 42, 43, 45, 47, 49, 50]
            if peel:
                def wm(half):
                    o = [f's_lshl_b32 m0, s{S_M0K}, 1', f's_add_u32 m0, m0, {LDS_M + half * 4096}']
                    sl = [40, 42]
                    for j, g in enumerate([43, 45, 47, 49]):
                        o += [f'buffer_load_dwordx4 v{V_MD}, s[{S_WM}:{S_WM + 3}], s29 offen offset:{j * 1024} lds',
                              f's_add_u32 s29, s29, {32 * 12288 - 1024 + (4096 if j == 3 else 0)}']
                        sl += [g, g + 1]
                    return o, sl
                ops, slots = (ops[:6], slots[:6]) if t4 == 0 else ([], [])
                if t4 < 2:
                    o, sl = wm(t4)
                    ops, slots = ops + o, slots + sl
            for o, g in zip(ops, slots):
                put(g, o)
        else:
            M = [None] * 64
        vr = [vread(dt, ks, h, t4) for dt in range(3) for ks in range(2) for h in range(2)]
        for i, g in enumerate([7, 15, 23, 31, 39, 51, 53, 55, 57, 59, 61, 63]):
            put(g, vr[i])
        for dt in range(8):
            for qt in range(4):
                for ks in range(2):
                    d = r4('a', Oreg(dt, qt))
                    M.append(mf(d, r4('a', A_VF + (dt & 3) * 8 + ks * 4), r4('v', Preg(st, qt, ks)), d))
            if dt + 3 < 8:
                vr = [vread(dt + 3, ks, h, t4) for ks in range(2) for h in range(2)]
                for i, g in enumerate([1, 3, 5, 7]):
                    put(64 + 8 * dt + g, vr[i])
        put(66, f's_add_u32 s{S_TOFF}, s{S_TOFF}, 16384')
        if pf:
            put(105, f'buffer_load_dword v{V_PFD}, v{V_PF}, s[{S_PF}:{S_PF + 3}], s{S_PFO} offen offset:{(t4 & 1) * 2048}')
            if t4 == 1:
                put(106, f's_add_u32 s{S_PFO}, s{S_PFO}, 4096')
            if t4 == 3:
                rot = [f's_sub_u32 s{S_PFO}, s{S_PFO}, 4096',
                       f's_mov_b64 s[{S_PF}:{S_PF + 1}], s[{S_PT}:{S_PT + 1}]',
                       f's_mov_b64 s[{S_PT}:{S_PT + 1}], s[{S_PT + 2}:{S_PT + 3}]',
                       f's_mov_b64 s[{S_PT + 2}:{S_PT + 3}], s[{S_PT + 4}:{S_PT + 5}]',
                       f's_mov_b64 s[{S_PT + 4}:{S_PT + 5}], s[{S_PT + 6}:{S_PT + 7}]',
                       f's_cmp_lt_u32 s{S_CNT}, 3',
                       f's_cselect_b32 s{S_PF + 2}, {1024 * 7168}, 0',
                       f's_cmp_eq_u32 s{S_CNT}, 3',
                       f's_cselect_b32 s{S_PF + 2}, {1024 * 12288}, s{S_PF + 2}',
                       f's_cselect_b32 s{S_PFO}, s{S_PFN}, s{S_PFO}']
                for o, g in zip(rot, [106, 108, 110, 114, 116, 118, 120, 122, 124, 126]):
                    put(g, o)
        if not last:
            put(111, f's_waitcnt vmcnt({[16, 12, 4][t4] if peel else 17 if pf else 16}) lgkmcnt(0)')
            put(112, 's_barrier')
            for s, g in enumerate([113, 115, 117, 121]):
                put(g, kread(0, s, (t4 + 2) & 3))
        emit_phase(k, M, gaps)

    T.stamp()
    k('.p2align 6')
    k.label('loop')
    for t4 in range(4):
        tile(t4, pf=mallpf)
    k(f's_add_u32 s{S_CNT}, s{S_CNT}, 1')
    k(f's_cmp_lt_u32 s{S_CNT}, 7')
    k(f's_cbranch_scc1 {k.L("loop")}')
    T.stamp()
    for t4 in range(4):
        tile(t4, last=(t4 == 3), peel=True)
    T.stamp()

    for s8 in range(8):
        k(mf(r4('v', V_TM), r4('a', A_X2 + 32 + 4 * s8), r4('a', A_X2 + 4 * s8), '0' if s8 == 0 else r4('v', V_TM)))
    for o in epi_ops(3):
        k(o)
    k(f'v_lshlrev_b32 v2, 6, v{V_LANE}')
    k(f's_lshl_b32 s51, s{S_W}, 6')
    k(f'v_add_u32 v3, s51, v{V_KG}')
    k(f'ds_write_b128 v3, {r4("v", V_TM)}')
    k('s_waitcnt lgkmcnt(0)')
    k('s_barrier')
    k(f's_cmp_lg_u32 s{S_W}, 0')
    k(f's_cbranch_scc1 {k.L("fin")}')
    k(f'v_lshlrev_b32 v2, 2, v{V_MD}')
    for w in range(4):
        k(f'ds_read_b32 v{4 + w}, v2 offset:{w * 64}')
    k('v_add_f32 v4, v4, v5')
    k('v_add_f32 v6, v6, v7')
    k('v_add_f32 v4, v4, v6')
    k('v_cvt_pk_bf16_f32 v4, v4, v4')
    k('v_and_b32 v4, 0xffff0000, v4')
    k('s_lshr_b32 s29, s28, 6')
    k('s_cmp_eq_u32 s29, 2')
    k('s_cselect_b32 s29, 1.0, 0')
    k('v_add_f32 v4, s29, v4')
    k('v_cvt_pk_bf16_f32 v4, v4, v4')
    k('v_and_b32 v4, 0xffff0000, v4')
    k('s_lshl_b32 s29, s28, 6')
    k('s_add_u32 s29, s29, 8192')
    k(f'buffer_store_dword v4, v2, s[{S_H}:{S_H + 3}], s29 offen')
    k.label('fin')
    k('s_waitcnt vmcnt(0)') if dbg else None
    T.stamp()
    T.dump(44, S_W, 0)
    k.label('end')
    k('s_endpgm')

    for lab, st in tramps:
        k.label(lab)
        k(f's_call_b64 s[{S_RET}:{S_RET + 1}], {k.L("slow%d" % st)}')
        k(f's_branch {k.L(lab + "r")}')
    for st in range(2):
        sn = st ^ 1
        k.label(f'slow{st}')
        for kt in range(4):
            k(f's_add_u32 s52, s{S_TOFF}, {kt * 4096}')
            for s in range(4):
                k(f'buffer_load_dwordx4 {r4("a", A_X2 + (kt * 4 + s) * 4)}, v{V_KG}, s[{S_K}:{S_K + 3}], s52 offen offset:{s * 64}')
        k('s_waitcnt vmcnt(0)')
        for kt in range(4):
            for qt in range(4):
                for s in range(4):
                    d = r4('v', Sreg(st, kt, qt))
                    c = r4('v', V_CI + qt * 4) if s == 0 else d
                    k(mf(d, r4('a', A_X2 + (kt * 4 + s) * 4), r4('v', Qreg(qt, s)), c))
        rowmax(st, V_TM)
        k(f's_mov_b32 s53, {f32(BIAS)}')
        for qt in range(4):
            k(f'v_add_f32 v{V_TM + qt}, s53, v{V_TM + qt}')
            k(f'v_max_f32 v{V_TM + qt}, 0, v{V_TM + qt}')
            k(f'v_sub_f32 v{V_T0 + qt}, 0, v{V_TM + qt}')
            k(f'v_exp_f32 v{V_T0 + qt}, v{V_T0 + qt}')
            for r in range(4):
                k(f'v_sub_f32 v{V_CI + qt * 4 + r}, v{V_CI + qt * 4 + r}, v{V_TM + qt}')
            k(f'v_mul_f32 v{V_L + qt}, v{V_L + qt}, v{V_T0 + qt}')
        for ss in (st, sn):
            for kt in range(4):
                for qt in range(4):
                    for r in range(4):
                        x = Sreg(ss, kt, qt) + r
                        k(f'v_sub_f32 v{x}, v{x}, v{V_TM + qt}')
        for dt in range(8):
            for qt in range(4):
                for r in range(4):
                    a = Oreg(dt, qt) + r
                    k(f'v_accvgpr_read_b32 v6, a{a}')
                    k(f'v_mul_f32 v6, v6, v{V_T0 + qt}')
                    k(f'v_accvgpr_write_b32 a{a}, v6')
        for qt in range(4):
            k(f'v_mov_b32 v{V_LT + qt}, 0')
        for ks in range(2):
            ex, ad, cv = softmax_half_ops(st, ks, False)
            g0 = {}
            place_softmax(g0, ex, ad, cv)
            emit_phase(k, [None] * 64, g0)
        k(f's_setpc_b64 s[{S_RET}:{S_RET + 1}]')
    return k
```

```python
from common import *
import math

WS_SC = 32768
WS_PART = 65536
P = lambda b: f'v[{b}:{b + 1}]'


def gen_modp(dbg=False, allcode=None, pfx=True, cpf=True):
    k = Kernel('modp_kernel', vgprs=64, sgprs=96 if dbg else 64, grid=256, block=256, lds=1024)
    T = Stamper(k, dbg)
    k('s_cmp_ge_u32 s2, 256')
    k(f's_cbranch_scc1 {k.L("end")}')
    T.start()
    k(f's_load_dwordx4 s[4:7], s[0:1], {C_IN}')
    k(f's_load_dwordx2 s[12:13], s[0:1], {A_X}')
    k(f's_load_dwordx2 s[10:11], s[0:1], {D_WS}')
    if cpf:
        code_prefetch(k, 44, 16, 17, 0, 256, 4096)
    k('v_lshrrev_b32 v1, 6, v0')
    k('v_and_b32 v2, 63, v0')
    k('v_readfirstlane_b32 s20, v1')
    k('s_and_b32 s26, s2, 31')
    k('s_lshr_b32 s27, s2, 5')
    k(f's_mul_i32 s32, s27, {128 * 12288}')
    k('s_lshl_b32 s33, s26, 7')
    k('s_add_u32 s32, s32, s33')
    k('s_lshl_b32 s33, s27, 8')
    k('v_lshrrev_b32 v6, 3, v0')
    k('v_and_b32 v7, 7, v0')
    k('s_movk_i32 s34, 12288')
    k('v_mul_lo_u32 v8, v6, s34')
    k('v_lshl_add_u32 v8, v7, 4, v8')
    k('v_lshlrev_b32 v9, 1, v6')
    k('s_waitcnt lgkmcnt(0)')
    srd(k, 52, 6, 0, 1024 * 12288)
    srd(k, 48, 4, 0, 2048)
    for i in range(4):
        k(f'buffer_load_ushort v{24 + i}, v9, s[48:51], s33 offen offset:{i * 64}')
    for i in range(4):
        k(f'buffer_load_dwordx4 v[{32 + 4 * i}:{35 + 4 * i}], v8, s[52:55], s32 offen')
        if i < 3:
            k(f's_add_u32 s32, s32, {32 * 12288}')
    if pfx:
        k('s_mov_b32 s14, %d' % (2048 * 2048))
        k('s_mov_b32 s15, 0x00020000')
        k('s_lshl_b32 s23, s2, 14')
        k('v_lshlrev_b32 v10, 7, v0')
        k('s_cmp_ge_u32 s20, 2')
        k(f's_cbranch_scc1 {k.L("nox")}')
        k('buffer_load_dword v11, v10, s[12:15], s23 offen')
        k.label('nox')
        if allcode:
            k('s_cmp_lg_u32 s20, 3')
            k(f's_cbranch_scc1 {k.L("noc")}')
            k('s_cmp_ge_u32 s2, 24')
            k(f's_cbranch_scc1 {k.L("noc")}')
            k('s_getpc_b64 s[40:41]')
            k.label('pc2')
            k(f's_mov_b32 s42, {allcode}-{k.L("pc2")}')
            k('s_mov_b32 s43, 0x00020000')
            k('s_lshl_b32 s37, s2, 13')
            k('v_lshlrev_b32 v10, 7, v2')
            k('buffer_load_dword v11, v10, s[40:43], s37 offen')
            k.label('noc')
    srd(k, 16, 10, 0, 64 << 20)
    k('s_lshl_b32 s36, s2, 2')
    k('s_add_u32 s36, s36, s20')
    k('s_lshl_b32 s36, s36, 6')
    k(f's_add_u32 s36, s36, {60 << 20}')
    k('v_and_b32 v14, 1, v2')
    k('v_lshlrev_b32 v14, 16, v14')
    k('v_mov_b32 v15, 0')
    k('buffer_store_dword v15, v14, s[16:19], s36 offen')
    k(f's_mov_b32 s35, {f32(-math.log2(math.e))}')
    for i in range(4):
        k(f'v_lshlrev_b32 v{24 + i}, 16, v{24 + i}')
    for i in range(4):
        k(f'v_mul_f32 v{28 + i}, s35, v{24 + i}')
    for i in range(4):
        k(f'v_exp_f32 v{28 + i}, v{28 + i}')
    for i in range(4):
        k(f'v_add_f32 v{28 + i}, 1.0, v{28 + i}')
    for i in range(4):
        k(f'v_rcp_f32 v{28 + i}, v{28 + i}')
    for i in range(4):
        k(f'v_mul_f32 v{24 + i}, v{24 + i}, v{28 + i}')
    for i in range(4):
        k(f'v_cvt_pk_bf16_f32 v{24 + i}, v{24 + i}, v{24 + i}')
    for i in range(4):
        k(f'v_and_b32 v{28 + i}, 0xffff0000, v{24 + i}')
    for i in range(4):
        for d in range(4):
            r = 32 + 4 * i + d
            k(f'v_lshlrev_b32 v12, 16, v{r}')
            k(f'v_and_b32 v13, 0xffff0000, v{r}')
            if i == 0:
                k(f'v_pk_mul_f32 {P(48 + 2 * d)}, v[12:13], {P(28)} op_sel_hi:[1,0]')
            else:
                b = 28 + (i & ~1)
                sel = 'op_sel:[0,1,0] op_sel_hi:[1,1,1]' if i & 1 else 'op_sel_hi:[1,0,1]'
                k(f'v_pk_fma_f32 {P(48 + 2 * d)}, v[12:13], {P(b)}, {P(48 + 2 * d)} {sel}')
    regs = list(range(48, 56)); tmps = list(range(56, 64))
    for r in regs:
        k(f'v_add_f32_dpp v{r}, v{r}, v{r} row_ror:8 row_mask:0xf bank_mask:0xf')
    for sw in ('v_permlane16_swap_b32', 'v_permlane32_swap_b32'):
        for r, t in zip(regs, tmps):
            k(f'v_mov_b32 v{t}, v{r}')
        for r, t in zip(regs, tmps):
            k(f'{sw} v{t}, v{r}')
        for r, t in list(zip(regs, tmps))[::2]:
            k(f'v_pk_add_f32 {P(r)}, {P(r)}, {P(t)}')
    k('v_lshlrev_b32 v12, 8, v1')
    k('v_lshl_add_u32 v12, v7, 5, v12')
    k('ds_write_b128 v12, v[48:51]')
    k('ds_write_b128 v12, v[52:55] offset:16')
    k('v_lshlrev_b32 v13, 2, v2')
    k('s_cmp_lg_u32 s26, 0')
    k(f's_cbranch_scc1 {k.L("nosc")}')
    k(f's_add_u32 s34, s33, {WS_SC}')
    for i in range(4):
        k(f'buffer_store_short v{24 + i}, v9, s[16:19], s34 offen offset:{i * 64}')
    k.label('nosc')
    k('s_waitcnt lgkmcnt(0)')
    k('s_barrier')
    k('s_cmp_lg_u32 s20, 0')
    k(f's_cbranch_scc1 {k.L("fin")}')
    for w in range(4):
        k(f'ds_read_b32 v{56 + w}, v13 offset:{w * 256}')
    k('s_lshl_b32 s34, s27, 13')
    k('s_lshl_b32 s35, s26, 8')
    k('s_add_u32 s34, s34, s35')
    k(f's_add_u32 s34, s34, {WS_PART}')
    k('v_add_f32 v56, v56, v57')
    k('v_add_f32 v58, v58, v59')
    k('v_add_f32 v56, v56, v58')
    k('buffer_store_dword v56, v13, s[16:19], s34 offen')
    k.label('fin')
    if dbg:
        k('s_waitcnt vmcnt(0)')
        T.stamp()
        T.dump(10, 20, 4)
    k.label('end')
    k('s_endpgm')
    return k


def gen_ln(name, src_arg, src_off, dst_off, parts, seg_shift=0, seg_scale=0, post=None, dbg=False, slot=5, pfq=0, cpf=True):
    k = Kernel(name, vgprs=160 if parts else 96, sgprs=96 if dbg else 48, grid=256, block=320 if pfq else 256, lds=8192 if parts else 0)
    T = Stamper(k, dbg)
    k('s_cmp_ge_u32 s2, 256')
    k(f's_cbranch_scc1 {k.L("end")}')
    T.start()
    k(f's_load_dwordx2 s[4:5], s[0:1], {src_arg}')
    k(f's_load_dwordx2 s[10:11], s[0:1], {D_WS}')
    if pfq:
        k(f's_load_dwordx2 s[40:41], s[0:1], {A_WQ}')
        k(f's_load_dwordx4 s[44:47], s[0:1], {A_K}')
    if cpf:
        code_prefetch(k, 36, 94, 95, 0, 256, 4096)
    k('v_lshrrev_b32 v1, 6, v0')
    k('v_and_b32 v2, 63, v0')
    k('v_readfirstlane_b32 s20, v1')
    if pfq:
        k('s_cmp_eq_u32 s20, 4')
        k(f's_cbranch_scc1 {k.L("pfw")}')
    k('v_lshlrev_b32 v3, 4, v2')
    k('v_lshlrev_b32 v4, 5, v2')
    k('v_lshlrev_b32 v7, 4, v0')
    k('s_lshl_b32 s21, s2, 3')
    k('s_lshl_b32 s22, s20, 1')
    k('s_add_u32 s21, s21, s22')
    k('s_lshl_b32 s23, s21, 11')
    k('s_waitcnt lgkmcnt(0)')
    srd(k, 12, 4, src_off, 2048 * 2048)
    for r in range(2):
        for h in range(2):
            b = 8 + 8 * r + 4 * h
            k(f'buffer_load_dwordx4 v[{b}:{b + 3}], v3, s[12:15], s23 offen offset:{r * 2048 + h * 1024}')
    srd(k, 16, 10, 0, WS_PART + 65536)
    if parts:
        k(f's_mov_b32 s26, {WS_PART}')
        for p in range(8):
            for h in range(2):
                b = 96 + 8 * p + 4 * h
                k(f'buffer_load_dwordx4 v[{b}:{b + 3}], v7, s[16:19], s26 offen')
                k('s_add_u32 s26, s26, 4096')
    else:
        k(f's_movk_i32 s26, {seg_scale * 4096}')
        k(f's_movk_i32 s27, {seg_shift * 4096}')
        for h in range(2):
            for j in range(2):
                b = 24 + 8 * h + 4 * j
                k(f'buffer_load_dwordx4 v[{b}:{b + 3}], v4, s[16:19], s26 offen offset:{h * 2048 + j * 16}')
                k(f'buffer_load_dwordx4 v[{b + 16}:{b + 19}], v4, s[16:19], s27 offen offset:{h * 2048 + j * 16}')
    srd(k, 28, 10, dst_off, 2048 * 2048)
    k('v_lshrrev_b32 v5, 2, v2')
    k('v_lshlrev_b32 v5, 17, v5')
    k('v_and_b32 v6, 3, v2')
    k('v_lshl_add_u32 v5, v6, 8, v5')
    k('s_lshr_b32 s24, s21, 4')
    k('s_lshl_b32 s24, s24, 10')
    k('s_and_b32 s25, s21, 15')
    k('s_lshl_b32 s25, s25, 4')
    k('s_add_u32 s24, s24, s25')
    for r in range(2):
        for d in range(8):
            s = 8 + 8 * r + d
            o = 56 + 16 * r + 2 * d
            k(f'v_lshlrev_b32 v{o}, 16, v{s}')
            k(f'v_and_b32 v{o + 1}, 0xffff0000, v{s}')
    for r in range(2):
        o = 56 + 16 * r
        k(f'v_pk_add_f32 {P(8 + 2 * r)}, {P(o)}, {P(o + 2)}')
    for e in range(4, 16, 2):
        for r in range(2):
            o = 56 + 16 * r
            k(f'v_pk_add_f32 {P(8 + 2 * r)}, {P(8 + 2 * r)}, {P(o + e)}')
    for r in range(2):
        k(f'v_add_f32 v{8 + 2 * r}, v{8 + 2 * r}, v{9 + 2 * r}')
    wave_allreduce_add(k, [8, 10], [9, 11])
    k(f's_mov_b32 s34, {f32(-1.0 / 1024)}')
    for r in range(2):
        k(f'v_mul_f32 v{8 + 2 * r}, s34, v{8 + 2 * r}')
    for r in range(2):
        for e in range(0, 16, 2):
            o = 56 + 16 * r + e
            k(f'v_pk_add_f32 {P(o)}, {P(o)}, {P(8 + 2 * r)} op_sel_hi:[1,0]')
    for r in range(2):
        o = 56 + 16 * r
        k(f'v_pk_mul_f32 {P(8 + 2 * r)}, {P(o)}, {P(o)}')
    for e in range(2, 16, 2):
        for r in range(2):
            o = 56 + 16 * r
            k(f'v_pk_fma_f32 {P(8 + 2 * r)}, {P(o + e)}, {P(o + e)}, {P(8 + 2 * r)}')
    for r in range(2):
        k(f'v_add_f32 v{8 + 2 * r}, v{8 + 2 * r}, v{9 + 2 * r}')
    if parts:
        k(f's_mov_b32 s33, {f32(post)}')
        for p in range(1, 8):
            for e in range(0, 8, 2):
                k(f'v_pk_add_f32 {P(96 + e)}, {P(96 + e)}, {P(96 + 8 * p + e)}')
        for e in range(0, 8, 2):
            k(f'v_cvt_pk_bf16_f32 v{104 + e // 2}, v{96 + e}, v{97 + e}')
        for e in range(0, 8, 2):
            k(f'v_lshlrev_b32 v{96 + e}, 16, v{104 + e // 2}')
            k(f'v_and_b32 v{97 + e}, 0xffff0000, v{104 + e // 2}')
        for e in range(4):
            k(f'v_mul_f32 v{96 + e}, s33, v{96 + e}')
            k(f'v_add_f32 v{100 + e}, 1.0, v{100 + e}')
        for e in range(0, 4, 2):
            k(f'v_cvt_pk_bf16_f32 v{104 + e // 2}, v{100 + e}, v{101 + e}')
        for e in range(0, 4, 2):
            k(f'v_lshlrev_b32 v{100 + e}, 16, v{104 + e // 2}')
            k(f'v_and_b32 v{101 + e}, 0xffff0000, v{104 + e // 2}')
        k('ds_write_b128 v7, v[96:99]')
        k('ds_write_b128 v7, v[100:103] offset:4096')
        k('s_waitcnt lgkmcnt(0)')
        k('s_barrier')
        for h in range(2):
            for j in range(2):
                k(f'ds_read_b128 v[{24 + 8 * h + 4 * j}:{27 + 8 * h + 4 * j}], v4 offset:{4096 + h * 2048 + j * 16}')
                k(f'ds_read_b128 v[{40 + 8 * h + 4 * j}:{43 + 8 * h + 4 * j}], v4 offset:{h * 2048 + j * 16}')
    wave_allreduce_add(k, [8, 10], [9, 11])
    k(f's_mov_b32 s34, {f32(1.0 / 1024)}')
    k(f'v_mov_b32 v12, {f32(1e-5)}')
    for r in range(2):
        k(f'v_fma_f32 v{8 + 2 * r}, v{8 + 2 * r}, s34, v12')
    for r in range(2):
        k(f'v_rsq_f32 v{8 + 2 * r}, v{8 + 2 * r}')
    if post is not None:
        for r in range(2):
            k(f'v_mul_f32 v{8 + 2 * r}, s33, v{8 + 2 * r}')
    for r in range(2):
        for e in range(0, 16, 2):
            o = 56 + 16 * r + e
            k(f'v_pk_mul_f32 {P(o)}, {P(o)}, {P(8 + 2 * r)} op_sel_hi:[1,0]')
        for e in range(0, 16, 2):
            o = 56 + 16 * r + e
            k(f'v_pk_fma_f32 {P(o)}, {P(o)}, {P(24 + e)}, {P(40 + e)}')
        for d in range(8):
            o = 56 + 16 * r + 2 * d
            k(f'v_cvt_pk_bf16_f32 v{56 + 16 * r + d}, v{o}, v{o + 1}')
        k(f's_add_u32 s35, s24, {16 * r}')
        k(f's_add_u32 s36, s24, {16 * r + 16 * 131072}')
        o = 56 + 16 * r
        k(f'buffer_store_dwordx4 v[{o}:{o + 3}], v5, s[28:31], s35 offen')
        k(f'buffer_store_dwordx4 v[{o + 4}:{o + 7}], v5, s[28:31], s36 offen')
    if dbg:
        k('s_waitcnt vmcnt(0)')
        T.stamp()
        T.dump(10, 20, slot)
    k.label('end')
    k('s_endpgm')
    if pfq:
        k.label('pfw')
        k('s_mov_b32 s42, %d' % (1024 * 8192))
        k('s_mov_b32 s43, 0x00020000')
        k('s_lshl_b32 s37, s2, 13')
        k('v_lshlrev_b32 v7, 7, v2')
        k('s_waitcnt lgkmcnt(0)')
        for i in range(4):
            k(f'buffer_load_dword v8, v7, s[40:43], s37 offen')
            k(f's_add_u32 s37, s37, {256 * 8192}')
        if pfq > 1:
            k('s_bitcmp1_b32 s2, 2')
            k('s_cselect_b32 s40, s46, s44')
            k('s_cselect_b32 s41, s47, s45')
            k('s_mov_b32 s42, %d' % (32 * 524288))
            k('s_lshr_b32 s37, s2, 3')
            k('s_lshl_b32 s37, s37, 19')
            k('s_and_b32 s38, s2, 3')
            k('s_lshl_b32 s38, s38, 13')
            k('s_add_u32 s37, s37, s38')
            k('buffer_load_dword v8, v7, s[40:43], s37 offen')
        k('s_barrier')
        k('s_endpgm')
    return k
```

```python
from common import *
import math


def r4(f, b):
    return f'{f}[{b}:{b + 3}]'


def mf(d, a, b, c):
    return f'v_mfma_f32_16x16x32_bf16 {d}, {a}, {b}, {c}'


def _cls(t):
    if t.startswith('s_'):
        return 0
    if t.startswith(('ds_', 'buffer_', 'global_')):
        return 1
    return 2


def lane_decomp(k):
    k('v_lshrrev_b32 v2, 6, v0')
    k('v_and_b32 v1, 63, v0')
    k('v_readfirstlane_b32 s30, v2')
    k('v_and_b32 v2, 15, v1')
    k('v_lshrrev_b32 v3, 4, v1')


def mainloop(k, NST, R, D, NT, MT, KS, WB, PD, acc, wfrag, afrag, wread, dma_ops, act_ops, adv_ops, T=None, need_lgkm=True, pf=None):
    assert NST % R == 0
    nv = lambda ops: sum(1 for o in ops if o.startswith('buffer_'))
    per_stage = dma_ops(0) + act_ops(0) + adv_ops
    ndma, nact = nv(dma_ops(0)), nv(act_ops(0))
    npf = lambda st: (nv(pf[2]) if (pf and st % pf[0] == 0) else 0)
    if pf:
        for _ in range(pf[1]):
            for o in pf[2]:
                k(o)
    for st in range(D):
        for o in dma_ops(st % R) + act_ops(st % R) + adv_ops:
            k(o)
    yield 'after_issue'
    k(f's_waitcnt vmcnt({min(63, nact + (D - 1) * (ndma + nact))})')
    k('s_barrier')
    if T: T.stamp()
    for g in range(PD):
        for s in range(KS):
            for h in range(2):
                k(wread(g, s, h, 0, g % WB))
    k('s_mov_b32 s34, 0')
    k('.p2align 6')
    k.label('loop')
    GL = MT * KS
    BG = NT - PD + (1 if need_lgkm else 0)
    assert (NT * R) % WB == 0
    for st in range(R):
        gaps = {}

        def put(g, op):
            gaps.setdefault(g, []).append(op)
        M = []
        pend = []
        busy = set()
        for nt in range(NT):
            G = st * NT + nt
            tgt = nt + PD
            rd = [wread(tgt % NT, s, h, (st + tgt // NT) % R, (G + PD) % WB) for s in range(KS) for h in range(2)]
            if tgt >= NT and nt < BG:
                pend += rd
                rd = []
            elif tgt >= NT:
                rd = pend + rd
                pend = []
            first = 1 if nt == BG else 0
            step = 1 if len(rd) * 2 > GL - first else 2
            for i, r in enumerate(rd):
                g = nt * GL + min(first + i * step, GL - 1)
                put(g, r)
                busy.add(g)
            for mt in range(MT):
                for s in range(KS):
                    d = acc(nt, mt)
                    M.append(mf(d, wfrag(G % WB, s), afrag(st, mt, s), d))
        assert not pend
        side = dma_ops((st + D) % R) + act_ops((st + D) % R) + adv_ops
        if pf and st % pf[0] == 0:
            side = pf[2] + side
        limit = NT * GL - 4
        free = [g for g in range(limit) if g not in busy and g not in (BG * GL - 1, BG * GL)]
        nvm = nv(side)
        if len(free) < 2 * nvm:
            free = [g for g in range(limit) if g not in (BG * GL - 1, BG * GL)]
        pos = [free[1 + (i * (len(free) - 1)) // nvm] for i in range(nvm)]
        vi = 0
        for i, o in enumerate(side):
            if o.startswith('buffer_'):
                put(pos[vi], o)
                vi += 1
            else:
                g = pos[vi] - 1 if vi < nvm else pos[-1] + 1
                if vi > 0:
                    g = max(g, pos[vi - 1] + (1 if vi >= nvm else 0))
                    if g == pos[vi - 1]:
                        put(g, ('late', o))
                        continue
                put(g, o)
        nbefore = sum(1 for p in pos if p < BG * GL - 1) - npf(st)
        assert D >= 2 and nbefore >= 0
        w = f's_waitcnt vmcnt({min(63, nact + (D - 2) * (ndma + nact) + nbefore)})' + (' lgkmcnt(0)' if need_lgkm else '')
        put(BG * GL - 1, w)
        put(BG * GL, 's_barrier')
        if st == R - 1:
            put(NT * GL - 3, 's_add_u32 s34, s34, 1')
            put(NT * GL - 2, f's_cmp_lt_u32 s34, {NST // R}')
        for i, m in enumerate(M):
            k(m)
            ops = gaps.get(i, [])
            early = sorted([o for o in ops if not isinstance(o, tuple)], key=_cls)
            for o in early:
                k(o)
            for o in ops:
                if isinstance(o, tuple):
                    k(o[1])
    k(f's_cbranch_scc1 {k.L("loop")}')
    if T: T.stamp()


def gen_gateup(dbg=False, cpf=True, stflag='sc1'):
    k = Kernel('gateup_kernel', vgprs=256, agprs=256, sgprs=96, grid=224, block=256, lds=128 * 1024)
    T = Stamper(k, dbg)
    k('s_cmp_ge_u32 s2, 224')
    k(f's_cbranch_scc1 {k.L("end")}')
    T.start()
    k(f's_load_dwordx4 s[4:7], s[0:1], {B_WG}')
    k(f's_load_dwordx2 s[44:45], s[0:1], {D_WS}')
    if cpf:
        code_prefetch(k, 88, 60, 61, 0, 256, 32768)
    lane_decomp(k)
    k('s_and_b32 s40, s2, 7')
    k('s_lshr_b32 s41, s2, 3')
    k('s_and_b32 s42, s40, 1')
    k('s_lshl_b32 s42, s42, 2')
    k('s_and_b32 s43, s41, 3')
    k('s_add_u32 s42, s42, s43')
    k('s_lshr_b32 s43, s40, 1')
    k('s_mul_i32 s43, s43, 7')
    k('s_lshr_b32 s46, s41, 2')
    k('s_add_u32 s43, s43, s46')
    k('s_lshl_b32 s46, s43, 8')
    k('s_lshl_b32 s33, s30, 12')
    V_WD, V_HD, V_WA = 8, 12, 16
    k('s_mul_i32 s47, s30, %d' % (16 * 7168))
    k('s_movk_i32 s48, 7168')
    k('v_mul_lo_u32 v4, v3, s48')
    k('v_add_u32 v4, s47, v4')
    for j in range(4):
        k(f'v_add_u32 v5, {4 * (j >> 1)}, v3')
        k('v_lshlrev_b32 v5, 1, v5')
        k('v_xor_b32 v5, v5, v2')
        k('v_lshl_add_u32 v5, v5, 4, v4')
        k(f'v_add_u32 v{V_WD + j}, {4 * j * 7168 - 1024 * j}, v5')
    k(f'v_lshlrev_b32 v{V_HD}, 4, v1')
    k('s_waitcnt lgkmcnt(0)')
    srd(k, 8, 4, 's46', 1024 * 7168 - 27 * 256)
    srd(k, 12, 6, 's46', 1024 * 7168 - 27 * 256)
    srd(k, 16, 44, WS_H2, 2048 * 2048)
    srd(k, 20, 44, WS_ACT, 2048 * 7168)
    k('s_lshl_b32 s47, s42, 2')
    k('s_add_u32 s47, s47, s30')
    k('s_lshl_b32 s47, s47, 12')
    k('s_mov_b32 s31, 0')
    k('s_mov_b32 s32, s47')

    def dma_ops(slot):
        ops = []
        for mat in range(2):
            ops.append(f's_add_u32 m0, s33, {mat * 65536 + slot * 16384}')
            for j in range(4):
                ops.append(f'buffer_load_dwordx4 v{V_WD + j}, s[{8 + 4 * mat}:{11 + 4 * mat}], s31 offen offset:{j * 1024} lds')
        return ops

    def afrag(slot, mt, s):
        return r4('a', 128 + slot * 32 + (mt * 2 + s) * 4)

    def act_ops(slot):
        ops = []
        for s in range(2):
            for mt in range(4):
                ops.append(f'buffer_load_dwordx4 {afrag(slot, mt, s)}, v{V_HD}, s[16:19], s32 offen offset:{mt * 1024}')
            ops.append('s_add_u32 s32, s32, 131072')
        return ops
    adv = [f's_add_u32 s31, s31, {64 * 7168}']

    def acc(nt, mt):
        return r4('v', 128 + (nt * 4 + mt) * 4) if nt < 8 else r4('a', ((nt - 8) * 4 + mt) * 4)

    def wfrag(buf, s):
        return r4('v', 64 + buf * 8 + s * 4)

    def wread(nt, s, h, slot, buf):
        b = 64 + buf * 8 + s * 4 + h * 2
        return f'ds_read_b64_tr_b16 v[{b}:{b + 1}], v{V_WA + nt} offset:{slot * 16384 + s * 8192 + h * 1024}'

    gen = mainloop(k, 16, 4, 3, 16, 4, 2, 4, 3, acc, wfrag, afrag, wread, dma_ops, act_ops, adv, T)
    next(gen)
    k('v_lshrrev_b32 v4, 2, v2')
    k('v_and_b32 v5, 1, v3')
    k('v_lshl_or_b32 v5, v5, 2, v4')
    k('v_lshlrev_b32 v5, 1, v5')
    k('v_bfe_u32 v6, v2, 1, 1')
    k('v_xor_b32 v5, v5, v6')
    k('v_lshl_add_u32 v4, v3, 3, v4')
    k('v_lshlrev_b32 v4, 8, v4')
    k('v_and_b32 v6, 1, v2')
    k('v_lshl_add_u32 v4, v6, 3, v4')
    for nt in range(8):
        k(f'v_xor_b32 v6, {2 * nt}, v5')
        k(f'v_lshl_add_u32 v{V_WA + nt}, v6, 4, v4')
        k(f'v_add_u32 v{V_WA + 8 + nt}, 0x10000, v{V_WA + nt}')
    for i in range(128):
        k(f'v_mov_b32 v{128 + i}, 0')
        k(f'v_accvgpr_write_b32 a{i}, 0')
    for _ in gen:
        pass
    c0 = -2.0 * math.sqrt(2.0 / math.pi) * math.log2(math.e)
    c1 = c0 * 0.044715
    k(f'v_mov_b32 v8, {f32(c0)}')
    k(f'v_mov_b32 v9, {f32(c0)}')
    k(f'v_mov_b32 v10, {f32(c1)}')
    k(f'v_mov_b32 v11, {f32(c1)}')
    k('v_mov_b32 v14, 1.0')
    k('v_mov_b32 v15, 1.0')
    k('s_lshl_b32 s48, s43, 19')
    k('s_add_u32 s48, s48, s47')
    for j in range(4):
        k(f's_add_u32 s49, s48, {j * 131072}')
        for mt in range(4):
            tb = 32 + ((j * 4 + mt) & 1) * 24
            G = [128 + ((2 * j + h) * 4 + mt) * 4 + r for h in range(2) for r in range(4)]
            U = [((2 * j + h) * 4 + mt) * 4 + r for h in range(2) for r in range(4)]
            P = lambda b: f'v[{b}:{b + 1}]'
            for e in range(8):
                k(f'v_accvgpr_read_b32 v{tb + e}, a{U[e]}')
            for e in range(0, 8, 2):
                k(f'v_pk_mul_f32 {P(tb + 8 + e)}, {P(G[e])}, {P(G[e])}')
            for e in range(0, 8, 2):
                k(f'v_pk_fma_f32 {P(tb + 8 + e)}, {P(tb + 8 + e)}, v[10:11], v[8:9]')
            for e in range(0, 8, 2):
                k(f'v_pk_mul_f32 {P(tb + 8 + e)}, {P(tb + 8 + e)}, {P(G[e])}')
            for e in range(8):
                k(f'v_exp_f32 v{tb + 8 + e}, v{tb + 8 + e}')
            for e in range(0, 8, 2):
                k(f'v_pk_mul_f32 {P(tb + e)}, {P(tb + e)}, {P(G[e])}')
            for e in range(0, 8, 2):
                k(f'v_pk_add_f32 {P(tb + 8 + e)}, {P(tb + 8 + e)}, v[14:15]')
            for e in range(8):
                k(f'v_rcp_f32 v{tb + 8 + e}, v{tb + 8 + e}')
            for e in range(0, 8, 2):
                k(f'v_pk_mul_f32 {P(tb + e)}, {P(tb + e)}, {P(tb + 8 + e)}')
            for e in range(4):
                k(f'v_cvt_pk_bf16_f32 v{tb + 16 + e}, v{tb + 2 * e}, v{tb + 2 * e + 1}')
            k(f'buffer_store_dwordx4 {r4("v", tb + 16)}, v{V_HD}, s[20:23], s49 offen offset:{mt * 1024} {stflag}')
    if dbg:
        k('s_waitcnt vmcnt(0)')
    T.stamp()
    T.dump(44, 30, 2)
    k.label('end')
    k('s_endpgm')
    return k


def gen_small(name, K, w_arg, act_off, res_arg, res_off, out_arg, out_off, gate_seg, R, D, slot_dbg, dbg=False, pfd=0, same=False):
    NST = K // 128
    EPI = R * 16384
    k = Kernel(name, vgprs=160, agprs=256, sgprs=96, grid=256, block=256, lds=R * 16384 + 4 * 8704 if R * 16384 + 4 * 8704 <= 163840 else R * 16384)
    alias_epi = R * 16384 + 4 * 8704 > 163840
    if alias_epi:
        EPI = 0
    T = Stamper(k, dbg)
    k('s_cmp_ge_u32 s2, 256')
    k(f's_cbranch_scc1 {k.L("end")}')
    T.start()
    k(f's_load_dwordx2 s[4:5], s[0:1], {w_arg}')
    k(f's_load_dwordx2 s[6:7], s[0:1], {res_arg}')
    k(f's_load_dwordx2 s[28:29], s[0:1], {out_arg}')
    k(f's_load_dwordx2 s[44:45], s[0:1], {D_WS}')
    lane_decomp(k)
    k('s_and_b32 s40, s2, 7')
    k('s_lshr_b32 s41, s2, 3')
    k('s_lshr_b32 s42, s40, 1')
    k('s_lshl_b32 s42, s42, 2')
    k('s_and_b32 s43, s41, 3')
    k('s_add_u32 s42, s42, s43')
    k('s_and_b32 s43, s40, 1')
    k('s_lshl_b32 s43, s43, 3')
    k('s_lshr_b32 s46, s41, 2')
    k('s_add_u32 s43, s43, s46')
    if same:
        k('s_mov_b32 s42, 0')
        k('s_mov_b32 s43, 0')
    k('s_lshl_b32 s46, s43, 7')
    k('s_lshl_b32 s33, s30, 12')
    V_WD, V_HD, V_WA = 8, 12, 16
    k('v_lshrrev_b32 v4, 3, v1')
    k('v_lshlrev_b32 v4, 11, v4')
    k('s_lshl_b32 s47, s30, 16')
    k('v_add_u32 v4, s47, v4')
    k('v_and_b32 v5, 7, v1')
    k('v_lshlrev_b32 v6, 1, v3')
    k('v_xor_b32 v5, v5, v6')
    k('v_lshl_add_u32 v4, v5, 4, v4')
    for j in range(4):
        k(f'v_add_u32 v{V_WD + j}, {j * (16384 - 1024)}, v4')
    k(f'v_lshlrev_b32 v{V_HD}, 4, v1')
    k('s_waitcnt lgkmcnt(0)')
    if dbg == 2: T.stamp()
    srd(k, 8, 4, 's46', K * 2048 - 15 * 128)
    srd(k, 16, 44, act_off, 2048 * K * 2)
    srd(k, 12, 6, res_off, 2048 * 2048)
    srd(k, 20, 28, out_off, 2048 * 2048)
    srd(k, 24, 44, WS_MOD, 6144 * 4)
    k('s_lshl_b32 s47, s42, 2')
    k('s_add_u32 s47, s47, s30')
    k('s_lshl_b32 s32, s47, 11')
    k('s_mov_b32 s31, 0')

    def dma_ops(slot):
        ops = [f's_add_u32 m0, s33, {slot * 16384}']
        for j in range(4):
            ops.append(f'buffer_load_dwordx4 v{V_WD + j}, s[8:11], s31 offen offset:{j * 1024} lds')
        return ops

    def afrag(slot, mt, s):
        return r4('a', slot * 32 + (mt * 4 + s) * 4)

    def act_ops(slot):
        ops = []
        for s in range(4):
            for mt in range(2):
                ops.append(f'buffer_load_dwordx4 {afrag(slot, mt, s)}, v{V_HD}, s[16:19], s32 offen offset:{mt * 1024}')
            ops.append('s_add_u32 s32, s32, 131072')
        return ops
    adv = [f's_add_u32 s31, s31, {128 * 2048}']

    def acc(nt, mt):
        return r4('v', 128 + (nt * 2 + mt) * 4)

    def wfrag(buf, s):
        return r4('v', 64 + buf * 16 + s * 4)

    def wread(nt, s, h, slot, buf):
        b = 64 + buf * 16 + s * 4 + h * 2
        return f'ds_read_b64_tr_b16 v[{b}:{b + 1}], v{V_WA + nt + 4 * (slot // 4)} offset:{(slot % 4) * 16384 + s * 4096 + h * 2048}'

    pf = None
    if pfd:
        k('s_cmp_lt_u32 s41, 16')
        k('s_cselect_b32 s52, s16, s4')
        k('s_cselect_b32 s53, s17, s5')
        k(f's_mov_b32 s54, {K * 2048}')
        k(f's_cselect_b32 s54, {2048 * K * 2}, s54')
        k('s_mov_b32 s55, 0x00020000')
        k(f's_mov_b32 s57, {128 * 2048}')
        k(f's_cselect_b32 s57, {4 * 131072}, s57')
        k('s_lshr_b32 s58, s41, 2')
        k('s_lshl_b32 s58, s58, 17')
        k('s_lshr_b32 s59, s40, 1')
        k('s_lshl_b32 s59, s59, 15')
        k('s_add_u32 s58, s58, s59')
        k('s_and_b32 s59, s41, 3')
        k('s_lshl_b32 s59, s59, 13')
        k('s_add_u32 s58, s58, s59')
        k('s_and_b32 s59, s41, 15')
        k('s_lshl_b32 s59, s59, 14')
        k('s_and_b32 s60, s40, 1')
        k('s_lshl_b32 s60, s60, 10')
        k('s_add_u32 s59, s59, s60')
        k('s_cmp_lt_u32 s41, 16')
        k('s_cselect_b32 s56, s58, s59')
        k('s_mul_i32 s58, s57, s30')
        k('s_add_u32 s56, s56, s58')
        k('s_lshl_b32 s57, s57, 2')
        k('v_lshlrev_b32 v28, 7, v1')
        k('v_lshrrev_b32 v4, 3, v1')
        k('v_lshlrev_b32 v4, 11, v4')
        k('v_and_b32 v5, 7, v1')
        k('v_lshl_add_u32 v4, v5, 7, v4')
        k('s_cmp_lt_u32 s41, 16')
        k('s_cselect_b64 vcc, -1, 0')
        k('v_cndmask_b32 v28, v4, v28, vcc')
        one = ['buffer_load_dword v29, v28, s[52:55], s56 offen', 's_add_u32 s56, s56, s57']
        if R % 4 == 0:
            pf = (4, pfd // 4, one)
        else:
            pf = (R, (pfd + 7) // 8, one + one)
    gen = mainloop(k, NST, R, D, 4, 2, 4, 4, 2, acc, wfrag, afrag, wread, dma_ops, act_ops, adv, T, need_lgkm=(R < D + 2), pf=pf)
    next(gen)
    if dbg == 2: T.stamp()
    k('v_lshrrev_b32 v4, 2, v2')
    k('v_lshl_add_u32 v4, v3, 2, v4')
    k('v_and_b32 v5, 6, v4')
    k('v_bfe_u32 v6, v2, 1, 1')
    k('v_xor_b32 v5, v5, v6')
    k('v_lshlrev_b32 v4, 7, v4')
    k('v_and_b32 v6, 1, v2')
    k('v_lshl_add_u32 v4, v6, 3, v4')
    for nt in range(4):
        k(f'v_xor_b32 v6, {2 * nt}, v5')
        k(f'v_lshl_add_u32 v{V_WA + nt}, v6, 4, v4')
        k(f'v_add_u32 v{V_WA + 4 + nt}, 0x10000, v{V_WA + nt}')
    for i in range(32):
        k(f'v_mov_b32 v{128 + i}, 0')
    k(f's_mul_i32 s48, s30, 8704')
    k(f's_add_u32 s48, s48, {EPI}')
    k('s_movk_i32 s49, 272')
    k('v_mul_lo_u32 v24, v2, s49')
    k('v_lshl_add_u32 v24, v3, 4, v24')
    k('v_add_u32 v24, s48, v24')
    k('v_lshrrev_b32 v4, 3, v1')
    k('v_and_b32 v5, 7, v1')
    k('v_mul_lo_u32 v25, v4, s49')
    k('v_lshl_add_u32 v25, v5, 5, v25')
    k('v_add_u32 v25, s48, v25')
    k('v_lshlrev_b32 v26, 11, v4')
    k('v_lshl_add_u32 v26, v5, 4, v26')
    k('v_lshlrev_b32 v27, 5, v5')
    k('s_lshl_b32 s50, s47, 16')
    k('s_add_u32 s50, s50, s46')
    k('s_lshl_b32 s51, s43, 8')
    k(f's_add_u32 s51, s51, {gate_seg * 4096}')
    if dbg == 2: T.stamp()
    for _ in gen:
        pass
    for j in range(4):
        k(f's_add_u32 s52, s50, {j * 16384}')
        k(f'buffer_load_dwordx4 {r4("v", 32 + 4 * j)}, v26, s[12:15], s52 offen')
    k('buffer_load_dwordx4 v[48:51], v27, s[24:27], s51 offen')
    k('buffer_load_dwordx4 v[52:55], v27, s[24:27], s51 offen offset:16')
    if alias_epi:
        k('s_waitcnt vmcnt(6) lgkmcnt(0)')
        k('s_barrier')
    for nt in range(4):
        for mt in range(2):
            k(f'ds_write_b128 v24, {acc(nt, mt)} offset:{mt * 16 * 272 + nt * 64}')
    k('s_waitcnt lgkmcnt(0)')
    for j in range(4):
        k(f'ds_read_b128 {r4("v", 64 + 8 * j)}, v25 offset:{j * 8 * 272}')
        k(f'ds_read_b128 {r4("v", 68 + 8 * j)}, v25 offset:{j * 8 * 272 + 16}')
    for j in range(4):
        for d in range(4):
            x = 32 + 4 * j + d
            a = 64 + 8 * j + 2 * d
            k(f'v_lshlrev_b32 v4, 16, v{x}')
            k(f'v_and_b32 v5, 0xffff0000, v{x}')
            k(f'v_fma_f32 v4, v{a}, v{48 + 2 * d}, v4')
            k(f'v_fma_f32 v5, v{a + 1}, v{49 + 2 * d}, v5')
            k(f'v_cvt_pk_bf16_f32 v{x}, v4, v5')
        k(f's_add_u32 s52, s50, {j * 16384}')
        k(f'buffer_store_dwordx4 {r4("v", 32 + 4 * j)}, v26, s[20:23], s52 offen')
    if dbg:
        k('s_waitcnt vmcnt(0)')
    T.stamp()
    T.dump(44, 30, slot_dbg)
    k.label('end')
    k('s_endpgm')
    return k
```

```python
from common import *
from k_gemm import r4, mf, _cls, lane_decomp
import math

WS_XCH = 48 << 20
WS_FLG = 60 << 20


class Unrolled:
    def __init__(self, k, groups, R, MT, KS, WB, PD, acc, wfrag, afrag, wread, dma_ops, act_ops, first_zero=True):
        self.__dict__.update(locals())
        self.GL = MT * KS
        self.vm = []
        self.gaps = {}

    def put(self, g, op):
        self.gaps.setdefault(g, []).append(op)

    def vwait(self, tag):
        last = max(i for i, t in enumerate(self.vm) if t == tag)
        return min(63, len(self.vm) - 1 - last)

    def emit_ops(self, ops, tag):
        for o in ops:
            self.k(o)
            if o.startswith('buffer_'):
                self.vm.append(tag)

    def plan(self, pro_stages=1, spacing=4, fast=2):
        groups, PD, GL, R = self.groups, self.PD, self.GL, self.R
        NG = len(groups)
        stages = sorted({s for s, _ in groups})
        first = {s: min(i for i, (a, _) in enumerate(groups) if a == s) for s in stages}
        last = {s: max(i for i, (a, _) in enumerate(groups) if a == s) for s in stages}
        self.bar = {s: max(first[s] - PD, 0) for s in stages}
        bar_groups = sorted(self.bar[s] for s in stages if s > 0)
        busy = set()
        for i in range(NG):
            t = i + PD
            if t >= NG:
                continue
            s, nt = groups[t]
            rd = [self.wread(nt, q, h, s % R, t % self.WB) for q in range(self.KS) for h in range(2)]
            f = 1 if i in bar_groups else 0
            step = 1 if len(rd) * 2 > GL - f else 2
            for j, r in enumerate(rd):
                g = i * GL + min(f + j * step, GL - 1)
                self.put(g, r)
                busy.add(g)
        self.busy = busy
        q = []
        for s in stages:
            if s < R:
                e_w = e_a = -1
            else:
                e_w = min(b for b in bar_groups if b >= last[s - R] + 1) * GL + 1
                e_a = (last[s - R] + 1) * GL
            two = [(s, 'W', e_w, self.dma_ops(s)), (s, 'A', e_a, self.act_ops(s))]
            q += two if s < R else two[::-1]
        self.pro = [x for x in q if x[0] < pro_stages]
        pos = 0
        for s, kind, e, ops in q:
            if s < pro_stages:
                continue
            pend = []
            for o in ops:
                if not o.startswith('buffer_'):
                    pend.append(o)
                    continue
                ahead = (first[s] * GL - pos) / (GL * (last[0] + 1))
                sp = fast if (ahead < 1.3 or s < R) else spacing
                pos = max(pos + sp, e, 1)
                while (pos % GL == GL - 1 and (pos // GL + 1) in bar_groups) or (pos % GL == 0 and pos // GL in bar_groups):
                    pos += 1
                self.put(pos, ('V', pend, o, (kind, s)))
                pend = []
            assert not pend
            if kind == 'W':
                assert pos < self.bar[s] * GL - 1, (s, pos, self.bar[s] * GL)
            else:
                assert pos < first[s] * GL - 1, (s, pos)
            self.slack = getattr(self, 'slack', []) + [(kind, s, (self.bar[s] if kind == 'W' else first[s]) * GL - pos)]

    def prologue_issue(self):
        for s, kind, e, ops in self.pro:
            self.emit_ops(ops, (kind, s))

    def start(self):
        k = self.k
        k(f's_waitcnt vmcnt({self.vwait(("W", 0))})')
        k('s_barrier')
        for t in range(self.PD):
            s, nt = self.groups[t]
            for q in range(self.KS):
                for h in range(2):
                    k(self.wread(nt, q, h, s % self.R, t % self.WB))

    def emit(self, g0, g1):
        k, GL = self.k, self.GL
        barat = {v: s for s, v in self.bar.items() if s > 0}
        for i in range(g0, g1):
            s, nt = self.groups[i]
            j = 0
            for mt in range(self.MT):
                for q in range(self.KS):
                    d = self.acc(nt, mt)
                    c = '0' if (self.first_zero and s == 0 and q == 0) else d
                    k(mf(d, self.wfrag(i % self.WB, q), self.afrag(s % self.R, mt, q), c))
                    g = i * GL + j
                    ops = self.gaps.get(g, [])
                    if j == GL - 1 and (i + 1) in barat:
                        k(f's_waitcnt vmcnt({self.vwait(("W", barat[i + 1]))})')
                    if j == 0 and i in barat:
                        k('s_barrier')
                    cur = [o for o in ops if isinstance(o, tuple) and o[0] == 'V']
                    nxt = [o for o in self.gaps.get(g + 1, []) if isinstance(o, tuple) and o[0] == 'V']
                    plain = sorted([o for o in ops if not isinstance(o, tuple)], key=_cls)
                    for o in plain:
                        if _cls(o) == 0:
                            k(o)
                    if not cur:
                        for o in nxt:
                            for sc in o[1]:
                                k(sc)
                    for o in plain:
                        if _cls(o) == 1:
                            k(o)
                    for o in cur:
                        self.emit_ops([o[2]], o[3])
                    if cur:
                        for o in nxt:
                            for sc in o[1]:
                                k(sc)
                    for o in plain:
                        if _cls(o) == 2:
                            k(o)
                    for o in ops:
                        if isinstance(o, tuple) and o[0] == 'raw':
                            self.emit_ops([o[1]], ('X', 0))
                    j += 1


def gen_small2(name, K, w_arg, act_off, res_arg, res_off, out_arg, out_off, gate_seg, slot_dbg, flag_idx, dbg=False,
               TS=3, spacing=3, fast=2, pro=2, stflag='', cpf=True, lateflag=True):
    KH = K // 2
    NST = KH // 128
    R = 4
    k = Kernel(name, vgprs=224, agprs=128, sgprs=96, grid=256, block=256, lds=R * 32768)
    T = Stamper(k, dbg)
    k('s_cmp_ge_u32 s2, 256')
    k(f's_cbranch_scc1 {k.L("end")}')
    T.start()
    k(f's_load_dwordx2 s[4:5], s[0:1], {w_arg}')
    k(f's_load_dwordx2 s[44:45], s[0:1], {D_WS}')
    k(f's_load_dwordx2 s[6:7], s[0:1], {res_arg}')
    k(f's_load_dwordx2 s[28:29], s[0:1], {out_arg}')
    if cpf:
        code_prefetch(k, 88, 39, 38, 0, 256, 32768)
    lane_decomp(k)
    k('s_and_b32 s39, s2, 1')
    k('s_bfe_u32 s42, s2, 0x20001')
    k('s_lshl_b32 s42, s42, 2')
    k('s_bfe_u32 s43, s2, 0x20003')
    k('s_add_u32 s42, s42, s43')
    k('s_lshr_b32 s43, s2, 5')
    k('s_lshl_b32 s46, s43, 8')
    k(f's_mul_i32 s40, s39, {KH * 2048}')
    k('s_add_u32 s40, s40, s46')
    k('s_lshl_b32 s33, s30, 13')
    V_WD, V_HD, V_WA = 8, 12, 16
    k('s_lshl_b32 s47, s30, 16')
    k('v_lshlrev_b32 v4, 11, v3')
    k('v_add_u32 v4, s47, v4')
    for j in range(4):
        k(f'v_add_u32 v5, {4 * (j & 1)}, v3')
        k('v_lshlrev_b32 v5, 1, v5')
        k('v_xor_b32 v5, v5, v2')
        k('v_lshl_add_u32 v5, v5, 4, v4')
        k(f'v_add_u32 v{V_WD + j}, {j * (8192 - 1024)}, v5')
    k(f'v_lshlrev_b32 v{V_HD}, 4, v1')
    k('s_lshl_b32 s47, s42, 2')
    k('s_add_u32 s47, s47, s30')
    k('s_lshl_b32 s32, s47, 11')
    k(f's_mul_i32 s41, s39, {(KH // 32) * 131072}')
    k('s_add_u32 s32, s32, s41')
    k('s_waitcnt lgkmcnt(0)')
    srd(k, 8, 4, 's40', KH * 2048 - 7 * 256)
    srd(k, 16, 44, act_off, 2048 * K * 2)

    def dma_ops(s):
        ops = []
        for half in range(2):
            ops.append(f's_add_u32 m0, s33, {(s % R) * 32768 + half * 4096}')
            ops.append(f's_mov_b32 s31, {s * 128 * 2048 + half * 16 * 2048}')
            for j in range(4):
                ops.append(f'buffer_load_dwordx4 v{V_WD + j}, s[8:11], s31 offen offset:{j * 1024} lds')
        return ops

    def afrag(slot, mt, q):
        return r4('a', slot * 32 + (mt * 4 + q) * 4)

    def act_ops(s):
        ops = []
        for q in range(4):
            ops.append(f's_add_u32 s35, s32, {(s * 4 + q) * 131072}')
            for mt in range(2):
                ops.append(f'buffer_load_dwordx4 {afrag(s % R, mt, q)}, v{V_HD}, s[16:19], s35 offen offset:{mt * 1024}')
        return ops

    def acc(nt, mt):
        return r4('v', 128 + (nt * 2 + mt) * 4)

    def wfrag(buf, q):
        return r4('v', 64 + buf * 16 + q * 4)

    def wread(nt, q, h, slot, buf):
        b = 64 + buf * 16 + q * 4 + h * 2
        return f'ds_read_b64_tr_b16 v[{b}:{b + 1}], v{V_WA + nt + 8 * (slot // 2)} offset:{(slot % 2) * 32768 + q * 8192 + h * 4096}'

    groups = [(s, nt) for s in range(NST - TS) for nt in range(8)]
    groups += [(s, nt) for s in range(NST - TS, NST) for nt in range(4, 8)]
    gsend = len(groups)
    groups += [(s, nt) for s in range(NST - TS, NST) for nt in range(4)]
    U = Unrolled(k, groups, R, 2, 4, 4, 2, acc, wfrag, afrag, wread, dma_ops, act_ops)
    U.plan(pro_stages=pro, spacing=spacing, fast=fast)
    if dbg: print(name, 'slack', U.slack)
    U.prologue_issue()
    srd(k, 12, 6, res_off, 2048 * 2048)
    srd(k, 20, 28, out_off, 2048 * 2048)
    srd(k, 24, 44, 0, 64 << 20)
    k('v_lshrrev_b32 v4, 2, v2')
    k('v_lshl_add_u32 v4, v3, 2, v4')
    k('v_and_b32 v5, 7, v4')
    k('v_lshlrev_b32 v5, 1, v5')
    k('v_bfe_u32 v6, v2, 1, 1')
    k('v_xor_b32 v5, v5, v6')
    k('s_lshl_b32 s48, s39, 3')
    k('v_xor_b32 v5, s48, v5')
    k('v_lshlrev_b32 v4, 8, v4')
    k('v_and_b32 v6, 1, v2')
    k('v_lshl_add_u32 v4, v6, 3, v4')
    for nt in range(8):
        k(f'v_xor_b32 v6, {2 * nt}, v5')
        k(f'v_lshl_add_u32 v{V_WA + nt}, v6, 4, v4')
        k(f'v_add_u32 v{V_WA + 8 + nt}, 0x10000, v{V_WA + nt}')
    k('s_mul_i32 s48, s30, 8704')
    k('s_movk_i32 s49, 272')
    k('v_mul_lo_u32 v32, v2, s49')
    k('v_lshl_add_u32 v32, v3, 4, v32')
    k('v_add_u32 v32, s48, v32')
    k('v_lshrrev_b32 v4, 3, v1')
    k('v_and_b32 v5, 7, v1')
    k('v_mul_lo_u32 v33, v4, s49')
    k('v_lshl_add_u32 v33, v5, 5, v33')
    k('v_add_u32 v33, s48, v33')
    k('v_lshlrev_b32 v34, 11, v4')
    k('v_lshl_add_u32 v34, v5, 4, v34')
    k('v_lshlrev_b32 v35, 5, v5')
    k('s_lshl_b32 s50, s47, 16')
    k('s_add_u32 s50, s50, s46')
    k('s_lshl_b32 s51, s39, 7')
    k('s_add_u32 s50, s50, s51')
    k('s_lshl_b32 s51, s43, 9')
    k('s_lshl_b32 s52, s39, 8')
    k('s_add_u32 s51, s51, s52')
    k(f's_add_u32 s51, s51, {gate_seg * 4096}')
    k('s_lshl_b32 s53, s2, 2')
    k('s_add_u32 s53, s53, s30')
    k('s_xor_b32 s54, s53, 4')
    k('s_lshl_b32 s55, s53, 13')
    k(f's_add_u32 s55, s55, {WS_XCH}')
    k('s_lshl_b32 s56, s54, 13')
    k(f's_add_u32 s56, s56, {WS_XCH}')
    k('s_lshl_b32 s57, s53, 6')
    k(f's_add_u32 s57, s57, {WS_FLG + flag_idx * 65536}')
    k('s_lshl_b32 s58, s54, 6')
    k(f's_add_u32 s58, s58, {WS_FLG + flag_idx * 65536}')
    k('v_mov_b32 v36, 0')
    k('v_mov_b32 v37, 1')
    U.start()
    T.stamp()
    GL = 8
    st_ops = []
    for j in range(4):
        for mt in range(2):
            i = j * 2 + mt
            if i == 4:
                st_ops.append('s_add_u32 s55, s55, 4096')
            st_ops.append(f'buffer_store_dwordx4 {acc(4 + j, mt)}, v{V_HD}, s[24:27], s55 offen offset:{(i % 4) * 1024} sc1')
    for i, o in enumerate(st_ops):
        U.put(gsend * GL + 2 + i, ('raw', o))
    gflag = min(gsend + 5, len(groups) - 2)
    if not lateflag:
        U.put(gflag * GL, 's_waitcnt vmcnt(0)')
        U.put(gflag * GL + 1, ('raw', 'buffer_store_dword v37, v36, s[24:27], s57 offen sc1'))
    else:
        gflag = gsend - 3
    rl = []
    for j in range(4):
        rl.append(f's_add_u32 s52, s50, {j * 16384}')
        rl.append(f'buffer_load_dwordx4 {r4("v", 40 + 4 * j)}, v34, s[12:15], s52 offen')
    rl.append('buffer_load_dwordx4 v[56:59], v35, s[24:27], s51 offen')
    rl.append('buffer_load_dwordx4 v[60:63], v35, s[24:27], s51 offen offset:16')
    for i, o in enumerate(rl):
        U.put(gflag * GL + 2 + i, ('raw', o))
    if dbg == 2:
        for g in range(0, len(groups), 8):
            U.emit(g, min(g + 8, len(groups)))
            if g + 8 < len(groups): T.stamp()
    else:
        U.emit(0, len(groups))
    T.stamp()
    if lateflag:
        k('s_waitcnt vmcnt(0)')
        k('buffer_store_dword v37, v36, s[24:27], s57 offen sc1')
    k('s_barrier')
    k('s_mov_b32 s59, 0')
    k.label('poll')
    k('buffer_load_dword v38, v36, s[24:27], s58 offen sc1')
    k('s_waitcnt vmcnt(0)')
    k('v_cmp_ne_u32 vcc, 1, v38')
    k(f's_cbranch_vccz {k.L("got")}')
    k('s_sleep 2')
    k('s_add_u32 s59, s59, 1')
    k('s_cmp_lt_u32 s59, 0x40000')
    k(f's_cbranch_scc1 {k.L("poll")}')
    k.label('got')
    if dbg: T.stamp()
    for i in range(8):
        if i == 4:
            k('s_add_u32 s56, s56, 4096')
        k(f'buffer_load_dwordx4 {r4("v", 192 + 4 * i)}, v{V_HD}, s[24:27], s56 offen offset:{(i % 4) * 1024} sc1')
    P = lambda b: f'v[{b}:{b + 1}]'
    for i in range(8):
        a = 128 + 4 * i
        for e in (0, 2):
            k(f'v_pk_add_f32 {P(a + e)}, {P(a + e)}, {P(192 + 4 * i + e)}')
        nt, mt = i // 2, i % 2
        k(f'ds_write_b128 v32, {r4("v", a)} offset:{mt * 16 * 272 + nt * 64}')
    k('s_waitcnt lgkmcnt(0)')
    for j in range(4):
        k(f'ds_read_b128 {r4("v", 64 + 8 * j)}, v33 offset:{j * 8 * 272}')
        k(f'ds_read_b128 {r4("v", 68 + 8 * j)}, v33 offset:{j * 8 * 272 + 16}')
    for j in range(4):
        for d in range(4):
            x = 40 + 4 * j + d
            a = 64 + 8 * j + 2 * d
            k(f'v_lshlrev_b32 v4, 16, v{x}')
            k(f'v_and_b32 v5, 0xffff0000, v{x}')
            k(f'v_pk_fma_f32 v[4:5], {P(a)}, {P(56 + 2 * d)}, v[4:5]')
            k(f'v_cvt_pk_bf16_f32 v{x}, v4, v5')
        k(f's_add_u32 s52, s50, {j * 16384}')
        k(f'buffer_store_dwordx4 {r4("v", 40 + 4 * j)}, v34, s[20:23], s52 offen {stflag}')
    if dbg:
        k('s_waitcnt vmcnt(0)')
    T.stamp()
    T.dump(44, 30, slot_dbg)
    k.label('end')
    k('s_endpgm')
    return k
```

```python
import re

REG_RE = re.compile(r'^(-|\|)?(abs\()?([vas])(\d+|\[(\d+):(\d+)\])\)?\|?$')


def parse_reg(tok):
    tok = tok.strip()
    if tok in ('vcc',):
        return [('s', 106), ('s', 107)]
    if tok == 'vcc_lo':
        return [('s', 106)]
    if tok == 'vcc_hi':
        return [('s', 107)]
    if tok == 'exec':
        return [('s', 126), ('s', 127)]
    if tok == 'm0':
        return [('s', 124)]
    m = REG_RE.match(tok)
    if not m:
        return []
    f = m.group(3)
    if m.group(5) is not None:
        return [(f, i) for i in range(int(m.group(5)), int(m.group(6)) + 1)]
    return [(f, int(m.group(4)))]


def split_ops(s):
    out, depth, cur = [], 0, ''
    for ch in s:
        if ch in '[(':
            depth += 1
        if ch in '])':
            depth -= 1
        if ch == ',' and depth == 0:
            out.append(cur.strip())
            cur = ''
        else:
            cur += ch
    if cur.strip():
        out.append(cur.strip())
    return out


TRANS = ('v_exp_f32', 'v_log_f32', 'v_rcp_f32', 'v_rsq_f32', 'v_sqrt_f32', 'v_sin_f32', 'v_cos_f32',
         'v_rcp_iflag_f32', 'v_exp_f16', 'v_rcp_f16')
RMW = ('v_fmac_f32', 'v_dot2c_f32_bf16', 'v_pk_fmac_f16', 'v_mac_f32', 'v_dot2c_f32_f16')


class Ins:
    __slots__ = ('text', 'op', 'ops', 'mods', 'dst', 'src', 'kind', 'label', 'target', 'srcA', 'srcB', 'srcC',
                 'passes', 'addr', 'data', 'lds', 'nwait', 'auto')

    def __init__(self, text, auto=False):
        self.text = text
        self.auto = auto
        self.label = None
        self.target = None
        self.dst = []
        self.src = []
        self.srcA = self.srcB = self.srcC = []
        self.passes = 0
        self.data = []
        self.lds = False
        self.nwait = 1
        t = text.split(';')[0].strip()
        if t.endswith(':'):
            self.kind = 'label'
            self.label = t[:-1]
            self.op = ''
            self.nwait = 0
            return
        if t.startswith('.') or t == '':
            self.kind = 'dir'
            self.op = ''
            self.nwait = 0
            return
        parts = t.split(None, 1)
        op = parts[0]
        for suf in ('_e32', '_e64', '_dpp', '_sdwa'):
            if op.endswith(suf):
                op = op[:-len(suf)]
        self.op = op
        rest = parts[1] if len(parts) > 1 else ''
        ops = split_ops(rest)
        mods = []
        if ops:
            last = ops[-1].split()
            ops[-1] = last[0]
            mods = last[1:]
        self.ops = ops
        self.mods = mods
        R = [parse_reg(o) for o in ops]
        if op.startswith('v_mfma'):
            self.kind = 'mfma'
            self.dst = R[0]
            self.srcA, self.srcB, self.srcC = R[1], R[2], R[3]
            self.src = R[1] + R[2] + R[3]
            self.passes = 8 if '32x32x16' in op else 4
        elif op.startswith('v_'):
            self.kind = 'valu'
            if op.startswith('v_cmp'):
                self.dst = R[0]
                self.src = sum(R[1:], [])
            elif op.startswith('v_permlane') and 'swap' in op:
                self.dst = R[0] + R[1]
                self.src = R[0] + R[1]
            elif op in ('v_add_co_u32', 'v_sub_co_u32', 'v_addc_co_u32', 'v_subb_co_u32', 'v_subrev_co_u32'):
                self.dst = R[0] + R[1]
                self.src = sum(R[2:], [])
            elif op == 'v_nop':
                pass
            else:
                self.dst = R[0]
                self.src = sum(R[1:], [])
                if op in RMW:
                    self.src = self.src + R[0]
                if 'dpp' in parts[0] or any(m.startswith(('row_', 'quad_perm', 'wave_')) for m in mods):
                    self.src = self.src + R[0]
                if op == 'v_cndmask_b32' and len(ops) == 3:
                    self.src = self.src + parse_reg('vcc')
        elif op.startswith('ds_'):
            self.kind = 'ds'
            if op.startswith(('ds_read', 'ds_bpermute', 'ds_permute', 'ds_swizzle')):
                self.dst = R[0]
                self.src = sum(R[1:], [])
            else:
                self.src = sum(R, [])
                self.data = sum(R[1:], [])
        elif op.startswith(('buffer_', 'global_')):
            self.kind = 'vmem'
            if op in ('buffer_wbl2', 'buffer_inv'):
                pass
            elif 'lds' in mods or op.startswith('global_load_lds'):
                self.lds = True
                self.src = sum(R, []) + parse_reg('m0')
            elif '_load' in op:
                self.dst = R[0]
                self.src = sum(R[1:], [])
            elif op.startswith('buffer_store'):
                self.data = R[0]
                self.src = sum(R, [])
            elif op.startswith('global_store'):
                self.data = R[1]
                self.src = sum(R, [])
            elif 'atomic' in op:
                if op.startswith('buffer'):
                    self.src = sum(R, [])
                    if 'sc0' in mods:
                        self.dst = R[0]
                else:
                    if 'sc0' in mods:
                        self.dst = R[0]
                        self.src = sum(R[1:], [])
                    else:
                        self.src = sum(R, [])
        elif op.startswith('s_'):
            if op.startswith(('s_load', 's_buffer_load', 's_memtime', 's_memrealtime', 's_atomic')):
                self.kind = 'smem'
                self.dst = R[0]
                self.src = sum(R[1:], [])
            elif op in ('s_branch',) or op.startswith('s_cbranch'):
                self.kind = 'branch'
                self.target = ops[0]
                if 'vcc' in op:
                    self.src = parse_reg('vcc')
            elif op == 's_call_b64':
                self.kind = 'call'
                self.target = ops[1]
                self.dst = R[0]
            elif op == 's_setpc_b64':
                self.kind = 'ret'
                self.src = R[0]
            elif op == 's_waitcnt':
                self.kind = 'wait'
            elif op == 's_nop':
                self.kind = 'nop'
                self.nwait = int(ops[0], 0) + 1
            elif op in ('s_barrier', 's_endpgm', 's_setprio', 's_sleep'):
                self.kind = 'sctl'
            elif op.startswith(('s_cmp', 's_bitcmp')):
                self.kind = 'salu'
                self.src = sum(R, [])
            else:
                self.kind = 'salu'
                self.dst = R[0]
                self.src = sum(R[1:], [])
                if 'saveexec' in op:
                    self.dst = self.dst + parse_reg('exec')
        else:
            raise ValueError('unknown instr ' + text)

    def waitvals(self):
        vm = lg = None
        m = re.search(r'vmcnt\((\d+)\)', self.text)
        if m:
            vm = int(m.group(1))
        m = re.search(r'lgkmcnt\((\d+)\)', self.text)
        if m:
            lg = int(m.group(1))
        return vm, lg


def ov(a, b):
    return bool(set(a) & set(b))


def required(p, c):
    n = 0
    isv = lambda regs: [r for r in regs if r[0] in 'va']
    iss = lambda regs: [r for r in regs if r[0] == 's']
    if p.kind == 'valu':
        pv = isv(p.dst)
        ps = iss(p.dst)
        if c.kind == 'mfma' and ov(pv, c.src):
            n = max(n, 2)
        if c.kind == 'valu':
            if p.op in TRANS and ov(pv, c.src):
                n = max(n, 1)
            if c.op.startswith('v_permlane') and ov(pv, c.src):
                n = max(n, 2)
            if c.op in ('v_readlane_b32', 'v_readfirstlane_b32') and ov(pv, c.src):
                n = max(n, 1)
            if ('dpp' in c.text or 'row_' in c.text or 'quad_perm' in c.text) and ov(pv, c.src):
                n = max(n, 2)
            if ps and ov(ps, c.src):
                n = max(n, 4 if c.op in ('v_readlane_b32', 'v_writelane_b32') else 2)
            if ('sdwa' in p.text or 'op_sel' in p.text or 'dst_sel' in p.text) and (ov(pv, c.src) or ov(pv, c.dst)):
                n = max(n, 1)
        if c.kind == 'vmem' and ps and ov(ps, c.src):
            n = max(n, 5)
        if c.kind in ('salu', 'smem') and ps and ov(ps, c.src):
            n = max(n, 1)
        if ov(ps, parse_reg('exec')):
            if c.kind == 'mfma':
                n = max(n, 4)
            if c.kind == 'valu':
                n = max(n, 5)
    elif p.kind == 'mfma':
        big = p.passes == 8
        if c.kind == 'mfma':
            if ov(p.dst, c.srcC):
                if not (c.srcC == p.dst and c.passes == p.passes):
                    n = max(n, 10 if big else 6)
            if ov(p.dst, c.srcA) or ov(p.dst, c.srcB):
                n = max(n, 12 if big else 8)
            if ov(p.dst, c.dst) and not ov(p.dst, c.srcC):
                n = max(n, 10 if big else 6)
        elif c.kind in ('valu', 'vmem', 'ds'):
            if ov(p.dst, c.src) or ov(p.dst, c.dst):
                n = max(n, 12 if big else 8)
            if c.kind == 'valu' and ov(p.srcC, c.dst):
                n = max(n, 7 if big else 3)
    elif p.kind == 'salu':
        if ov(p.dst, parse_reg('m0')) and c.kind == 'vmem' and c.lds:
            n = max(n, 1)
    elif p.kind == 'vmem':
        if p.data and len(p.data) >= 3:
            if c.kind == 'valu' and ov(p.data, c.dst):
                n = max(n, 2)
            elif ov(p.data, c.dst):
                n = max(n, 1)
    return n


class Kernel:
    def __init__(self, name, vgprs=256, agprs=0, sgprs=96, grid=1, block=256, lds=0):
        self.name = name
        self.ins = []
        self.vgprs, self.agprs, self.sgprs = vgprs, agprs, sgprs
        self.grid, self.block, self.lds = grid, block, lds
        self.uid = 0

    def __call__(self, text):
        for line in text.split('\n'):
            line = line.strip()
            if line:
                self.ins.append(Ins(line))

    def L(self, name):
        return f'L_{self.name}_{name}'

    def label(self, name):
        self.ins.append(Ins(self.L(name) + ':'))

    def newlabel(self, base='x'):
        self.uid += 1
        return f'{base}{self.uid}'

    def _cfg(self):
        ins = self.ins
        labels = {i.label: k for k, i in enumerate(ins) if i.kind == 'label'}
        succ = [[] for _ in ins]
        calls = [k for k, i in enumerate(ins) if i.kind == 'call']
        for k, i in enumerate(ins):
            if i.kind == 'branch':
                succ[k].append(labels[i.target])
                if i.op != 's_branch' and k + 1 < len(ins):
                    succ[k].append(k + 1)
            elif i.kind == 'call':
                succ[k].append(labels[i.target])
            elif i.kind == 'ret':
                for c in calls:
                    if ins[c].dst == i.src:
                        succ[k].append(c + 1)
            elif i.op == 's_endpgm':
                pass
            elif k + 1 < len(ins):
                succ[k].append(k + 1)
        pred = [[] for _ in ins]
        for k, s in enumerate(succ):
            for t in s:
                pred[t].append(k)
        return succ, pred

    def insert_waits(self):
        changed = True
        rounds = 0
        while changed:
            rounds += 1
            assert rounds < 200
            changed = False
            ins = self.ins
            succ, pred = self._cfg()
            state_in = [None] * len(ins)
            state_in[0] = ((), (), False)
            work = [0]
            need = {}
            visits = 0

            def merge(a, b):
                def m(x, y):
                    n = max(len(x), len(y))
                    x2 = (frozenset(),) * (n - len(x)) + x
                    y2 = (frozenset(),) * (n - len(y)) + y
                    return tuple(p | q for p, q in zip(x2, y2))
                return (m(a[0], b[0]), m(a[1], b[1]), a[2] or b[2])

            while work:
                k = work.pop()
                visits += 1
                assert visits < 2000000
                vm, lg, smem = state_in[k]
                i = ins[k]
                touched = set(i.src) | set(i.dst)
                nv = nl = None
                if touched and i.kind not in ('label', 'dir', 'wait'):
                    for pos, regs in enumerate(vm):
                        if regs & touched:
                            if i.kind == 'vmem' and not (regs & set(i.src)):
                                continue
                            nv = len(vm) - 1 - pos
                    for pos, regs in enumerate(lg):
                        if regs & touched:
                            if i.kind == 'ds' and not smem and not (regs & set(i.src)):
                                continue
                            nl = len(lg) - 1 - pos
                    if nl is not None and smem:
                        nl = 0
                if nv is not None or nl is not None:
                    o = need.get(k, (None, None))
                    mv = nv if o[0] is None else (o[0] if nv is None else min(o[0], nv))
                    ml = nl if o[1] is None else (o[1] if nl is None else min(o[1], nl))
                    need[k] = (mv, ml)
                    if nv is not None:
                        vm = vm[len(vm) - min(nv, 63):] if min(nv, 63) else ()
                    if nl is not None:
                        lg = lg[len(lg) - min(nl, 15):] if min(nl, 15) else ()
                        if nl == 0:
                            smem = False
                if i.kind == 'wait':
                    wv, wl = i.waitvals()
                    if wv is not None and len(vm) > wv:
                        vm = vm[len(vm) - wv:] if wv else ()
                    if wl is not None and len(lg) > wl:
                        if smem and wl > 0:
                            pass
                        else:
                            lg = lg[len(lg) - wl:] if wl else ()
                    if wl == 0:
                        smem = False
                elif i.kind == 'vmem':
                    vm = vm + (frozenset(i.dst),)
                    if len(vm) > 64:
                        vm = vm[-64:]
                elif i.kind == 'ds':
                    lg = lg + (frozenset(i.dst),)
                    if len(lg) > 40:
                        lg = lg[-40:] if not any(lg[:-40]) else lg
                elif i.kind == 'smem':
                    lg = lg + (frozenset(i.dst),)
                    smem = True
                def trim(x):
                    j = 0
                    while j < len(x) and not x[j]:
                        j += 1
                    return x[j:]
                out = (trim(vm), trim(lg), smem)
                for t in succ[k]:
                    if state_in[t] is None:
                        state_in[t] = out
                        work.append(t)
                    else:
                        mm = merge(state_in[t], out)
                        if mm != state_in[t]:
                            state_in[t] = mm
                            work.append(t)
            if need:
                ins_at = {}
                for k in sorted(need):
                    v, l = need[k]
                    pos = k
                    if ins[k].kind == 'mfma':
                        j = k - 1
                        pv = pl = 0
                        ok = False
                        while j >= 0:
                            p = ins[j]
                            if p.kind == 'mfma':
                                ok = True
                                break
                            if p.kind in ('label', 'branch', 'call', 'ret', 'sctl', 'smem', 'dir'):
                                break
                            if p.kind == 'vmem':
                                pv += 1
                            if p.kind == 'ds':
                                pl += 1
                            j -= 1
                        if ok and (v is None or v >= pv) and (l is None or l >= pl):
                            pos = j + 1
                            if v is not None:
                                v -= pv
                            if l is not None:
                                l -= pl
                    ins_at.setdefault(pos, []).append((v, l))
                new = []
                for k, i in enumerate(ins):
                    if k in ins_at:
                        vs = [x[0] for x in ins_at[k] if x[0] is not None]
                        ls = [x[1] for x in ins_at[k] if x[1] is not None]
                        if i.kind == 'wait':
                            wv, wl = i.waitvals()
                            if wv is not None:
                                vs.append(wv)
                            if wl is not None:
                                ls.append(wl)
                        s = 's_waitcnt'
                        if vs:
                            s += f' vmcnt({min(min(vs), 63)})'
                        if ls:
                            s += f' lgkmcnt({min(min(ls), 15)})'
                        new.append(Ins(s, auto=True))
                        if i.kind == 'wait':
                            continue
                    new.append(i)
                self.ins = new
                changed = True

    def pad_hazards(self):
        MAXW = 13
        again = True
        while again:
            again = False
            ins = self.ins
            succ, pred = self._cfg()
            add = {}
            for k, c in enumerate(ins):
                if c.kind in ('label', 'dir', 'nop', 'wait', 'sctl', 'branch'):
                    continue
                worst = 0
                stack = [(p, 0) for p in pred[k]]
                seen = {}
                while stack:
                    j, dist = stack.pop()
                    if dist >= MAXW:
                        continue
                    if j in seen and seen[j] <= dist:
                        continue
                    seen[j] = dist
                    p = ins[j]
                    if p.kind in ('valu', 'mfma', 'salu', 'vmem'):
                        r = required(p, c)
                        if r > dist:
                            worst = max(worst, r - dist)
                    nd = dist + p.nwait + add.get(j, 0)
                    for q in pred[j]:
                        stack.append((q, nd))
                if worst:
                    add[k] = worst
            if add:
                new = []
                for k, i in enumerate(ins):
                    if k in add:
                        n = add[k]
                        while n > 0:
                            m = min(n, 16)
                            new.append(Ins(f's_nop {m - 1}', auto=True))
                            n -= m
                    new.append(i)
                self.ins = new
                again = True

    def finalize(self):
        self.insert_waits()
        self.pad_hazards()
        for i in self.ins:
            for f, n in list(i.src) + list(i.dst):
                if f == 'v':
                    assert n < self.vgprs, (self.name, i.text)
                elif f == 'a':
                    assert n < self.agprs, (self.name, i.text)
                elif f == 's' and n < 102:
                    assert n < self.sgprs, (self.name, i.text)

    def text(self):
        out = [f'.globl {self.name}', '.p2align 8', f'.type {self.name},@function', f'{self.name}:']
        for i in self.ins:
            if i.kind == 'label':
                out.append(i.text)
            else:
                t = i.text
                if t.startswith('v_mfma_f32_16x16x32_bf16 '):
                    t = 'MM ' + t[25:].replace(', ', ',')
                elif t.startswith('ds_read_b64_tr_b16 ') and ' offset:' in t:
                    a, o = t[19:].split(' offset:')
                    t = 'TR ' + a.replace(', ', ',') + ',' + o
                out.append(t)
        out.append(f'L_{self.name}_codeend:')
        return '\n'.join(out)

    def desc(self):
        acc = (self.vgprs + 3) // 4 * 4
        nfv = acc + self.agprs if self.agprs else self.vgprs
        return f""".p2align 6
.amdhsa_kernel {self.name}
  .amdhsa_next_free_vgpr {nfv}
  .amdhsa_next_free_sgpr {self.sgprs}
  .amdhsa_accum_offset {acc}
  .amdhsa_group_segment_fixed_size 0
  .amdhsa_kernarg_size 112
  .amdhsa_user_sgpr_count 2
  .amdhsa_user_sgpr_kernarg_segment_ptr 1
  .amdhsa_system_sgpr_workgroup_id_x 1
.end_amdhsa_kernel"""

    def launch(self):
        return f'; @launch kernel={self.name} grid=({self.grid},1,1) block=({self.block},1,1) lds={self.lds}'

    def stats(self):
        from collections import Counter
        c = Counter(i.kind for i in self.ins)
        a = sum(1 for i in self.ins if i.auto and i.kind == 'nop')
        return f'{self.name}: {len(self.ins)} lines {dict(c)} auto-nops={a}'


def write_file(path, kernels, header='', launches=None):
    for k in kernels:
        k.finalize()
    launches = launches or kernels
    s = header
    s += '\n'.join(k.launch() for k in launches) + '\n'
    s += '.amdgcn_target "amdgcn-amd-amdhsa--gfx950"\n'
    s += '.macro MM d, a, b, c\nv_mfma_f32_16x16x32_bf16 \\d, \\a, \\b, \\c\n.endm\n'
    s += '.macro TR d, a, o\nds_read_b64_tr_b16 \\d, \\a offset:\\o\n.endm\n'
    s += '.text\n'
    s += '\n'.join(k.text() for k in kernels) + '\n'
    s += '.section .rodata,"a"\n'
    s += '\n'.join(k.desc() for k in kernels) + '\n'
    open(path, 'w').write(s)
    for k in kernels:
        print(k.stats())
```

```python
from common import *
import math
import sched_attn

V_LANE = 1
V_T0 = 2
V_KA = 8
V_VA = 12
V_KD = 20
V_VD = 24
V_WD = 26
V_HD = 30
V_PF = 31
V_PFD = 32
V_MD = 33
V_LT = 34
V_L = 38
V_KG = 42
V_CK = 43
V_TM = 44
V_CI = 48
V_S = (64, 128)
V_Q = 192
A_O = 0
A_KF = 128
A_VF = 160
A_X2 = 192

S_K, S_V, S_WQ, S_H, S_OO = 8, 12, 16, 20, 24
S_W = 30
S_KOFF = 31
S_VOFF = 32
S_M0K = 33
S_CNT = 34
S_TOFF = 35
S_THR = 36
S_RET = 38
S_T = 40
S_PF = 56
S_PT = 96 - 8 - 4
S_WM = 4
LDS_M = 131072
WS_FLG2 = (60 << 20) + 131072
S_PFO = 54
S_PFN = 55

LDS_K = 0
LDS_V = 65536
LDS_W = 98304
BIAS = 48.0

PI = [0, 2, 1, 3]


def Sreg(st, kt, qt):
    return V_S[st] + ((kt >> 1) * 4 + qt) * 8 + (kt & 1) * 4


def Preg(st, qt, ks):
    return V_S[st] + (ks * 4 + qt) * 8


def Qreg(qt, s):
    return V_Q + (qt * 4 + s) * 4


def Oreg(dt, qt):
    return A_O + (dt * 4 + qt) * 4


def r4(f, b):
    return f'{f}[{b}:{b + 3}]'


def mf(d, a, b, c):
    return f'v_mfma_f32_16x16x32_bf16 {d}, {a}, {b}, {c}'


def kread(kt, s, slot):
    b = A_KF + (kt & 1) * 16 + s * 4
    return f'ds_read_b128 {r4("a", b)}, v{V_KA + s} offset:{slot * 16384 + kt * 4096}'


def vread(dt, ks, half, slot):
    b = A_VF + (dt & 3) * 8 + ks * 4 + half * 2
    return f'ds_read_b64_tr_b16 a[{b}:{b + 1}], v{V_VA + dt} offset:{slot * 16384 + ks * 8192 + half * 4096}'


def softmax_half_ops(st, ks, first):
    ex, ad, cv = [], [], []
    for qt in range(4):
        b = Preg(st, qt, ks)
        for e in range(8):
            ex.append(f'v_exp_f32 v{b + e}, v{b + e}')
            if first and e == 0:
                ad.append(f'v_add_f32 v{V_L + qt}, v{V_L + qt}, v{V_LT + qt}')
            elif first and e == 1:
                ad.append(f'v_add_f32 v{V_LT + qt}, v{b}, v{b + 1}')
            else:
                ad.append(f'v_add_f32 v{V_LT + qt}, v{V_LT + qt}, v{b + e}')
        for j in range(4):
            cv.append(f'v_cvt_pk_bf16_f32 v{b + j}, v{b + 2 * j}, v{b + 2 * j + 1}')
    return ex, ad, cv


def _cls(t):
    if t.endswith(':'):
        return 0
    if t.startswith('s_'):
        return 0
    if t.startswith(('ds_', 'buffer_', 'global_')):
        return 1
    return 2


def emit_phase(k, mfmas, gaps):
    for i, m in enumerate(mfmas):
        if m:
            k(m)
        ops = gaps.get(i, [])
        for f in sorted([o for o in ops if not isinstance(o, tuple)], key=_cls):
            k(f)
        for f in ops:
            if isinstance(f, tuple):
                k(f[1])


def place_softmax(gaps, ex, ad, cv):
    for i in range(32):
        gaps.setdefault(2 * i, []).append(ex[i])
        gaps.setdefault(2 * i + 1, []).append(ad[i])
    for j in range(16):
        gaps.setdefault(4 * j + 3, []).append(cv[j])


SM0 = 60


def softmax_stream(st):
    e0, a0, c0 = softmax_half_ops(st, 0, True)
    e1, a1, c1 = softmax_half_ops(st, 1, False)
    ex, ad, cv = e0 + e1, a0 + a1, c0 + c1
    out = []
    E = [SM0 + 2 * i for i in range(62)] + [SM0 + 123, SM0 + 124]
    A = [e + 1 for e in E]
    for i in range(64):
        out.append((E[i], 0, ex[i]))
        out.append((A[i], 1, ad[i]))
    for j in range(32):
        out.append((A[2 * j + 1], 2, cv[j]))
    out.sort(key=lambda x: (x[0], (1, 0, 2)[x[1]]))
    return out


def gen_attn(dbg=False, mallpf=True, bias=None, stflag='sc1', qp0=16, qpn=16, wqpf=2, kvpf=0, cpf=True, wqst=(1, 4, 8), xpf=False, fln=False, hflag='sc1', early_w=0, thr=None, v2=True, skw=None, wq0=128, wqfirst=True):
    global BIAS
    BIAS = 48.0 if bias is None else bias
    k = Kernel('attn_kernel', vgprs=256, agprs=256, sgprs=96, grid=256, block=256, lds=160 * 1024)
    k('s_cmp_ge_u32 s2, 256')
    k(f's_cbranch_scc1 {k.L("end")}')
    T = Stamper(k, dbg)
    T.start()
    k(f's_load_dwordx2 s[28:29], s[0:1], {A_WQ}')
    k(f's_load_dwordx2 s[{S_K}:{S_K + 1}], s[0:1], {A_X}')
    k(f's_load_dwordx2 s[44:45], s[0:1], {D_WS}')
    k(f's_load_dwordx4 s[4:7], s[0:1], {A_K}')
    k(f's_load_dwordx2 s[{S_PF}:{S_PF + 1}], s[0:1], {A_WO}')
    k(f's_load_dwordx4 s[{S_PT}:{S_PT + 3}], s[0:1], {B_WG}')
    k(f's_load_dwordx2 s[{S_PT + 4}:{S_PT + 5}], s[0:1], {B_WD}')
    k(f's_load_dwordx2 s[{S_PT + 6}:{S_PT + 7}], s[0:1], {W_MOD}')
    if cpf:
        code_prefetch(k, 80, 4, V_PFD, 0, 256, 49152)
    k(f'v_lshrrev_b32 v2, 6, v0')
    k(f'v_and_b32 v{V_LANE}, 63, v0')
    k(f'v_readfirstlane_b32 s{S_W}, v2')
    k('s_and_b32 s40, s2, 7')
    k('s_lshl_b32 s40, s40, 2')
    k('s_lshr_b32 s41, s2, 6')
    k('s_add_u32 s40, s40, s41')
    k('s_bfe_u32 s41, s2, 0x30003')
    k('s_lshl_b32 s42, s40, 19')
    k('s_lshl_b32 s43, s40, 8')
    k(f'v_and_b32 v2, 15, v{V_LANE}')
    k(f'v_lshrrev_b32 v3, 4, v{V_LANE}')
    k(f's_lshl_b32 s{S_M0K}, s{S_W}, 12')
    k(f's_lshl_b32 s46, s{S_W}, 17')
    k(f'v_lshlrev_b32 v4, 13, v3')
    k(f'v_add_u32 v4, s46, v4')
    for j in range(4):
        k(f'v_add_u32 v5, {4 * (j >> 1)}, v3')
        k(f'v_lshlrev_b32 v5, 1, v5')
        k(f'v_xor_b32 v5, v5, v2')
        k(f'v_lshl_add_u32 v5, v5, 4, v4')
        k(f'v_add_u32 v{V_WD + j}, {4 * j * 8192 - 1024 * j}, v5')
    k(f'v_lshlrev_b32 v{V_HD}, 4, v{V_LANE}')
    k('s_lshl_b32 s46, s41, 2')
    k(f's_add_u32 s46, s46, s{S_W}')
    k('s_lshl_b32 s47, s46, 12')
    k('s_lshl_b32 s48, s46, 12')
    k('s_lshl_b32 s49, s40, 19')
    k('s_add_u32 s48, s48, s49')
    k('s_waitcnt lgkmcnt(0)')
    srd(k, S_WQ, 28, 's43', 1024 * 8192 - 31 * 256)
    srd(k, S_H, 44, WS_H1, 2048 * 2048)

    def setup_rest():
        srd(k, S_K, 4, 's42', 524288)
        srd(k, S_V, 6, 's42', 524288)
        srd(k, S_OO, 44, WS_O, 2048 * 8192)
        k(f'v_lshlrev_b32 v4, 8, v3')
        k(f'v_add_u32 v4, s{S_M0K}, v4')
        for j in range(4):
            k(f'v_add_u32 v5, {4 * j}, v3')
            k(f'v_xor_b32 v5, v5, v2')
            k(f'v_lshl_add_u32 v{V_KD + j}, v5, 4, v4')
        for j in range(2):
            k(f'v_add_u32 v5, {4 * j}, v3')
            k(f'v_lshlrev_b32 v5, 1, v5')
            k(f'v_xor_b32 v5, v5, v2')
            k(f'v_lshl_add_u32 v{V_VD + j}, v5, 4, v4')
        k('v_and_b32 v4, 1, v3')
        k('v_lshlrev_b32 v4, 1, v4')
        k('v_lshrrev_b32 v5, 1, v3')
        k('v_or_b32 v4, v4, v5')
        k('v_lshlrev_b32 v6, 8, v2')
        k(f'v_lshl_add_u32 v{V_KG}, v4, 4, v6')
        for s in range(4):
            k(f'v_add_u32 v5, {4 * s}, v4')
            k('v_xor_b32 v5, v5, v2')
            k(f'v_lshl_add_u32 v{V_KA + s}, v5, 4, v6')
        k('v_lshrrev_b32 v4, 2, v2')
        k('v_and_b32 v5, 1, v3')
        k('v_lshl_or_b32 v5, v5, 2, v4')
        k('v_lshlrev_b32 v5, 1, v5')
        k('v_bfe_u32 v6, v2, 1, 1')
        k('v_xor_b32 v5, v5, v6')
        k('v_lshl_add_u32 v4, v3, 3, v4')
        k('v_lshlrev_b32 v4, 8, v4')
        k('v_and_b32 v6, 1, v2')
        k('v_lshl_add_u32 v4, v6, 3, v4')
        k(f'v_add_u32 v4, {LDS_W}, v4')
        for dt in range(8):
            k(f'v_xor_b32 v6, {2 * dt}, v5')
            k(f'v_lshl_add_u32 v{V_VA + dt}, v6, 4, v4')
        k(f'v_lshlrev_b32 v{V_CK}, 10, v3')
        k(f'v_add_u32 v{V_CK}, {LDS_W - LDS_V}, v{V_CK}')
        k(f's_mov_b32 s{S_THR}, {f32(2.0 ** (BIAS if thr is None else thr))}')
        k(f's_mov_b32 s{S_PF + 2}, {4096 * 2048}')
        k(f's_mov_b32 s{S_PF + 3}, 0x00020000')
        k(f's_lshl_b32 s{S_PFO}, s2, 2')
        k(f's_add_u32 s{S_PFO}, s{S_PFO}, s{S_W}')
        k(f's_lshl_b32 s{S_PFO}, s{S_PFO}, 13')
        k(f'v_lshlrev_b32 v{V_PF}, 7, v{V_LANE}')
        k(f'v_cmp_gt_u32 vcc, 16, v{V_LANE}')
        k(f'v_mov_b32 v5, 0x40000000')
        k(f'v_cndmask_b32 v{V_PF}, v5, v{V_PF}, vcc')
        for qt in range(4):
            k(f'v_mov_b32 v{V_L + qt}, 0')
            k(f'v_mov_b32 v{V_LT + qt}, 0')
        srd(k, S_WM, S_PT + 6, 0, 1024 * 12288)
        k(f'v_lshrrev_b32 v4, 1, v{V_LANE}')
        k('s_movk_i32 s53, 12288')
        k('v_mul_lo_u32 v4, v4, s53')
        k(f'v_and_b32 v5, 1, v{V_LANE}')
        k(f'v_lshl_add_u32 v{V_MD}, v5, 4, v4')
        k('s_and_b32 s28, s2, 7')
        k('s_lshl_b32 s28, s28, 5')
        k('s_lshr_b32 s29, s2, 3')
        k('s_add_u32 s28, s28, s29')
        k(f's_mul_i32 s29, s{S_W}, {256 * 12288}')
        k('s_lshl_b32 s53, s28, 5')
        k('s_add_u32 s29, s29, s53')
        k('s_add_u32 s29, s29, 4096')
        k(f's_lshr_b32 s{S_PFN}, s{S_PFO}, 13')
        k(f's_mul_i32 s{S_PFN}, s{S_PFN}, 12288')
        k(f's_add_u32 s{S_PFN}, s{S_PFN}, 4096')

    vm = []

    def vwait(tag):
        last = max(i for i, t in enumerate(vm) if t == tag)
        return min(63, len(vm) - 1 - last)

    def wq_dma(st):
        ops = [f's_add_u32 m0, s{S_M0K}, {LDS_W + (st & 3) * 16384}', f's_mov_b32 s50, {st * 64 * 8192}']
        for j in range(4):
            ops.append((f'buffer_load_dwordx4 v{V_WD + j}, s[{S_WQ}:{S_WQ + 3}], s50 offen offset:{j * 1024} lds', ('W', st)))
        return ops

    def h_loads(st):
        ops = []
        for s in range(2):
            ops.append(f's_add_u32 s51, s47, {(st * 2 + s) * 131072}')
            for qt in range(4):
                b = (st & 3) * 32 + (qt * 2 + s) * 4
                ops.append((f'buffer_load_dwordx4 {r4("a", b)}, v{V_HD}, s[{S_H}:{S_H + 3}], s51 offen offset:{qt * 1024} {hflag if fln else ""}', ('H', st)))
        return ops

    def kv_dma(which, t, soff):
        ops = []
        if which == 'K':
            ops.append(f's_add_u32 m0, s{S_M0K}, {LDS_K + (t & 3) * 16384}')
            for j in range(4):
                ops.append((f'buffer_load_dwordx4 v{V_KD + j}, s[{S_K}:{S_K + 3}], {soff} offen offset:{j * 1024} lds', ('K', t)))
        else:
            ops.append(f's_add_u32 m0, s{S_M0K}, {LDS_V + (t & 3) * 16384}')
            for j in range(4):
                ops.append((f'buffer_load_dwordx4 v{V_VD + (j & 1)}, s[{S_V}:{S_V + 3}], {soff} offen offset:{j * 1024} lds', ('V', t)))
        return ops

    def emit_ops(ops):
        for o in ops:
            if isinstance(o, tuple):
                k(o[0]); vm.append(o[1])
            else:
                k(o)

    def wread(dt, s, half, st):
        b = A_X2 + (dt & 3) * 8 + s * 4 + half * 2
        return f'ds_read_b64_tr_b16 a[{b}:{b + 1}], v{V_VA + dt} offset:{(st & 3) * 16384 + s * 8192 + half * 1024}'

    def qacc(dt, qt):
        return 64 + (qt * 8 + dt) * 4

    NST = 16
    queue = []
    for st in range(NST):
        if not (fln and st < 4):
            queue.append((st - 3, wq_dma(st)))
        queue.append((st - 3, h_loads(st)))
    for w, t, e in [('K', 0, 0), ('V', 0, 0), ('K', 1, 0), ('V', 1, 0), ('K', 2, 0), ('V', 2, 13), ('K', 3, 0)]:
        queue.append((e, [f's_mov_b32 s52, {t * 16384}'] + kv_dma(w, t, 's52')))
    flat = [(e, o) for e, ops in queue for o in ops]
    nvm = lambda ops: sum(1 for o in ops if isinstance(o, tuple))

    def take(stage, maxv):
        out = []
        while flat and flat[0][0] <= stage:
            if isinstance(flat[0][1], tuple) and nvm(out) >= maxv:
                break
            if not isinstance(flat[0][1], tuple) and nvm(out) >= maxv:
                break
            out.append(flat.pop(0)[1])
        return out
    P = lambda b: f'v[{b}:{b + 1}]'
    if fln:
        X, Yb, PB, MS, MH, TT = 192, 64, 96, 160, 176, 208
        post = math.log2(math.e) / math.sqrt(128)
        k(f's_mov_b32 s{S_K + 2}, {2048 * 2048}')
        k(f's_mov_b32 s{S_K + 3}, 0x00020000')
        srd(k, S_V, 44, 0, 64 << 20)
        k('s_lshl_b32 s50, s41, 8')
        k('s_lshl_b32 s51, s40, 3')
        k('s_add_u32 s50, s50, s51')
        k(f's_lshl_b32 s51, s{S_W}, 1')
        k('s_add_u32 s51, s51, s50')
        k('s_lshl_b32 s51, s51, 11')
        for r in range(2):
            for h in range(2):
                b = X + 8 * r + 4 * h
                emit_ops([(f'buffer_load_dwordx4 {r4("v", b)}, v{V_HD}, s[{S_K}:{S_K + 3}], s51 offen offset:{r * 2048 + h * 1024}', ('L', 0))])
        k(f'v_lshlrev_b32 v{TT + 8}, 4, v0')
        k('s_mov_b32 s52, 65536')
        for p in range(8):
            for h in range(2):
                b = PB + 8 * p + 4 * h
                emit_ops([(f'buffer_load_dwordx4 {r4("v", b)}, v{TT + 8}, s[{S_V}:{S_V + 3}], s52 offen', ('L', 1))])
                k('s_add_u32 s52, s52, 4096')
        k('s_lshr_b32 s53, s50, 4')
        k('s_lshl_b32 s53, s53, 10')
        k('s_and_b32 s52, s50, 8')
        k('s_lshl_b32 s52, s52, 4')
        k('s_add_u32 s53, s53, s52')
        k(f's_lshl_b32 s52, s{S_W}, 20')
        k('s_add_u32 s53, s53, s52')
        for st in range(early_w):
            emit_ops(wq_dma(st))
    else:
        emit_ops(take(-1, 12))
        setup_rest()
        emit_ops(take(-1, qp0 - 12))
    def wq_prefetch():
        if wqpf == 1:
            k('s_lshr_b32 s50, s2, 3')
            k('s_lshl_b32 s50, s50, 2')
            k(f's_add_u32 s50, s50, s{S_W}')
            k('s_lshl_b32 s50, s50, 16')
            k('s_lshr_b32 s51, s2, 6')
            k('s_lshl_b32 s51, s51, 8')
            k('s_add_u32 s50, s50, 8192')
            k('s_sub_u32 s50, s50, s51')
            k(f'v_lshrrev_b32 v4, 3, v{V_LANE}')
            k('v_lshlrev_b32 v4, 13, v4')
            k(f'v_and_b32 v5, 7, v{V_LANE}')
            k('v_lshl_add_u32 v4, v5, 7, v4')
            emit_ops([(f'buffer_load_dword v{V_PFD}, v4, s[{S_WQ}:{S_WQ + 3}], s50 offen', ('P', 0))])
        elif wqpf == 2:
            k('s_lshr_b32 s37, s2, 3')
            k('s_lshl_b32 s37, s37, 2')
            k(f's_add_u32 s37, s37, s{S_W}')
            k('s_lshl_b32 s37, s37, 14')
            k('s_lshr_b32 s51, s2, 6')
            k('s_lshl_b32 s51, s51, 8')
            k(f's_add_u32 s37, s37, {(wq0 - (0 if wqfirst else 256)) * 8192}')
            k('s_sub_u32 s37, s37, s51')
            k(f'v_lshrrev_b32 v4, 3, v{V_LANE}')
            k('v_lshlrev_b32 v4, 13, v4')
            k(f'v_and_b32 v5, 7, v{V_LANE}')
            k('v_lshl_add_u32 v4, v5, 7, v4')
            k(f'v_cmp_gt_u32 vcc, 16, v{V_LANE}')
            k('v_mov_b32 v5, 0x40000000')
            k('v_cndmask_b32 v7, v5, v4, vcc')
            if wqfirst:
                emit_ops([(f'buffer_load_dword v{V_PFD}, v7, s[{S_WQ}:{S_WQ + 3}], s37 offen', ('P', 0))])
        pass
    if not fln:
        wq_prefetch()
    if fln:
        A0, A1 = TT, TT + 2
        for r in range(2):
            for d in range(8):
                k(f'v_lshlrev_b32 v{Yb + 16 * r + 2 * d}, 16, v{X + 8 * r + d}')
                k(f'v_and_b32 v{Yb + 16 * r + 2 * d + 1}, 0xffff0000, v{X + 8 * r + d}')
        for r in range(2):
            k(f'v_pk_add_f32 {P(TT + 2 * r)}, {P(Yb + 16 * r)}, {P(Yb + 16 * r + 2)}')
        for e in range(4, 16, 2):
            for r in range(2):
                k(f'v_pk_add_f32 {P(TT + 2 * r)}, {P(TT + 2 * r)}, {P(Yb + 16 * r + e)}')
        for r in range(2):
            k(f'v_add_f32 v{TT + 2 * r}, v{TT + 2 * r}, v{TT + 2 * r + 1}')
        wave_allreduce_add(k, [TT, TT + 2], [TT + 1, TT + 3])
        for r in range(2):
            k(f'v_mul_f32 v{TT + 2 * r}, {f32(-1.0 / 1024)}, v{TT + 2 * r}')
        for r in range(2):
            for e in range(0, 16, 2):
                o = Yb + 16 * r + e
                k(f'v_pk_add_f32 {P(o)}, {P(o)}, {P(TT + 2 * r)} op_sel_hi:[1,0]')
        for r in range(2):
            k(f'v_pk_mul_f32 {P(TT + 2 * r)}, {P(Yb + 16 * r)}, {P(Yb + 16 * r)}')
        for e in range(2, 16, 2):
            for r in range(2):
                o = Yb + 16 * r + e
                k(f'v_pk_fma_f32 {P(TT + 2 * r)}, {P(o)}, {P(o)}, {P(TT + 2 * r)}')
        for r in range(2):
            k(f'v_add_f32 v{TT + 2 * r}, v{TT + 2 * r}, v{TT + 2 * r + 1}')
        k(f's_mov_b32 s50, {f32(post)}')
        for p in range(1, 8):
            for e in range(0, 8, 2):
                k(f'v_pk_add_f32 {P(PB + e)}, {P(PB + e)}, {P(PB + 8 * p + e)}')
        for e in range(0, 8, 2):
            k(f'v_cvt_pk_bf16_f32 v{PB + 8 + e // 2}, v{PB + e}, v{PB + 1 + e}')
        for e in range(0, 8, 2):
            k(f'v_lshlrev_b32 v{PB + e}, 16, v{PB + 8 + e // 2}')
            k(f'v_and_b32 v{PB + 1 + e}, 0xffff0000, v{PB + 8 + e // 2}')
        for e in range(4):
            k(f'v_mul_f32 v{PB + e}, s50, v{PB + e}')
            k(f'v_add_f32 v{PB + 4 + e}, 1.0, v{PB + 4 + e}')
        for e in range(0, 4, 2):
            k(f'v_cvt_pk_bf16_f32 v{PB + 8 + e // 2}, v{PB + 4 + e}, v{PB + 5 + e}')
        for e in range(0, 4, 2):
            k(f'v_lshlrev_b32 v{PB + 4 + e}, 16, v{PB + 8 + e // 2}')
            k(f'v_and_b32 v{PB + 5 + e}, 0xffff0000, v{PB + 8 + e // 2}')
        k(f'ds_write_b128 v{TT + 8}, {r4("v", PB)}')
        k(f'ds_write_b128 v{TT + 8}, {r4("v", PB + 4)} offset:4096')
        k(f'v_lshlrev_b32 v{TT + 9}, 5, v{V_LANE}')
        k('s_waitcnt lgkmcnt(0)')
        k('s_barrier')
        for h in range(2):
            for j in range(2):
                k(f'ds_read_b128 {r4("v", MS + 8 * h + 4 * j)}, v{TT + 9} offset:{4096 + h * 2048 + j * 16}')
                k(f'ds_read_b128 {r4("v", MH + 8 * h + 4 * j)}, v{TT + 9} offset:{h * 2048 + j * 16}')
        wave_allreduce_add(k, [TT, TT + 2], [TT + 1, TT + 3])
        k(f's_mov_b32 s51, {f32(1.0 / 1024)}')
        k(f'v_mov_b32 v{TT + 4}, {f32(1e-5)}')
        for r in range(2):
            k(f'v_fma_f32 v{TT + 2 * r}, v{TT + 2 * r}, s51, v{TT + 4}')
        for r in range(2):
            k(f'v_rsq_f32 v{TT + 2 * r}, v{TT + 2 * r}')
        for r in range(2):
            k(f'v_mul_f32 v{TT + 2 * r}, s50, v{TT + 2 * r}')
        k(f'v_lshlrev_b32 v{TT + 10}, 7, v{V_LANE}')
        k(f'v_and_b32 v{TT + 11}, 7, v{V_LANE}')
        k(f's_lshl_b32 s51, s{S_W}, 1')
        for r in range(2):
            for e in range(0, 16, 2):
                o = Yb + 16 * r + e
                k(f'v_pk_mul_f32 {P(o)}, {P(o)}, {P(TT + 2 * r)} op_sel_hi:[1,0]')
            for e in range(0, 16, 2):
                o = Yb + 16 * r + e
                k(f'v_pk_fma_f32 {P(o)}, {P(o)}, {P(MS + e)}, {P(MH + e)}')
            for d in range(8):
                o = Yb + 16 * r + 2 * d
                k(f'v_cvt_pk_bf16_f32 v{Yb + 16 * r + d}, v{o}, v{o + 1}')
            k(f'v_xor_b32 v{TT + 12}, s51, v{TT + 11}')
            k(f'v_lshl_add_u32 v{TT + 12}, v{TT + 12}, 4, v{TT + 10}')
            k(f'ds_write_b128 v{TT + 12}, {r4("v", Yb + 16 * r)} offset:8192')
            k(f'ds_write_b128 v{TT + 12}, {r4("v", Yb + 16 * r + 4)} offset:16384')
            k('s_add_u32 s51, s51, 1')
        k(f'v_lshrrev_b32 v{TT + 13}, 3, v{V_LANE}')
        k(f'v_xor_b32 v{TT + 12}, v{TT + 13}, v{TT + 11}')
        k(f'v_lshlrev_b32 v{TT + 12}, 4, v{TT + 12}')
        k(f'v_lshl_add_u32 v{TT + 12}, v{TT + 13}, 7, v{TT + 12}')
        k(f'v_add_u32 v{TT + 12}, s{S_M0K}, v{TT + 12}')
        k(f'v_lshrrev_b32 v{TT + 14}, 2, v{TT + 13}')
        k(f'v_lshlrev_b32 v{TT + 14}, 17, v{TT + 14}')
        k(f'v_and_b32 v{TT + 15}, 3, v{TT + 13}')
        k(f'v_lshl_add_u32 v{TT + 14}, v{TT + 15}, 8, v{TT + 14}')
        k(f'v_lshl_add_u32 v{TT + 14}, v{TT + 11}, 4, v{TT + 14}')
        k('s_waitcnt lgkmcnt(0)')
        k('s_barrier')
        for i in range(4):
            k(f'ds_read_b128 {r4("v", PB + 4 * i)}, v{TT + 12} offset:{8192 + i * 1024}')
        for i in range(4):
            emit_ops([(f'buffer_store_dwordx4 {r4("v", PB + 4 * i)}, v{TT + 14}, s[{S_H}:{S_H + 3}], s53 offen sc1', ('S', 0))])
            k(f's_add_u32 s53, s53, {2 * 131072}')
        k('s_lshl_b32 s52, s41, 7')
        k(f's_add_u32 s52, s52, {WS_FLG2}')
        k('s_lshl_b32 s53, s40, 2')
        k('s_add_u32 s53, s53, s52')
        k(f's_mov_b64 s[80:81], s[{S_V}:{S_V + 1}]')
        k(f's_mov_b32 s82, {64 << 20}')
        k(f's_mov_b32 s83, 0x00020000')
        k(f'v_mov_b32 v{TT}, 0')
        k(f'v_mov_b32 v{TT + 1}, 1')
        k(f'v_and_b32 v{TT + 2}, 31, v{V_LANE}')
        k(f'v_lshlrev_b32 v{TT + 2}, 2, v{TT + 2}')
        if dbg: T.stamp()
        for st in range(early_w, 4):
            emit_ops(wq_dma(st))
        wq_prefetch()
        k(f's_waitcnt vmcnt({vwait(("S", 0))})')
        k('s_barrier')
        k(f's_cmp_lg_u32 s{S_W}, 0')
        k(f's_cbranch_scc1 {k.L("noflag")}')
        k(f'buffer_store_dword v{TT + 1}, v{TT}, s[80:83], s53 offen sc1')
        k.label('noflag')
        k('s_mov_b32 s39, s52')
        setup_rest()
        k(f's_cmp_lg_u32 s{S_W}, 0')
        k(f's_cbranch_scc1 {k.L("hgot")}')
        k('s_mov_b32 s53, 0')
        k.label('hpoll')
        k(f'buffer_load_dword v{TT + 3}, v{TT + 2}, s[80:83], s39 offen sc1')
        k('s_waitcnt vmcnt(0)')
        k(f'v_cmp_ne_u32 vcc, 1, v{TT + 3}')
        k(f's_cbranch_vccz {k.L("hgot")}')
        k('s_sleep 1')
        k('s_add_u32 s53, s53, 1')
        k('s_cmp_lt_u32 s53, 0x40000')
        k(f's_cbranch_scc1 {k.L("hpoll")}')
        k.label('hgot')
        k('s_waitcnt vmcnt(0)')
        k('s_barrier')
        if dbg: T.stamp()
        del vm[:]
        vm.extend([('W', 0), ('W', 1), ('W', 2), ('W', 3)])
        emit_ops(take(-1, 8))
    else:
        k(f's_waitcnt vmcnt({vwait(("W", 0))})')
        k('s_barrier')
    T.stamp()
    PD = 3
    for dt in range(PD):
        for s in range(2):
            for h in range(2):
                k(wread(dt, s, h, 0))

    def qcvt(sp):
        ops = []
        for qt in range(4):
            q = Qreg(qt, sp)
            t0, t1 = qacc(2 * sp, qt), qacc(2 * sp + 1, qt)
            ops += [f'v_cvt_pk_bf16_f32 v{q}, v{t0}, v{t0 + 1}', f'v_cvt_pk_bf16_f32 v{q + 1}, v{t0 + 2}, v{t0 + 3}',
                    f'v_cvt_pk_bf16_f32 v{q + 2}, v{t1}, v{t1 + 1}', f'v_cvt_pk_bf16_f32 v{q + 3}, v{t1 + 2}, v{t1 + 3}']
        for qt in range(4):
            q = Qreg(qt, sp)
            ops += [f'v_permlane16_swap_b32 v{q}, v{q + 2}', f'v_permlane16_swap_b32 v{q + 1}, v{q + 3}']
        return ops
    for st in range(NST):
        gaps = {}

        def put(g, op):
            gaps.setdefault(g, []).append(op)
        M = []
        busy = set()
        BG = 6
        for dt in range(8):
            tgt = dt + PD
            rd = []
            if tgt < 8:
                rd = [wread(tgt, s, h, st) for s in range(2) for h in range(2)]
                pos = [0, 2, 4, 6]
            elif st + 1 < NST:
                if dt == 6:
                    rd = [wread(x, s, h, st + 1) for x in (0, 1) for s in range(2) for h in range(2)][:7]
                    pos = [1, 2, 3, 4, 5, 6, 7]
                elif dt == 7:
                    rd = [wread(1, 1, 1, st + 1)] + [wread(2, s, h, st + 1) for s in range(2) for h in range(2)]
                    pos = [0, 1, 2, 4, 6]
            else:
                if dt == 6:
                    rd = [kread(0, s, 0) for s in range(4)]
                    pos = [1, 3, 5, 7]
                elif dt == 7:
                    rd = [kread(1, s, 0) for s in range(4)]
                    pos = [0, 2, 4, 6]
            for r, p in zip(rd, pos):
                put(dt * 8 + p, r)
                busy.add(dt * 8 + p)
            for qt in range(4):
                for s in range(2):
                    d = r4('v', qacc(dt, qt))
                    a = r4('a', A_X2 + (dt & 3) * 8 + s * 4)
                    b = r4('a', (st & 3) * 32 + (qt * 2 + s) * 4)
                    M.append(mf(d, a, b, '0' if (st == 0 and s == 0) else d))
        side = take(st, qpn)
        if wqpf == 2 and st in wqst:
            side = [f's_add_u32 s37, s37, {256 * 8192}',
                    (f'buffer_load_dword v{V_PFD}, v7, s[{S_WQ}:{S_WQ + 3}], s37 offen', ('P', 0))] + side
        if kvpf and st == kvpf:
            side = [f's_lshl_b32 s53, s46, 11',
                    (f'buffer_load_dword v{V_PFD}, v{V_PF}, s[{S_K}:{S_K + 3}], s53 offen', ('P', 1)),
                    (f'buffer_load_dword v{V_PFD}, v{V_PF}, s[{S_V}:{S_V + 3}], s53 offen', ('P', 1))] + side
        free = [g for g in range(1, 63) if g not in busy and g not in (47, 48)]
        n = nvm(side)
        pos = [free[(i * len(free)) // n] for i in range(n)] if n else []
        vi = 0
        pend_s = []
        for o in side:
            if isinstance(o, tuple):
                put(pos[vi], ('V', pend_s, o))
                pend_s = []
                vi += 1
            else:
                pend_s.append(o)
        assert not pend_s
        if st >= 13:
            z = [f'v_accvgpr_write_b32 a{((st - 13) & 3) * 32 + i}, 0' for i in range(32)]
            for i, o in enumerate(z):
                put(2 * i + (1 if st < 15 else 0) if st < 15 else i // 2, o)
        if st == 15:
            for sp in range(3):
                for i, o in enumerate(qcvt(sp)):
                    put(16 * (sp + 1) + 3 + i // 2, o)
        for i, m in enumerate(M):
            k(m)
            ops = gaps.get(i, [])
            if i == 47:
                if st + 1 < NST:
                    k(f's_waitcnt vmcnt({vwait(("W", st + 1))}) lgkmcnt(0)')
                else:
                    k(f's_waitcnt vmcnt({vwait(("K", 0))})')
            if i == 48:
                k('s_barrier')
            nxt = [o for o in gaps.get(i + 1, []) if isinstance(o, tuple)]
            cur = [o for o in ops if isinstance(o, tuple)]
            if not cur:
                for o in nxt:
                    for sc in o[1]:
                        k(sc)
            for o in cur:
                emit_ops([o[2]])
            if cur:
                for o in nxt:
                    for sc in o[1]:
                        k(sc)
            for o in sorted([o for o in ops if not isinstance(o, tuple)], key=_cls):
                k(o)
        if dbg == 3: T.stamp()
    assert not flat, flat
    T.stamp()
    for o in qcvt(3):
        k(o)
    extras = [f'v_accvgpr_write_b32 a{96 + i}, 0' for i in range(32)]
    extras += [f'v_sub_u32 v{V_VA + dt}, v{V_VA + dt}, v{V_CK}' for dt in range(8)]
    gaps = {}
    for i, o in enumerate(extras):
        gaps.setdefault(i // 2, []).append(o)
    M = []
    for kt in range(4):
        for qt in range(4):
            for s in range(4):
                d = r4('v', Sreg(0, kt, qt))
                M.append(mf(d, r4('a', A_KF + (kt & 1) * 16 + s * 4), r4('v', Qreg(qt, s)), '0' if s == 0 else d))
            if kt < 3:
                b = Sreg(0, kt, qt)
                g = 16 * kt + 4 * qt + 12
                if kt == 0:
                    gaps.setdefault(g + 8, []).append(f'v_max3_f32 v{V_TM + qt}, v{b}, v{b + 1}, v{b + 2}')
                    gaps.setdefault(g + 9, []).append(f'v_max_f32 v{V_TM + qt}, v{V_TM + qt}, v{b + 3}')
                else:
                    gaps.setdefault(g, []).append(f'v_max3_f32 v{V_TM + qt}, v{V_TM + qt}, v{b}, v{b + 1}')
                    gaps.setdefault(g + 1, []).append(f'v_max3_f32 v{V_TM + qt}, v{V_TM + qt}, v{b + 2}, v{b + 3}')
        if kt + 2 < 4:
            for s in range(4):
                gaps.setdefault(16 * (kt + 1) + 2 * s, []).append(kread(kt + 2, s, 0))
    gaps.setdefault(55, []).append(f's_waitcnt vmcnt({min(vwait(("V", 0)), vwait(("K", 1)))}) lgkmcnt(0)')
    gaps.setdefault(56, []).append('s_barrier')
    for s in range(4):
        gaps.setdefault(57 + s, []).append(kread(0, s, 1))
    emit_phase(k, M, gaps)
    for qt in range(4):
        b = Sreg(0, 3, qt)
        k(f'v_max3_f32 v{V_TM + qt}, v{V_TM + qt}, v{b}, v{b + 1}')
        k(f'v_max3_f32 v{V_TM + qt}, v{V_TM + qt}, v{b + 2}, v{b + 3}')

    def rowmax(st, dst, local=True):
        for qt in range(4 if local else 0):
            regs = [Sreg(st, kt, qt) + r for kt in range(4) for r in range(4)]
            d = dst + qt
            k(f'v_max3_f32 v{d}, v{regs[0]}, v{regs[1]}, v{regs[2]}')
            for i in range(3, 15, 2):
                k(f'v_max3_f32 v{d}, v{d}, v{regs[i]}, v{regs[i + 1]}')
            k(f'v_max_f32 v{d}, v{d}, v{regs[15]}')
        for sw in ('v_permlane16_swap_b32', 'v_permlane32_swap_b32'):
            for qt in range(4):
                k(f'v_mov_b32 v{V_T0 + qt}, v{dst + qt}')
            for qt in range(4):
                k(f'{sw} v{V_T0 + qt}, v{dst + qt}')
            for qt in range(4):
                k(f'v_max_f32 v{dst + qt}, v{dst + qt}, v{V_T0 + qt}')

    rowmax(0, V_TM, local=False)
    k(f's_mov_b32 s53, {f32(BIAS)}')
    for qt in range(4):
        k(f'v_add_f32 v{V_TM + qt}, s53, v{V_TM + qt}')
        for r in range(4):
            k(f'v_sub_f32 v{V_CI + qt * 4 + r}, 0, v{V_TM + qt}')
    for kt in range(4):
        for qt in range(4):
            for r in range(4):
                x = Sreg(0, kt, qt) + r
                k(f'v_sub_f32 v{x}, v{x}, v{V_TM + qt}')
    k(f's_mov_b32 s{S_KOFF}, {4 * 16384}')
    k(f's_mov_b32 s{S_VOFF}, {3 * 16384}')
    k(f's_mov_b32 s{S_TOFF}, 0')
    k(f's_mov_b32 s{S_CNT}, 0')
    k(f's_add_u32 s37, s{S_PFO}, {48 << 20}')
    tramps = []

    def epi_ops(j):
        ops = [f's_add_u32 s49, s48, {j * 131072}']
        for qt in range(4):
            gi = j * 4 + qt
            t = (64 + gi * 8) if gi < 8 else (192 + (gi - 8) * 8)
            for h in range(2):
                for r in range(4):
                    ops.append(f'v_accvgpr_read_b32 v{t + h * 4 + r}, a{Oreg(2 * j + h, qt) + r}')
            for e in range(8):
                ops.append(f'v_mul_f32 v{t + e}, v{t + e}, v{V_L + qt}')
            for e in range(4):
                ops.append(f'v_cvt_pk_bf16_f32 v{t + e}, v{t + 2 * e}, v{t + 2 * e + 1}')
            ops.append(f'buffer_store_dwordx4 {r4("v", t)}, v{V_HD}, s[{S_OO}:{S_OO + 3}], s49 offen offset:{qt * 1024} {stflag}')
        return ops

    def tile(t4, last=False, tag='', pf=False, peel=False):
        st, sn = t4 & 1, (t4 + 1) & 1
        M = []
        gaps = {}

        def put(g, op):
            gaps.setdefault(g, []).append(op)
        for pos, _, op in softmax_stream(st):
            if pos >= 128:
                put(pos - 128, op)
        put(58, f'v_max3_f32 v{V_CK}, v{V_LT}, v{V_LT + 1}, v{V_LT + 2}')
        put(58, f'v_max_f32 v{V_CK}, v{V_CK}, v{V_LT + 3}')
        put(59, f'v_cmp_nge_f32 vcc, s{S_THR}, v{V_CK}')
        lab = k.newlabel('tr')
        put(60, f's_cbranch_vccnz {k.L(lab)}')
        put(60, k.L(lab + 'r') + ':')
        tramps.append((lab, st))
        if not last:
            for pos, _, op in softmax_stream(sn):
                if pos < 128:
                    put(pos, op)
        else:
            lops = [f'v_add_f32 v{V_L + qt}, v{V_L + qt}, v{V_LT + qt}' for qt in range(4)]
            for sw in ('v_permlane16_swap_b32', 'v_permlane32_swap_b32'):
                lops += [f'v_mov_b32 v{V_T0 + qt}, v{V_L + qt}' for qt in range(4)]
                lops += [f'{sw} v{V_T0 + qt}, v{V_L + qt}' for qt in range(4)]
                lops += [f'v_add_f32 v{V_L + qt}, v{V_L + qt}, v{V_T0 + qt}' for qt in range(4)]
            lops += [f'v_rcp_f32 v{V_L + qt}, v{V_L + qt}' for qt in range(4)]
            for i, o in enumerate(lops):
                put(64 + i // 2, o)
            put(61, f's_add_u32 s{S_H}, s44, {WS_MOD}')
            put(61, f's_addc_u32 s{S_H + 1}, s45, 0')
            put(61, f's_mov_b32 s{S_H + 2}, 65536')
            put(62, f's_lshl_b32 s50, s{S_W}, 9')
            put(62, f's_add_u32 s50, s50, 32768')
            put(62, f'v_and_b32 v{V_KG}, 0x30, v{V_LANE}')
            put(63, f's_waitcnt vmcnt(0)')
            put(63, f'v_lshlrev_b32 v{V_CK}, 4, v{V_KG}')
            put(63, f'v_and_b32 v{V_MD}, 15, v{V_LANE}')
            put(63, f'v_lshl_add_u32 v{V_CK}, v{V_MD}, 3, v{V_CK}')
            put(63, f's_lshl_b32 s51, s{S_M0K}, 1')
            put(63, f's_add_u32 s51, s51, {LDS_M}')
            put(63, ('raw', f'v_add_u32 v{V_CK}, s51, v{V_CK}'))
            for s8 in range(8):
                put(64 + 2 * s8, f'buffer_load_dwordx4 {r4("a", A_X2 + 4 * s8)}, v{V_KG}, s[{S_H}:{S_H + 3}], s50 offen offset:{s8 * 64}')
                for h in range(2):
                    b = A_X2 + 32 + 4 * s8 + 2 * h
                    put(106 + 2 * s8 + h, f'ds_read_b64_tr_b16 a[{b}:{b + 1}], v{V_CK} offset:{s8 * 1024 + h * 128}')
            for j in range(3):
                eo = epi_ops(j)
                g0 = 64 + 16 * (j + 1) + 2
                span = min(16, 128 - g0)
                for i, o in enumerate(eo):
                    put(g0 + (i * span) // len(eo), ('raw', o))
        kslot = (t4 + 1) & 3
        if not last:
            for kt in range(4):
                for qt in range(4):
                    for s in range(4):
                        d = r4('v', Sreg(sn, kt, qt))
                        c = r4('v', V_CI + qt * 4) if s == 0 else d
                        M.append(mf(d, r4('a', A_KF + (kt & 1) * 16 + s * 4), r4('v', Qreg(qt, s)), c))
                if kt + 1 < 4:
                    for s, g in enumerate([1, 3, 5, 9]):
                        put(16 * kt + g, kread(kt + 1, s, kslot))
            ops = kv_dma('V', t4 + 3, f's{S_VOFF}') + [f's_add_u32 s{S_VOFF}, s{S_VOFF}, 16384'] \
                + kv_dma('K', t4, f's{S_KOFF}') + [f's_add_u32 s{S_KOFF}, s{S_KOFF}, 16384']
            ops = [o[0] if isinstance(o, tuple) else o for o in ops]
            slots = [10, 11, 13, 27, 29, 30, 42, 43, 45, 47, 49, 50]
            if peel:
                def wm(half):
                    o = [f's_lshl_b32 m0, s{S_M0K}, 1', f's_add_u32 m0, m0, {LDS_M + half * 4096}']
                    sl = [40, 42]
                    for j, g in enumerate([43, 45, 47, 49]):
                        o += [f'buffer_load_dwordx4 v{V_MD}, s[{S_WM}:{S_WM + 3}], s29 offen offset:{j * 1024} lds',
                              f's_add_u32 s29, s29, {32 * 12288 - 1024 + (4096 if j == 3 else 0)}']
                        sl += [g, g + 1]
                    return o, sl
                ops, slots = (ops[:6], slots[:6]) if t4 == 0 else ([], [])
                if t4 < 2:
                    o, sl = wm(t4)
                    ops, slots = ops + o, slots + sl
            for o, g in zip(ops, slots):
                put(g, o)
        else:
            M = [None] * 64
        vr = [vread(dt, ks, h, t4) for dt in range(3) for ks in range(2) for h in range(2)]
        for i, g in enumerate([7, 15, 23, 31, 39, 51, 53, 55, 57, 59, 61, 63]):
            put(g, vr[i])
        for dt in range(8):
            for qt in range(4):
                for ks in range(2):
                    d = r4('a', Oreg(dt, qt))
                    M.append(mf(d, r4('a', A_VF + (dt & 3) * 8 + ks * 4), r4('v', Preg(st, qt, ks)), d))
            if dt + 3 < 8:
                vr = [vread(dt + 3, ks, h, t4) for ks in range(2) for h in range(2)]
                for i, g in enumerate([1, 3, 5, 7]):
                    put(64 + 8 * dt + g, vr[i])
        put(66, f's_add_u32 s{S_TOFF}, s{S_TOFF}, 16384')
        if pf:
            put(105, f'buffer_load_dword v{V_PFD}, v{V_PF}, s[{S_PF}:{S_PF + 3}], s{S_PFO} offen offset:{(t4 & 1) * 2048}')
            if t4 == 1:
                put(106, f's_add_u32 s{S_PFO}, s{S_PFO}, 4096')
            if t4 == 3:
                rot = [f's_sub_u32 s{S_PFO}, s{S_PFO}, 4096',
                       f's_mov_b64 s[{S_PF}:{S_PF + 1}], s[{S_PT}:{S_PT + 1}]',
                       f's_mov_b64 s[{S_PT}:{S_PT + 1}], s[{S_PT + 2}:{S_PT + 3}]',
                       f's_mov_b64 s[{S_PT + 2}:{S_PT + 3}], s[{S_PT + 4}:{S_PT + 5}]',
                       f's_mov_b64 s[{S_PT + 4}:{S_PT + 5}], s[{S_PT + 6}:{S_PT + 7}]',
                       f's_mov_b64 s[{S_PT + 6}:{S_PT + 7}], s[44:45]',
                       f's_cmp_lt_u32 s{S_CNT}, 3',
                       f's_cselect_b32 s{S_PF + 2}, {1024 * 7168}, 0',
                       f's_cmp_eq_u32 s{S_CNT}, 3',
                       f's_cselect_b32 s{S_PF + 2}, {1024 * 12288}, s{S_PF + 2}',
                       f's_cselect_b32 s{S_PFO}, s{S_PFN}, s{S_PFO}']
                if xpf:
                    rot += [f's_cmp_eq_u32 s{S_CNT}, 4',
                            f's_cselect_b32 s{S_PF + 2}, {64 << 20}, s{S_PF + 2}',
                            f's_cselect_b32 s{S_PFO}, s37, s{S_PFO}']
                for o, g in zip(rot, [106, 107, 108, 109, 110, 114, 116, 118, 119, 120, 122, 123, 124, 126]):
                    put(g, o)
        if not last:
            put(111, f's_waitcnt vmcnt({[16, 12, 4][t4] if peel else 17 if pf else 16}) lgkmcnt(0)')
            put(112, 's_barrier')
            for s, g in enumerate([113, 115, 117, 121]):
                put(g, kread(0, s, (t4 + 2) & 3))
        emit_phase(k, M, gaps)

    SCH = sched_attn.best(**(skw or {})) if v2 else None
    V_ONE = V_WD

    def sop(o, ss):
        if o[0] == 'E':
            r = Preg(ss, o[1], o[2]) + o[3]
            return f'v_exp_f32 v{r}, v{r}'
        if o[0] == 'C':
            b = Preg(ss, o[1], o[2])
            return f'v_cvt_pk_bf16_f32 v{b + o[3]}, v{b + 2 * o[3]}, v{b + 2 * o[3] + 1}'
        if o[0] == 'L':
            return f'v_add_f32 v{V_L + o[1]}, v{V_L + o[1]}, v{V_LT + o[1]}'
        if o[0] == 'A':
            b = Preg(ss, o[1], 1)
            lt = V_LT + o[1]
            if o[2] == 1:
                return f'v_add_f32 v{lt}, v{b}, v{b + 1}'
            if o[2] == 8:
                return f'v_add_f32 v{lt}, v{lt}, v{Preg(ss, o[1], 0) + 4}'
            return f'v_add_f32 v{lt}, v{lt}, v{b + o[2]}'
        if o[0] == 'X':
            return [f'v_max3_f32 v{V_CK}, v{V_LT}, v{V_LT + 1}, v{V_LT + 2}', f'v_max_f32 v{V_CK}, v{V_CK}, v{V_LT + 3}',
                    f'v_cmp_nge_f32 vcc, s{S_THR}, v{V_CK}'][o[1]]

    def summ(q, ss):
        b = Preg(ss, q, 0)
        return mf(r4('v', b + 4), r4('v', V_ONE), r4('v', b), '0')

    def tile2(t4, last=False, pf=False, peel=False):
        NG, G0, BAR = sched_attn.NG, 63, 68
        _, MS, SG, _ = SCH
        st, sn = t4 & 1, (t4 + 1) & 1
        gaps = {}

        def put(g, op):
            gaps.setdefault(g, []).append(op)
        M = []
        for i, m in enumerate(MS):
            if m[0] == 'QK':
                _, kt, qt, s = m
                d = r4('v', Sreg(sn, kt, qt))
                M.append(None if last else mf(d, r4('a', A_KF + (kt & 1) * 16 + s * 4), r4('v', Qreg(qt, s)), r4('v', V_CI + qt * 4) if s == 0 else d))
            elif m[0] == 'PV':
                _, dt, qt, ks = m
                d = r4('a', Oreg(dt, qt))
                M.append(mf(d, r4('a', A_VF + (dt & 3) * 8 + ks * 4), r4('v', Preg(st, qt, ks)), d))
            else:
                M.append(summ(m[1], st) if i < G0 else (None if last else summ(m[1], sn)))
        seen = set()
        wg = {BAR - 1, BAR, G0}
        for i, m in enumerate(MS):
            key = (m[0], m[1], m[3]) if m[0] != 'SUM' else None
            if key and key not in seen:
                seen.add(key)
                wg.add((i - 1) % NG)
        used_s = set(wg)

        def put_s(lo, hi, op):
            for g in range(lo, hi + 1):
                if g not in used_s:
                    used_s.add(g)
                    put(g, op)
                    return g
            put(hi, op)
            return hi
        vd = [o[0] if isinstance(o, tuple) else o for o in kv_dma('V', t4 + 3, f's{S_VOFF}')]
        kd = [o[0] if isinstance(o, tuple) else o for o in kv_dma('K', t4, f's{S_KOFF}')]
        dpos = {}
        for u, ops in SG.items():
            g = u % NG
            for o in ops:
                if o[0] in 'ECLAX':
                    if u >= NG:
                        put(g, sop(o, st))
                    elif not last:
                        put(g, sop(o, sn))
                elif o[0] == 'K':
                    if not last:
                        put(g, kread(o[1], o[2], (t4 + (1 if u >= NG else 2)) & 3))
                elif o[0] == 'V':
                    put(g, vread(o[1], o[2], o[3], t4))
                elif o[0] == 'D':
                    dpos[o[1]] = g
        lab = k.newlabel('tr')
        put(G0, f's_cbranch_vccnz {k.L(lab)}')
        put(G0, k.L(lab + 'r') + ':')
        tramps.append((lab, st))
        put_s(G0 + 1, G0 + 12, f's_add_u32 s{S_TOFF}, s{S_TOFF}, 16384')
        if not last:
            if not peel or t4 == 0:
                put_s(BAR + 1, dpos[0] - 1, vd[0])
                for j in range(4):
                    put(dpos[j], vd[1 + j])
                put(dpos[3] + 1, f's_add_u32 s{S_VOFF}, s{S_VOFF}, 16384')
                used_s.add(dpos[3] + 1)
            if not peel:
                put_s(4, dpos[4] - 1, kd[0])
                for j in range(4):
                    put(dpos[4 + j], kd[1 + j])
                put_s(dpos[7] + 1, G0 - 1, f's_add_u32 s{S_KOFF}, s{S_KOFF}, 16384')
            elif t4 < 2:
                g = put_s(4, dpos[4] - 3, f's_lshl_b32 m0, s{S_M0K}, 1')
                put_s(g + 1, dpos[4] - 1, f's_add_u32 m0, m0, {LDS_M + t4 * 4096}')
                for j in range(4):
                    put(dpos[4 + j], f'buffer_load_dwordx4 v{V_MD}, s[{S_WM}:{S_WM + 3}], s29 offen offset:{j * 1024} lds')
                    put_s(dpos[4 + j] + 1, dpos[5 + j] - 1, f's_add_u32 s29, s29, {32 * 12288 - 1024 + (4096 if j == 3 else 0)}')
            put(BAR - 1, f's_waitcnt vmcnt({4 if (peel and t4 == 2) else 12})')
            put(BAR, 's_barrier')
        if pf:
            put(dpos[8], f'buffer_load_dword v{V_PFD}, v{V_PF}, s[{S_PF}:{S_PF + 3}], s{S_PFO} offen offset:{(t4 & 1) * 2048}')
            if t4 == 1:
                put_s(80, 100, f's_add_u32 s{S_PFO}, s{S_PFO}, 4096')
            if t4 == 3:
                rot = [f's_sub_u32 s{S_PFO}, s{S_PFO}, 4096',
                       f's_mov_b64 s[{S_PF}:{S_PF + 1}], s[{S_PT}:{S_PT + 1}]',
                       f's_mov_b64 s[{S_PT}:{S_PT + 1}], s[{S_PT + 2}:{S_PT + 3}]',
                       f's_mov_b64 s[{S_PT + 2}:{S_PT + 3}], s[{S_PT + 4}:{S_PT + 5}]',
                       f's_mov_b64 s[{S_PT + 4}:{S_PT + 5}], s[{S_PT + 6}:{S_PT + 7}]',
                       f's_cmp_lt_u32 s{S_CNT}, 3',
                       f's_cselect_b32 s{S_PF + 2}, {1024 * 7168}, 0',
                       f's_cmp_eq_u32 s{S_CNT}, 3',
                       f's_cselect_b32 s{S_PF + 2}, {1024 * 12288}, s{S_PF + 2}',
                       f's_cselect_b32 s{S_PFO}, s{S_PFN}, s{S_PFO}',
                       f's_add_u32 s{S_CNT}, s{S_CNT}, 1']
                g = 80
                for o in rot:
                    g = put_s(g + 1, 120, o)
        if last:
            B0 = 66
            lops = [f'v_add_f32 v{V_L + qt}, v{V_L + qt}, v{V_LT + qt}' for qt in range(4)]
            for sw in ('v_permlane16_swap_b32', 'v_permlane32_swap_b32'):
                lops += [f'v_mov_b32 v{V_T0 + qt}, v{V_L + qt}' for qt in range(4)]
                lops += [f'{sw} v{V_T0 + qt}, v{V_L + qt}' for qt in range(4)]
                lops += [f'v_add_f32 v{V_L + qt}, v{V_L + qt}, v{V_T0 + qt}' for qt in range(4)]
            lops += [f'v_rcp_f32 v{V_L + qt}, v{V_L + qt}' for qt in range(4)]
            for i, o in enumerate(lops):
                put(B0 + i // 2, o)
            for o in [f's_add_u32 s{S_H}, s44, {WS_MOD}', f's_addc_u32 s{S_H + 1}, s45, 0', f's_mov_b32 s{S_H + 2}, 65536',
                      f's_lshl_b32 s50, s{S_W}, 9', f's_add_u32 s50, s50, 32768', f'v_and_b32 v{V_KG}, 0x30, v{V_LANE}',
                      's_waitcnt vmcnt(0)', f'v_lshlrev_b32 v{V_CK}, 4, v{V_KG}', f'v_and_b32 v{V_MD}, 15, v{V_LANE}',
                      f'v_lshl_add_u32 v{V_CK}, v{V_MD}, 3, v{V_CK}', f's_lshl_b32 s51, s{S_M0K}, 1', f's_add_u32 s51, s51, {LDS_M}',
                      f'v_add_u32 v{V_CK}, s51, v{V_CK}']:
                put(65, ('raw', o))
            for s8 in range(8):
                put(B0 + 2 * s8, f'buffer_load_dwordx4 {r4("a", A_X2 + 4 * s8)}, v{V_KG}, s[{S_H}:{S_H + 3}], s50 offen offset:{s8 * 64}')
                for h in range(2):
                    b = A_X2 + 32 + 4 * s8 + 2 * h
                    put(114 + 2 * s8 + h, f'ds_read_b64_tr_b16 a[{b}:{b + 1}], v{V_CK} offset:{s8 * 1024 + h * 128}')
            for j in range(3):
                eo = epi_ops(j)
                g0 = max(i for i, m in enumerate(MS) if m[0] == 'PV' and m[1] == 2 * j + 1) + 3
                span = min(16, NG - g0)
                for i, o in enumerate(eo):
                    put(g0 + (i * span) // len(eo), ('raw', o))
        emit_phase(k, M, gaps)

    if not v2:
        pre = [(pos + (0 if kind == 0 else 3), op) for pos, kind, op in softmax_stream(0) if pos < 128]
        pre.sort(key=lambda x: x[0])
        for pos, op in pre:
            k(op)
    else:
        for r in range(4):
            k(f'v_mov_b32 v{V_ONE + r}, 0x3e803e80')
        for u in sorted(SCH[2]):
            if u >= sched_attn.NG:
                break
            if SCH[1][u][0] == 'SUM':
                k(summ(SCH[1][u][1], 0))
            for o in SCH[2][u]:
                if o[0] in 'ECLA':
                    k(sop(o, 0))
                elif o[0] == 'K' and o[1] == 1:
                    k(kread(1, o[2], 1))
    T.stamp()
    k('.p2align 6')
    k.label('loop')
    for t4 in range(4):
        (tile2 if v2 else tile)(t4, pf=mallpf)
    if not (v2 and mallpf):
        k(f's_add_u32 s{S_CNT}, s{S_CNT}, 1')
    k(f's_cmp_lt_u32 s{S_CNT}, 7')
    k(f's_cbranch_scc1 {k.L("loop")}')
    T.stamp()
    for t4 in range(4):
        (tile2 if v2 else tile)(t4, last=(t4 == 3), peel=True)
    T.stamp()

    for s8 in range(8):
        k(mf(r4('v', V_TM), r4('a', A_X2 + 32 + 4 * s8), r4('a', A_X2 + 4 * s8), '0' if s8 == 0 else r4('v', V_TM)))
    for o in epi_ops(3):
        k(o)
    k(f'v_lshlrev_b32 v2, 6, v{V_LANE}')
    k(f's_lshl_b32 s51, s{S_W}, 6')
    k(f'v_add_u32 v3, s51, v{V_KG}')
    k(f'ds_write_b128 v3, {r4("v", V_TM)}')
    k('s_waitcnt lgkmcnt(0)')
    k('s_barrier')
    k(f's_cmp_lg_u32 s{S_W}, 0')
    k(f's_cbranch_scc1 {k.L("fin")}')
    k(f'v_lshlrev_b32 v2, 2, v{V_MD}')
    for w in range(4):
        k(f'ds_read_b32 v{4 + w}, v2 offset:{w * 64}')
    k('v_add_f32 v4, v4, v5')
    k('v_add_f32 v6, v6, v7')
    k('v_add_f32 v4, v4, v6')
    k('v_cvt_pk_bf16_f32 v4, v4, v4')
    k('v_and_b32 v4, 0xffff0000, v4')
    k('s_lshr_b32 s29, s28, 6')
    k('s_cmp_eq_u32 s29, 2')
    k('s_cselect_b32 s29, 1.0, 0')
    k('v_add_f32 v4, s29, v4')
    k('v_cvt_pk_bf16_f32 v4, v4, v4')
    k('v_and_b32 v4, 0xffff0000, v4')
    k('s_lshl_b32 s29, s28, 6')
    k('s_add_u32 s29, s29, 8192')
    k(f'buffer_store_dword v4, v2, s[{S_H}:{S_H + 3}], s29 offen')
    k.label('fin')
    k('s_waitcnt vmcnt(0)') if dbg else None
    T.stamp()
    T.dump(44, S_W, 0)
    k.label('end')
    k('s_endpgm')

    for lab, st in tramps:
        k.label(lab)
        k(f's_call_b64 s[{S_RET}:{S_RET + 1}], {k.L("slow%d" % st)}')
        k(f's_branch {k.L(lab + "r")}')
    for st in range(2):
        sn = st ^ 1
        k.label(f'slow{st}')
        for kt in range(4):
            k(f's_add_u32 s52, s{S_TOFF}, {kt * 4096}')
            for s in range(4):
                k(f'buffer_load_dwordx4 {r4("a", A_X2 + (kt * 4 + s) * 4)}, v{V_KG}, s[{S_K}:{S_K + 3}], s52 offen offset:{s * 64}')
        k('s_waitcnt vmcnt(0)')
        for kt in range(4):
            for qt in range(4):
                for s in range(4):
                    d = r4('v', Sreg(st, kt, qt))
                    c = r4('v', V_CI + qt * 4) if s == 0 else d
                    k(mf(d, r4('a', A_X2 + (kt * 4 + s) * 4), r4('v', Qreg(qt, s)), c))
        rowmax(st, V_TM)
        k(f's_mov_b32 s53, {f32(BIAS)}')
        for qt in range(4):
            k(f'v_add_f32 v{V_TM + qt}, s53, v{V_TM + qt}')
            k(f'v_max_f32 v{V_TM + qt}, 0, v{V_TM + qt}')
            k(f'v_sub_f32 v{V_T0 + qt}, 0, v{V_TM + qt}')
            k(f'v_exp_f32 v{V_T0 + qt}, v{V_T0 + qt}')
            for r in range(4):
                k(f'v_sub_f32 v{V_CI + qt * 4 + r}, v{V_CI + qt * 4 + r}, v{V_TM + qt}')
            k(f'v_mul_f32 v{V_L + qt}, v{V_L + qt}, v{V_T0 + qt}')
        for ss in (st, sn):
            for kt in range(4):
                for qt in range(4):
                    for r in range(4):
                        x = Sreg(ss, kt, qt) + r
                        k(f'v_sub_f32 v{x}, v{x}, v{V_TM + qt}')
        for dt in range(8):
            for qt in range(4):
                for r in range(4):
                    a = Oreg(dt, qt) + r
                    k(f'v_accvgpr_read_b32 v6, a{a}')
                    k(f'v_mul_f32 v6, v6, v{V_T0 + qt}')
                    k(f'v_accvgpr_write_b32 a{a}, v6')
        for qt in range(4):
            k(f'v_mov_b32 v{V_LT + qt}, 0')
        for ks in range(2):
            ex, ad, cv = softmax_half_ops(st, ks, False)
            g0 = {}
            place_softmax(g0, ex, ad, cv)
            emit_phase(k, [None] * 64, g0)
        k(f's_setpc_b64 s[{S_RET}:{S_RET + 1}]')
    return k
```

```python
from common import *
import math

WS_SC = 32768
WS_PART = 65536
P = lambda b: f'v[{b}:{b + 1}]'


def gen_modp(dbg=False, allcode=None, pfx=True, cpf=True):
    k = Kernel('modp_kernel', vgprs=64, sgprs=96 if dbg else 64, grid=256, block=256, lds=1024)
    T = Stamper(k, dbg)
    k('s_cmp_ge_u32 s2, 256')
    k(f's_cbranch_scc1 {k.L("end")}')
    T.start()
    k(f's_load_dwordx4 s[4:7], s[0:1], {C_IN}')
    k(f's_load_dwordx2 s[12:13], s[0:1], {A_X}')
    k(f's_load_dwordx2 s[10:11], s[0:1], {D_WS}')
    if cpf:
        code_prefetch(k, 44, 16, 17, 0, 256, 4096)
    k('v_lshrrev_b32 v1, 6, v0')
    k('v_and_b32 v2, 63, v0')
    k('v_readfirstlane_b32 s20, v1')
    k('s_and_b32 s26, s2, 31')
    k('s_lshr_b32 s27, s2, 5')
    k(f's_mul_i32 s32, s27, {128 * 12288}')
    k('s_lshl_b32 s33, s26, 7')
    k('s_add_u32 s32, s32, s33')
    k('s_lshl_b32 s33, s27, 8')
    k('v_lshrrev_b32 v6, 3, v0')
    k('v_and_b32 v7, 7, v0')
    k('s_movk_i32 s34, 12288')
    k('v_mul_lo_u32 v8, v6, s34')
    k('v_lshl_add_u32 v8, v7, 4, v8')
    k('v_lshlrev_b32 v9, 1, v6')
    k('s_waitcnt lgkmcnt(0)')
    srd(k, 52, 6, 0, 1024 * 12288)
    srd(k, 48, 4, 0, 2048)
    for i in range(4):
        k(f'buffer_load_ushort v{24 + i}, v9, s[48:51], s33 offen offset:{i * 64}')
    for i in range(4):
        k(f'buffer_load_dwordx4 v[{32 + 4 * i}:{35 + 4 * i}], v8, s[52:55], s32 offen')
        if i < 3:
            k(f's_add_u32 s32, s32, {32 * 12288}')
    if pfx:
        k('s_mov_b32 s14, %d' % (2048 * 2048))
        k('s_mov_b32 s15, 0x00020000')
        k('s_lshl_b32 s23, s2, 14')
        k('v_lshlrev_b32 v10, 7, v0')
        k('s_cmp_ge_u32 s20, 2')
        k(f's_cbranch_scc1 {k.L("nox")}')
        k('buffer_load_dword v11, v10, s[12:15], s23 offen')
        k.label('nox')
        if allcode:
            k('s_cmp_lg_u32 s20, 3')
            k(f's_cbranch_scc1 {k.L("noc")}')
            k('s_cmp_ge_u32 s2, 24')
            k(f's_cbranch_scc1 {k.L("noc")}')
            k('s_getpc_b64 s[40:41]')
            k.label('pc2')
            k(f's_mov_b32 s42, {allcode}-{k.L("pc2")}')
            k('s_mov_b32 s43, 0x00020000')
            k('s_lshl_b32 s37, s2, 13')
            k('v_lshlrev_b32 v10, 7, v2')
            k('buffer_load_dword v11, v10, s[40:43], s37 offen')
            k.label('noc')
    srd(k, 16, 10, 0, 64 << 20)
    k('s_lshl_b32 s36, s2, 2')
    k('s_add_u32 s36, s36, s20')
    k('s_lshl_b32 s36, s36, 6')
    k(f's_add_u32 s36, s36, {60 << 20}')
    k('v_and_b32 v14, 3, v2')
    k('v_lshlrev_b32 v14, 16, v14')
    k('v_lshrrev_b32 v15, 2, v2')
    k('v_lshl_add_u32 v14, v15, 2, v14')
    k('v_mov_b32 v15, 0')
    k('buffer_store_dword v15, v14, s[16:19], s36 offen')
    k('s_lshl_b32 s36, s2, 10')
    k(f's_add_u32 s36, s36, {61 << 20}')
    k('v_lshlrev_b32 v14, 2, v0')
    k('v_mov_b32 v18, -1.0')
    k('buffer_store_dword v18, v14, s[16:19], s36 offen')
    k(f's_mov_b32 s35, {f32(-math.log2(math.e))}')
    for i in range(4):
        k(f'v_lshlrev_b32 v{24 + i}, 16, v{24 + i}')
    for i in range(4):
        k(f'v_mul_f32 v{28 + i}, s35, v{24 + i}')
    for i in range(4):
        k(f'v_exp_f32 v{28 + i}, v{28 + i}')
    for i in range(4):
        k(f'v_add_f32 v{28 + i}, 1.0, v{28 + i}')
    for i in range(4):
        k(f'v_rcp_f32 v{28 + i}, v{28 + i}')
    for i in range(4):
        k(f'v_mul_f32 v{24 + i}, v{24 + i}, v{28 + i}')
    for i in range(4):
        k(f'v_cvt_pk_bf16_f32 v{24 + i}, v{24 + i}, v{24 + i}')
    for i in range(4):
        k(f'v_and_b32 v{28 + i}, 0xffff0000, v{24 + i}')
    for i in range(4):
        for d in range(4):
            r = 32 + 4 * i + d
            k(f'v_lshlrev_b32 v12, 16, v{r}')
            k(f'v_and_b32 v13, 0xffff0000, v{r}')
            if i == 0:
                k(f'v_pk_mul_f32 {P(48 + 2 * d)}, v[12:13], {P(28)} op_sel_hi:[1,0]')
            else:
                b = 28 + (i & ~1)
                sel = 'op_sel:[0,1,0] op_sel_hi:[1,1,1]' if i & 1 else 'op_sel_hi:[1,0,1]'
                k(f'v_pk_fma_f32 {P(48 + 2 * d)}, v[12:13], {P(b)}, {P(48 + 2 * d)} {sel}')
    regs = list(range(48, 56)); tmps = list(range(56, 64))
    for r in regs:
        k(f'v_add_f32_dpp v{r}, v{r}, v{r} row_ror:8 row_mask:0xf bank_mask:0xf')
    for sw in ('v_permlane16_swap_b32', 'v_permlane32_swap_b32'):
        for r, t in zip(regs, tmps):
            k(f'v_mov_b32 v{t}, v{r}')
        for r, t in zip(regs, tmps):
            k(f'{sw} v{t}, v{r}')
        for r, t in list(zip(regs, tmps))[::2]:
            k(f'v_pk_add_f32 {P(r)}, {P(r)}, {P(t)}')
    k('v_lshlrev_b32 v12, 8, v1')
    k('v_lshl_add_u32 v12, v7, 5, v12')
    k('ds_write_b128 v12, v[48:51]')
    k('ds_write_b128 v12, v[52:55] offset:16')
    k('v_lshlrev_b32 v13, 2, v2')
    k('s_cmp_lg_u32 s26, 0')
    k(f's_cbranch_scc1 {k.L("nosc")}')
    k(f's_add_u32 s34, s33, {WS_SC}')
    for i in range(4):
        k(f'buffer_store_short v{24 + i}, v9, s[16:19], s34 offen offset:{i * 64}')
    k.label('nosc')
    k('s_waitcnt lgkmcnt(0)')
    k('s_barrier')
    k('s_cmp_lg_u32 s20, 0')
    k(f's_cbranch_scc1 {k.L("fin")}')
    for w in range(4):
        k(f'ds_read_b32 v{56 + w}, v13 offset:{w * 256}')
    k('s_lshl_b32 s34, s27, 13')
    k('s_lshl_b32 s35, s26, 8')
    k('s_add_u32 s34, s34, s35')
    k(f's_add_u32 s34, s34, {WS_PART}')
    k('v_add_f32 v56, v56, v57')
    k('v_add_f32 v58, v58, v59')
    k('v_add_f32 v56, v56, v58')
    k('buffer_store_dword v56, v13, s[16:19], s34 offen')
    k.label('fin')
    if dbg:
        k('s_waitcnt vmcnt(0)')
        T.stamp()
        T.dump(10, 20, 4)
    k.label('end')
    k('s_endpgm')
    return k


def gen_ln(name, src_arg, src_off, dst_off, parts, seg_shift=0, seg_scale=0, post=None, dbg=False, slot=5, pfq=0, cpf=True, latepf=0):
    k = Kernel(name, vgprs=160 if parts else 96, sgprs=96 if dbg else 48, grid=256, block=320 if pfq else 256, lds=8192 if parts else 0)
    T = Stamper(k, dbg)
    k('s_cmp_ge_u32 s2, 256')
    k(f's_cbranch_scc1 {k.L("end")}')
    T.start()
    k(f's_load_dwordx2 s[4:5], s[0:1], {src_arg}')
    k(f's_load_dwordx2 s[10:11], s[0:1], {D_WS}')
    if latepf:
        k(f's_load_dwordx2 s[40:41], s[0:1], {A_WQ}')
    if pfq:
        k(f's_load_dwordx2 s[40:41], s[0:1], {A_WQ}')
        k(f's_load_dwordx4 s[44:47], s[0:1], {A_K}')
    if cpf:
        code_prefetch(k, 36, 94, 95, 0, 256, 4096)
    k('v_lshrrev_b32 v1, 6, v0')
    k('v_and_b32 v2, 63, v0')
    k('v_readfirstlane_b32 s20, v1')
    if pfq:
        k('s_cmp_eq_u32 s20, 4')
        k(f's_cbranch_scc1 {k.L("pfw")}')
    k('v_lshlrev_b32 v3, 4, v2')
    k('v_lshlrev_b32 v4, 5, v2')
    k('v_lshlrev_b32 v7, 4, v0')
    k('s_lshl_b32 s21, s2, 3')
    k('s_lshl_b32 s22, s20, 1')
    k('s_add_u32 s21, s21, s22')
    k('s_lshl_b32 s23, s21, 11')
    k('s_waitcnt lgkmcnt(0)')
    srd(k, 12, 4, src_off, 2048 * 2048)
    for r in range(2):
        for h in range(2):
            b = 8 + 8 * r + 4 * h
            k(f'buffer_load_dwordx4 v[{b}:{b + 3}], v3, s[12:15], s23 offen offset:{r * 2048 + h * 1024}')
    srd(k, 16, 10, 0, WS_PART + 65536)
    if parts:
        k(f's_mov_b32 s26, {WS_PART}')
        for p in range(8):
            for h in range(2):
                b = 96 + 8 * p + 4 * h
                k(f'buffer_load_dwordx4 v[{b}:{b + 3}], v7, s[16:19], s26 offen')
                k('s_add_u32 s26, s26, 4096')
    else:
        k(f's_movk_i32 s26, {seg_scale * 4096}')
        k(f's_movk_i32 s27, {seg_shift * 4096}')
        for h in range(2):
            for j in range(2):
                b = 24 + 8 * h + 4 * j
                k(f'buffer_load_dwordx4 v[{b}:{b + 3}], v4, s[16:19], s26 offen offset:{h * 2048 + j * 16}')
                k(f'buffer_load_dwordx4 v[{b + 16}:{b + 19}], v4, s[16:19], s27 offen offset:{h * 2048 + j * 16}')
    srd(k, 28, 10, dst_off, 2048 * 2048)
    k('v_lshrrev_b32 v5, 2, v2')
    k('v_lshlrev_b32 v5, 17, v5')
    k('v_and_b32 v6, 3, v2')
    k('v_lshl_add_u32 v5, v6, 8, v5')
    k('s_lshr_b32 s24, s21, 4')
    k('s_lshl_b32 s24, s24, 10')
    k('s_and_b32 s25, s21, 15')
    k('s_lshl_b32 s25, s25, 4')
    k('s_add_u32 s24, s24, s25')
    for r in range(2):
        for d in range(8):
            s = 8 + 8 * r + d
            o = 56 + 16 * r + 2 * d
            k(f'v_lshlrev_b32 v{o}, 16, v{s}')
            k(f'v_and_b32 v{o + 1}, 0xffff0000, v{s}')
    for r in range(2):
        o = 56 + 16 * r
        k(f'v_pk_add_f32 {P(8 + 2 * r)}, {P(o)}, {P(o + 2)}')
    for e in range(4, 16, 2):
        for r in range(2):
            o = 56 + 16 * r
            k(f'v_pk_add_f32 {P(8 + 2 * r)}, {P(8 + 2 * r)}, {P(o + e)}')
    for r in range(2):
        k(f'v_add_f32 v{8 + 2 * r}, v{8 + 2 * r}, v{9 + 2 * r}')
    wave_allreduce_add(k, [8, 10], [9, 11])
    k(f's_mov_b32 s34, {f32(-1.0 / 1024)}')
    for r in range(2):
        k(f'v_mul_f32 v{8 + 2 * r}, s34, v{8 + 2 * r}')
    for r in range(2):
        for e in range(0, 16, 2):
            o = 56 + 16 * r + e
            k(f'v_pk_add_f32 {P(o)}, {P(o)}, {P(8 + 2 * r)} op_sel_hi:[1,0]')
    for r in range(2):
        o = 56 + 16 * r
        k(f'v_pk_mul_f32 {P(8 + 2 * r)}, {P(o)}, {P(o)}')
    for e in range(2, 16, 2):
        for r in range(2):
            o = 56 + 16 * r
            k(f'v_pk_fma_f32 {P(8 + 2 * r)}, {P(o + e)}, {P(o + e)}, {P(8 + 2 * r)}')
    for r in range(2):
        k(f'v_add_f32 v{8 + 2 * r}, v{8 + 2 * r}, v{9 + 2 * r}')
    if parts:
        k(f's_mov_b32 s33, {f32(post)}')
        for p in range(1, 8):
            for e in range(0, 8, 2):
                k(f'v_pk_add_f32 {P(96 + e)}, {P(96 + e)}, {P(96 + 8 * p + e)}')
        if latepf:
            k(f's_mov_b32 s42, {latepf * 8192}')
            k('s_mov_b32 s43, 0x00020000')
            per = latepf * 8192 // 256
            k(f's_mul_i32 s37, s2, {per}')
            k('v_lshlrev_b32 v94, 7, v0')
            k(f'v_cmp_gt_u32 vcc, {per}, v94')
            k('v_mov_b32 v93, 0x40000000')
            k('v_cndmask_b32 v94, v93, v94, vcc')
            k('buffer_load_dword v92, v94, s[40:43], s37 offen')
        for e in range(0, 8, 2):
            k(f'v_cvt_pk_bf16_f32 v{104 + e // 2}, v{96 + e}, v{97 + e}')
        for e in range(0, 8, 2):
            k(f'v_lshlrev_b32 v{96 + e}, 16, v{104 + e // 2}')
            k(f'v_and_b32 v{97 + e}, 0xffff0000, v{104 + e // 2}')
        for e in range(4):
            k(f'v_mul_f32 v{96 + e}, s33, v{96 + e}')
            k(f'v_add_f32 v{100 + e}, 1.0, v{100 + e}')
        for e in range(0, 4, 2):
            k(f'v_cvt_pk_bf16_f32 v{104 + e // 2}, v{100 + e}, v{101 + e}')
        for e in range(0, 4, 2):
            k(f'v_lshlrev_b32 v{100 + e}, 16, v{104 + e // 2}')
            k(f'v_and_b32 v{101 + e}, 0xffff0000, v{104 + e // 2}')
        k('ds_write_b128 v7, v[96:99]')
        k('ds_write_b128 v7, v[100:103] offset:4096')
        k('s_waitcnt lgkmcnt(0)')
        k('s_barrier')
        for h in range(2):
            for j in range(2):
                k(f'ds_read_b128 v[{24 + 8 * h + 4 * j}:{27 + 8 * h + 4 * j}], v4 offset:{4096 + h * 2048 + j * 16}')
                k(f'ds_read_b128 v[{40 + 8 * h + 4 * j}:{43 + 8 * h + 4 * j}], v4 offset:{h * 2048 + j * 16}')
    wave_allreduce_add(k, [8, 10], [9, 11])
    k(f's_mov_b32 s34, {f32(1.0 / 1024)}')
    k(f'v_mov_b32 v12, {f32(1e-5)}')
    for r in range(2):
        k(f'v_fma_f32 v{8 + 2 * r}, v{8 + 2 * r}, s34, v12')
    for r in range(2):
        k(f'v_rsq_f32 v{8 + 2 * r}, v{8 + 2 * r}')
    if post is not None:
        for r in range(2):
            k(f'v_mul_f32 v{8 + 2 * r}, s33, v{8 + 2 * r}')
    for r in range(2):
        for e in range(0, 16, 2):
            o = 56 + 16 * r + e
            k(f'v_pk_mul_f32 {P(o)}, {P(o)}, {P(8 + 2 * r)} op_sel_hi:[1,0]')
        for e in range(0, 16, 2):
            o = 56 + 16 * r + e
            k(f'v_pk_fma_f32 {P(o)}, {P(o)}, {P(24 + e)}, {P(40 + e)}')
        for d in range(8):
            o = 56 + 16 * r + 2 * d
            k(f'v_cvt_pk_bf16_f32 v{56 + 16 * r + d}, v{o}, v{o + 1}')
        k(f's_add_u32 s35, s24, {16 * r}')
        k(f's_add_u32 s36, s24, {16 * r + 16 * 131072}')
        o = 56 + 16 * r
        k(f'buffer_store_dwordx4 v[{o}:{o + 3}], v5, s[28:31], s35 offen')
        k(f'buffer_store_dwordx4 v[{o + 4}:{o + 7}], v5, s[28:31], s36 offen')
    if dbg:
        if not latepf: k('s_waitcnt vmcnt(0)')
        T.stamp()
        T.dump(10, 20, slot)
    k.label('end')
    k('s_endpgm')
    if pfq:
        k.label('pfw')
        k('s_mov_b32 s42, %d' % (1024 * 8192))
        k('s_mov_b32 s43, 0x00020000')
        k('s_lshl_b32 s37, s2, 13')
        k('v_lshlrev_b32 v7, 7, v2')
        k('s_waitcnt lgkmcnt(0)')
        for i in range(4):
            k(f'buffer_load_dword v8, v7, s[40:43], s37 offen')
            k(f's_add_u32 s37, s37, {256 * 8192}')
        if pfq > 1:
            k('s_bitcmp1_b32 s2, 2')
            k('s_cselect_b32 s40, s46, s44')
            k('s_cselect_b32 s41, s47, s45')
            k('s_mov_b32 s42, %d' % (32 * 524288))
            k('s_lshr_b32 s37, s2, 3')
            k('s_lshl_b32 s37, s37, 19')
            k('s_and_b32 s38, s2, 3')
            k('s_lshl_b32 s38, s38, 13')
            k('s_add_u32 s37, s37, s38')
            k('buffer_load_dword v8, v7, s[40:43], s37 offen')
        k('s_barrier')
        k('s_endpgm')
    return k
```

```python
from common import *
import math


def r4(f, b):
    return f'{f}[{b}:{b + 3}]'


def mf(d, a, b, c):
    return f'v_mfma_f32_16x16x32_bf16 {d}, {a}, {b}, {c}'


def _cls(t):
    if t.startswith('s_'):
        return 0
    if t.startswith(('ds_', 'buffer_', 'global_')):
        return 1
    return 2


def lane_decomp(k):
    k('v_lshrrev_b32 v2, 6, v0')
    k('v_and_b32 v1, 63, v0')
    k('v_readfirstlane_b32 s30, v2')
    k('v_and_b32 v2, 15, v1')
    k('v_lshrrev_b32 v3, 4, v1')


def mainloop(k, NST, R, D, NT, MT, KS, WB, PD, acc, wfrag, afrag, wread, dma_ops, act_ops, adv_ops, T=None, need_lgkm=True, pf=None, fill=None):
    assert NST % R == 0
    nv = lambda ops: sum(1 for o in ops if o.startswith('buffer_'))
    per_stage = dma_ops(0) + act_ops(0) + adv_ops
    ndma, nact = nv(dma_ops(0)), nv(act_ops(0))
    npf = lambda st: (nv(pf[2]) if (pf and st % pf[0] == 0) else 0)
    if pf:
        for _ in range(pf[1]):
            for o in pf[2]:
                k(o)
    fill = list(fill or [])
    nper = -(-len(fill) // max(1, D * (ndma + nact) - 4))
    cnt = 0
    for st in range(D):
        for o in dma_ops(st % R) + act_ops(st % R) + adv_ops:
            k(o)
            if o.startswith('buffer_'):
                cnt += 1
                if cnt > 4:
                    for _ in range(nper):
                        if fill:
                            k(fill.pop(0))
    for o in fill:
        k(o)
    yield 'after_issue'
    k(f's_waitcnt vmcnt({min(63, nact + (D - 1) * (ndma + nact))})')
    k('s_barrier')
    if T: T.stamp()
    for g in range(PD):
        for s in range(KS):
            for h in range(2):
                k(wread(g, s, h, 0, g % WB))
    k('s_mov_b32 s34, 0')
    k('.p2align 6')
    k.label('loop')
    GL = MT * KS
    BG = NT - PD + (1 if need_lgkm else 0)
    assert (NT * R) % WB == 0
    for st in range(R):
        gaps = {}

        def put(g, op):
            gaps.setdefault(g, []).append(op)
        M = []
        pend = []
        busy = set()
        for nt in range(NT):
            G = st * NT + nt
            tgt = nt + PD
            rd = [wread(tgt % NT, s, h, (st + tgt // NT) % R, (G + PD) % WB) for s in range(KS) for h in range(2)]
            if tgt >= NT and nt < BG:
                pend += rd
                rd = []
            elif tgt >= NT:
                rd = pend + rd
                pend = []
            first = 1 if nt == BG else 0
            step = 1 if len(rd) * 2 > GL - first else 2
            for i, r in enumerate(rd):
                g = nt * GL + min(first + i * step, GL - 1)
                put(g, r)
                busy.add(g)
            for mt in range(MT):
                for s in range(KS):
                    d = acc(nt, mt)
                    M.append(mf(d, wfrag(G % WB, s), afrag(st, mt, s), d))
        assert not pend
        side = dma_ops((st + D) % R) + act_ops((st + D) % R) + adv_ops
        if pf and st % pf[0] == 0:
            side = pf[2] + side
        limit = NT * GL - 4
        free = [g for g in range(limit) if g not in busy and g not in (BG * GL - 1, BG * GL)]
        nvm = nv(side)
        if len(free) < 2 * nvm:
            free = [g for g in range(limit) if g not in (BG * GL - 1, BG * GL)]
        pos = [free[1 + (i * (len(free) - 1)) // nvm] for i in range(nvm)]
        vi = 0
        for i, o in enumerate(side):
            if o.startswith('buffer_'):
                put(pos[vi], o)
                vi += 1
            else:
                g = pos[vi] - 1 if vi < nvm else pos[-1] + 1
                if vi > 0:
                    g = max(g, pos[vi - 1] + (1 if vi >= nvm else 0))
                    if g == pos[vi - 1]:
                        put(g, ('late', o))
                        continue
                put(g, o)
        nbefore = sum(1 for p in pos if p < BG * GL - 1) - npf(st)
        assert D >= 2 and nbefore >= 0
        w = f's_waitcnt vmcnt({min(63, nact + (D - 2) * (ndma + nact) + nbefore)})' + (' lgkmcnt(0)' if need_lgkm else '')
        put(BG * GL - 1, w)
        put(BG * GL, 's_barrier')
        if st == R - 1:
            put(NT * GL - 3, 's_add_u32 s34, s34, 1')
            put(NT * GL - 2, f's_cmp_lt_u32 s34, {NST // R}')
        for i, m in enumerate(M):
            k(m)
            ops = gaps.get(i, [])
            early = sorted([o for o in ops if not isinstance(o, tuple)], key=_cls)
            for o in early:
                k(o)
            for o in ops:
                if isinstance(o, tuple):
                    k(o[1])
    k(f's_cbranch_scc1 {k.L("loop")}')
    if T: T.stamp()


def gen_gateup(dbg=False, cpf=True, stflag='sc1', D=2):
    k = Kernel('gateup_kernel', vgprs=256, agprs=256, sgprs=96, grid=224, block=256, lds=128 * 1024)
    T = Stamper(k, dbg)
    k('s_cmp_ge_u32 s2, 224')
    k(f's_cbranch_scc1 {k.L("end")}')
    T.start()
    k(f's_load_dwordx4 s[4:7], s[0:1], {B_WG}')
    k(f's_load_dwordx2 s[44:45], s[0:1], {D_WS}')
    if cpf:
        code_prefetch(k, 88, 60, 61, 0, 256, 32768)
    lane_decomp(k)
    k('s_and_b32 s40, s2, 7')
    k('s_lshr_b32 s41, s2, 3')
    k('s_and_b32 s42, s40, 1')
    k('s_lshl_b32 s42, s42, 2')
    k('s_and_b32 s43, s41, 3')
    k('s_add_u32 s42, s42, s43')
    k('s_lshr_b32 s43, s40, 1')
    k('s_mul_i32 s43, s43, 7')
    k('s_lshr_b32 s46, s41, 2')
    k('s_add_u32 s43, s43, s46')
    k('s_lshl_b32 s46, s43, 8')
    k('s_lshl_b32 s33, s30, 12')
    V_WD, V_HD, V_WA = 8, 12, 16
    k('s_mul_i32 s47, s30, %d' % (16 * 7168))
    k('s_movk_i32 s48, 7168')
    k('v_mul_lo_u32 v4, v3, s48')
    k('v_add_u32 v4, s47, v4')
    for j in range(4):
        k(f'v_add_u32 v5, {4 * (j >> 1)}, v3')
        k('v_lshlrev_b32 v5, 1, v5')
        k('v_xor_b32 v5, v5, v2')
        k('v_lshl_add_u32 v5, v5, 4, v4')
        k(f'v_add_u32 v{V_WD + j}, {4 * j * 7168 - 1024 * j}, v5')
    k(f'v_lshlrev_b32 v{V_HD}, 4, v1')
    k('s_waitcnt lgkmcnt(0)')
    srd(k, 8, 4, 's46', 1024 * 7168 - 27 * 256)
    srd(k, 12, 6, 's46', 1024 * 7168 - 27 * 256)
    srd(k, 16, 44, WS_H2, 2048 * 2048)
    srd(k, 20, 44, WS_ACT, 2048 * 7168)
    k('s_lshl_b32 s47, s42, 2')
    k('s_add_u32 s47, s47, s30')
    k('s_lshl_b32 s47, s47, 12')
    k('s_mov_b32 s31, 0')
    k('s_mov_b32 s32, s47')

    def dma_ops(slot):
        ops = []
        for mat in range(2):
            ops.append(f's_add_u32 m0, s33, {mat * 65536 + slot * 16384}')
            for j in range(4):
                ops.append(f'buffer_load_dwordx4 v{V_WD + j}, s[{8 + 4 * mat}:{11 + 4 * mat}], s31 offen offset:{j * 1024} lds')
        return ops

    def afrag(slot, mt, s):
        return r4('a', 128 + slot * 32 + (mt * 2 + s) * 4)

    def act_ops(slot):
        ops = []
        for s in range(2):
            for mt in range(4):
                ops.append(f'buffer_load_dwordx4 {afrag(slot, mt, s)}, v{V_HD}, s[16:19], s32 offen offset:{mt * 1024}')
            ops.append('s_add_u32 s32, s32, 131072')
        return ops
    adv = [f's_add_u32 s31, s31, {64 * 7168}']

    def acc(nt, mt):
        return r4('v', 128 + (nt * 4 + mt) * 4) if nt < 8 else r4('a', ((nt - 8) * 4 + mt) * 4)

    def wfrag(buf, s):
        return r4('v', 64 + buf * 8 + s * 4)

    def wread(nt, s, h, slot, buf):
        b = 64 + buf * 8 + s * 4 + h * 2
        return f'ds_read_b64_tr_b16 v[{b}:{b + 1}], v{V_WA + nt} offset:{slot * 16384 + s * 8192 + h * 1024}'

    fill = []
    f = fill.append
    f('v_lshrrev_b32 v4, 2, v2')
    f('v_and_b32 v5, 1, v3')
    f('v_lshl_or_b32 v5, v5, 2, v4')
    f('v_lshlrev_b32 v5, 1, v5')
    f('v_bfe_u32 v6, v2, 1, 1')
    f('v_xor_b32 v5, v5, v6')
    f('v_lshl_add_u32 v4, v3, 3, v4')
    f('v_lshlrev_b32 v4, 8, v4')
    f('v_and_b32 v6, 1, v2')
    f('v_lshl_add_u32 v4, v6, 3, v4')
    for nt in range(8):
        f(f'v_xor_b32 v6, {2 * nt}, v5')
        f(f'v_lshl_add_u32 v{V_WA + nt}, v6, 4, v4')
        f(f'v_add_u32 v{V_WA + 8 + nt}, 0x10000, v{V_WA + nt}')
    for i in range(0, 128, 2):
        f(f'v_mov_b64 v[{128 + i}:{129 + i}], 0')
    for i in range(128):
        f(f'v_accvgpr_write_b32 a{i}, 0')
    gen = mainloop(k, 16, 4, D, 16, 4, 2, 4, 3, acc, wfrag, afrag, wread, dma_ops, act_ops, adv, T, need_lgkm=(D == 3), fill=fill)
    for _ in gen:
        pass
    c0 = -2.0 * math.sqrt(2.0 / math.pi) * math.log2(math.e)
    c1 = c0 * 0.044715
    k(f'v_mov_b32 v8, {f32(c0)}')
    k(f'v_mov_b32 v9, {f32(c0)}')
    k(f'v_mov_b32 v10, {f32(c1)}')
    k(f'v_mov_b32 v11, {f32(c1)}')
    k('v_mov_b32 v14, 1.0')
    k('v_mov_b32 v15, 1.0')
    k('s_lshl_b32 s48, s43, 19')
    k('s_add_u32 s48, s48, s47')
    for j in range(4):
        k(f's_add_u32 s49, s48, {j * 131072}')
        for mt in range(4):
            tb = 32 + ((j * 4 + mt) & 1) * 24
            G = [128 + ((2 * j + h) * 4 + mt) * 4 + r for h in range(2) for r in range(4)]
            U = [((2 * j + h) * 4 + mt) * 4 + r for h in range(2) for r in range(4)]
            P = lambda b: f'v[{b}:{b + 1}]'
            for e in range(8):
                k(f'v_accvgpr_read_b32 v{tb + e}, a{U[e]}')
            for e in range(0, 8, 2):
                k(f'v_pk_mul_f32 {P(tb + 8 + e)}, {P(G[e])}, {P(G[e])}')
            for e in range(0, 8, 2):
                k(f'v_pk_fma_f32 {P(tb + 8 + e)}, {P(tb + 8 + e)}, v[10:11], v[8:9]')
            for e in range(0, 8, 2):
                k(f'v_pk_mul_f32 {P(tb + 8 + e)}, {P(tb + 8 + e)}, {P(G[e])}')
            for e in range(8):
                k(f'v_exp_f32 v{tb + 8 + e}, v{tb + 8 + e}')
            for e in range(0, 8, 2):
                k(f'v_pk_mul_f32 {P(tb + e)}, {P(tb + e)}, {P(G[e])}')
            for e in range(0, 8, 2):
                k(f'v_pk_add_f32 {P(tb + 8 + e)}, {P(tb + 8 + e)}, v[14:15]')
            for e in range(8):
                k(f'v_rcp_f32 v{tb + 8 + e}, v{tb + 8 + e}')
            for e in range(0, 8, 2):
                k(f'v_pk_mul_f32 {P(tb + e)}, {P(tb + e)}, {P(tb + 8 + e)}')
            for e in range(4):
                k(f'v_cvt_pk_bf16_f32 v{tb + 16 + e}, v{tb + 2 * e}, v{tb + 2 * e + 1}')
            k(f'buffer_store_dwordx4 {r4("v", tb + 16)}, v{V_HD}, s[20:23], s49 offen offset:{mt * 1024} {stflag}')
    if dbg:
        k('s_waitcnt vmcnt(0)')
    T.stamp()
    T.dump(44, 30, 2)
    k.label('end')
    k('s_endpgm')
    return k


def gen_small(name, K, w_arg, act_off, res_arg, res_off, out_arg, out_off, gate_seg, R, D, slot_dbg, dbg=False, pfd=0, same=False):
    NST = K // 128
    EPI = R * 16384
    k = Kernel(name, vgprs=160, agprs=256, sgprs=96, grid=256, block=256, lds=R * 16384 + 4 * 8704 if R * 16384 + 4 * 8704 <= 163840 else R * 16384)
    alias_epi = R * 16384 + 4 * 8704 > 163840
    if alias_epi:
        EPI = 0
    T = Stamper(k, dbg)
    k('s_cmp_ge_u32 s2, 256')
    k(f's_cbranch_scc1 {k.L("end")}')
    T.start()
    k(f's_load_dwordx2 s[4:5], s[0:1], {w_arg}')
    k(f's_load_dwordx2 s[6:7], s[0:1], {res_arg}')
    k(f's_load_dwordx2 s[28:29], s[0:1], {out_arg}')
    k(f's_load_dwordx2 s[44:45], s[0:1], {D_WS}')
    lane_decomp(k)
    k('s_and_b32 s40, s2, 7')
    k('s_lshr_b32 s41, s2, 3')
    k('s_lshr_b32 s42, s40, 1')
    k('s_lshl_b32 s42, s42, 2')
    k('s_and_b32 s43, s41, 3')
    k('s_add_u32 s42, s42, s43')
    k('s_and_b32 s43, s40, 1')
    k('s_lshl_b32 s43, s43, 3')
    k('s_lshr_b32 s46, s41, 2')
    k('s_add_u32 s43, s43, s46')
    if same:
        k('s_mov_b32 s42, 0')
        k('s_mov_b32 s43, 0')
    k('s_lshl_b32 s46, s43, 7')
    k('s_lshl_b32 s33, s30, 12')
    V_WD, V_HD, V_WA = 8, 12, 16
    k('v_lshrrev_b32 v4, 3, v1')
    k('v_lshlrev_b32 v4, 11, v4')
    k('s_lshl_b32 s47, s30, 16')
    k('v_add_u32 v4, s47, v4')
    k('v_and_b32 v5, 7, v1')
    k('v_lshlrev_b32 v6, 1, v3')
    k('v_xor_b32 v5, v5, v6')
    k('v_lshl_add_u32 v4, v5, 4, v4')
    for j in range(4):
        k(f'v_add_u32 v{V_WD + j}, {j * (16384 - 1024)}, v4')
    k(f'v_lshlrev_b32 v{V_HD}, 4, v1')
    k('s_waitcnt lgkmcnt(0)')
    if dbg == 2: T.stamp()
    srd(k, 8, 4, 's46', K * 2048 - 15 * 128)
    srd(k, 16, 44, act_off, 2048 * K * 2)
    srd(k, 12, 6, res_off, 2048 * 2048)
    srd(k, 20, 28, out_off, 2048 * 2048)
    srd(k, 24, 44, WS_MOD, 6144 * 4)
    k('s_lshl_b32 s47, s42, 2')
    k('s_add_u32 s47, s47, s30')
    k('s_lshl_b32 s32, s47, 11')
    k('s_mov_b32 s31, 0')

    def dma_ops(slot):
        ops = [f's_add_u32 m0, s33, {slot * 16384}']
        for j in range(4):
            ops.append(f'buffer_load_dwordx4 v{V_WD + j}, s[8:11], s31 offen offset:{j * 1024} lds')
        return ops

    def afrag(slot, mt, s):
        return r4('a', slot * 32 + (mt * 4 + s) * 4)

    def act_ops(slot):
        ops = []
        for s in range(4):
            for mt in range(2):
                ops.append(f'buffer_load_dwordx4 {afrag(slot, mt, s)}, v{V_HD}, s[16:19], s32 offen offset:{mt * 1024}')
            ops.append('s_add_u32 s32, s32, 131072')
        return ops
    adv = [f's_add_u32 s31, s31, {128 * 2048}']

    def acc(nt, mt):
        return r4('v', 128 + (nt * 2 + mt) * 4)

    def wfrag(buf, s):
        return r4('v', 64 + buf * 16 + s * 4)

    def wread(nt, s, h, slot, buf):
        b = 64 + buf * 16 + s * 4 + h * 2
        return f'ds_read_b64_tr_b16 v[{b}:{b + 1}], v{V_WA + nt + 4 * (slot // 4)} offset:{(slot % 4) * 16384 + s * 4096 + h * 2048}'

    pf = None
    if pfd:
        k('s_cmp_lt_u32 s41, 16')
        k('s_cselect_b32 s52, s16, s4')
        k('s_cselect_b32 s53, s17, s5')
        k(f's_mov_b32 s54, {K * 2048}')
        k(f's_cselect_b32 s54, {2048 * K * 2}, s54')
        k('s_mov_b32 s55, 0x00020000')
        k(f's_mov_b32 s57, {128 * 2048}')
        k(f's_cselect_b32 s57, {4 * 131072}, s57')
        k('s_lshr_b32 s58, s41, 2')
        k('s_lshl_b32 s58, s58, 17')
        k('s_lshr_b32 s59, s40, 1')
        k('s_lshl_b32 s59, s59, 15')
        k('s_add_u32 s58, s58, s59')
        k('s_and_b32 s59, s41, 3')
        k('s_lshl_b32 s59, s59, 13')
        k('s_add_u32 s58, s58, s59')
        k('s_and_b32 s59, s41, 15')
        k('s_lshl_b32 s59, s59, 14')
        k('s_and_b32 s60, s40, 1')
        k('s_lshl_b32 s60, s60, 10')
        k('s_add_u32 s59, s59, s60')
        k('s_cmp_lt_u32 s41, 16')
        k('s_cselect_b32 s56, s58, s59')
        k('s_mul_i32 s58, s57, s30')
        k('s_add_u32 s56, s56, s58')
        k('s_lshl_b32 s57, s57, 2')
        k('v_lshlrev_b32 v28, 7, v1')
        k('v_lshrrev_b32 v4, 3, v1')
        k('v_lshlrev_b32 v4, 11, v4')
        k('v_and_b32 v5, 7, v1')
        k('v_lshl_add_u32 v4, v5, 7, v4')
        k('s_cmp_lt_u32 s41, 16')
        k('s_cselect_b64 vcc, -1, 0')
        k('v_cndmask_b32 v28, v4, v28, vcc')
        one = ['buffer_load_dword v29, v28, s[52:55], s56 offen', 's_add_u32 s56, s56, s57']
        if R % 4 == 0:
            pf = (4, pfd // 4, one)
        else:
            pf = (R, (pfd + 7) // 8, one + one)
    gen = mainloop(k, NST, R, D, 4, 2, 4, 4, 2, acc, wfrag, afrag, wread, dma_ops, act_ops, adv, T, need_lgkm=(R < D + 2), pf=pf)
    next(gen)
    if dbg == 2: T.stamp()
    k('v_lshrrev_b32 v4, 2, v2')
    k('v_lshl_add_u32 v4, v3, 2, v4')
    k('v_and_b32 v5, 6, v4')
    k('v_bfe_u32 v6, v2, 1, 1')
    k('v_xor_b32 v5, v5, v6')
    k('v_lshlrev_b32 v4, 7, v4')
    k('v_and_b32 v6, 1, v2')
    k('v_lshl_add_u32 v4, v6, 3, v4')
    for nt in range(4):
        k(f'v_xor_b32 v6, {2 * nt}, v5')
        k(f'v_lshl_add_u32 v{V_WA + nt}, v6, 4, v4')
        k(f'v_add_u32 v{V_WA + 4 + nt}, 0x10000, v{V_WA + nt}')
    for i in range(32):
        k(f'v_mov_b32 v{128 + i}, 0')
    k(f's_mul_i32 s48, s30, 8704')
    k(f's_add_u32 s48, s48, {EPI}')
    k('s_movk_i32 s49, 272')
    k('v_mul_lo_u32 v24, v2, s49')
    k('v_lshl_add_u32 v24, v3, 4, v24')
    k('v_add_u32 v24, s48, v24')
    k('v_lshrrev_b32 v4, 3, v1')
    k('v_and_b32 v5, 7, v1')
    k('v_mul_lo_u32 v25, v4, s49')
    k('v_lshl_add_u32 v25, v5, 5, v25')
    k('v_add_u32 v25, s48, v25')
    k('v_lshlrev_b32 v26, 11, v4')
    k('v_lshl_add_u32 v26, v5, 4, v26')
    k('v_lshlrev_b32 v27, 5, v5')
    k('s_lshl_b32 s50, s47, 16')
    k('s_add_u32 s50, s50, s46')
    k('s_lshl_b32 s51, s43, 8')
    k(f's_add_u32 s51, s51, {gate_seg * 4096}')
    if dbg == 2: T.stamp()
    for _ in gen:
        pass
    for j in range(4):
        k(f's_add_u32 s52, s50, {j * 16384}')
        k(f'buffer_load_dwordx4 {r4("v", 32 + 4 * j)}, v26, s[12:15], s52 offen')
    k('buffer_load_dwordx4 v[48:51], v27, s[24:27], s51 offen')
    k('buffer_load_dwordx4 v[52:55], v27, s[24:27], s51 offen offset:16')
    if alias_epi:
        k('s_waitcnt vmcnt(6) lgkmcnt(0)')
        k('s_barrier')
    for nt in range(4):
        for mt in range(2):
            k(f'ds_write_b128 v24, {acc(nt, mt)} offset:{mt * 16 * 272 + nt * 64}')
    k('s_waitcnt lgkmcnt(0)')
    for j in range(4):
        k(f'ds_read_b128 {r4("v", 64 + 8 * j)}, v25 offset:{j * 8 * 272}')
        k(f'ds_read_b128 {r4("v", 68 + 8 * j)}, v25 offset:{j * 8 * 272 + 16}')
    for j in range(4):
        for d in range(4):
            x = 32 + 4 * j + d
            a = 64 + 8 * j + 2 * d
            k(f'v_lshlrev_b32 v4, 16, v{x}')
            k(f'v_and_b32 v5, 0xffff0000, v{x}')
            k(f'v_fma_f32 v4, v{a}, v{48 + 2 * d}, v4')
            k(f'v_fma_f32 v5, v{a + 1}, v{49 + 2 * d}, v5')
            k(f'v_cvt_pk_bf16_f32 v{x}, v4, v5')
        k(f's_add_u32 s52, s50, {j * 16384}')
        k(f'buffer_store_dwordx4 {r4("v", 32 + 4 * j)}, v26, s[20:23], s52 offen')
    if dbg:
        k('s_waitcnt vmcnt(0)')
    T.stamp()
    T.dump(44, 30, slot_dbg)
    k.label('end')
    k('s_endpgm')
    return k
```

```python
from common import *
from k_gemm import r4, mf, _cls, lane_decomp
import math

WS_XCH = 48 << 20
WS_FLG = 60 << 20
WS_STAT = 61 << 20


class Unrolled:
    def __init__(self, k, groups, R, MT, KS, WB, PD, acc, wfrag, afrag, wread, dma_ops, act_ops, first_zero=True):
        self.__dict__.update(locals())
        self.GL = MT * KS
        self.vm = []
        self.gaps = {}

    def put(self, g, op):
        self.gaps.setdefault(g, []).append(op)

    def vwait(self, tag):
        last = max(i for i, t in enumerate(self.vm) if t == tag)
        return min(63, len(self.vm) - 1 - last)

    def emit_ops(self, ops, tag):
        for o in ops:
            self.k(o)
            if o.startswith('buffer_'):
                self.vm.append(tag)

    def plan(self, pro_stages=1, spacing=4, fast=2):
        groups, PD, GL, R = self.groups, self.PD, self.GL, self.R
        NG = len(groups)
        stages = sorted({s for s, _ in groups})
        first = {s: min(i for i, (a, _) in enumerate(groups) if a == s) for s in stages}
        last = {s: max(i for i, (a, _) in enumerate(groups) if a == s) for s in stages}
        self.bar = {s: max(first[s] - PD, 0) for s in stages}
        bar_groups = sorted(self.bar[s] for s in stages if s > 0)
        busy = set()
        for i in range(NG):
            t = i + PD
            if t >= NG:
                continue
            s, nt = groups[t]
            rd = [self.wread(nt, q, h, s % R, t % self.WB) for q in range(self.KS) for h in range(2)]
            f = 1 if i in bar_groups else 0
            step = 1 if len(rd) * 2 > GL - f else 2
            for j, r in enumerate(rd):
                g = i * GL + min(f + j * step, GL - 1)
                self.put(g, r)
                busy.add(g)
        self.busy = busy
        q = []
        for s in stages:
            if s < R:
                e_w = e_a = -1
            else:
                e_w = min(b for b in bar_groups if b >= last[s - R] + 1) * GL + 1
                e_a = (last[s - R] + 1) * GL
            two = [(s, 'W', e_w, self.dma_ops(s)), (s, 'A', e_a, self.act_ops(s))]
            q += two if s < R else two[::-1]
        self.pro = [x for x in q if x[0] < pro_stages]
        pos = 0
        for s, kind, e, ops in q:
            if s < pro_stages:
                continue
            pend = []
            for o in ops:
                if not o.startswith('buffer_'):
                    pend.append(o)
                    continue
                ahead = (first[s] * GL - pos) / (GL * (last[0] + 1))
                sp = fast if (ahead < 1.3 or s < R) else spacing
                pos = max(pos + sp, e, 1)
                while (pos % GL == GL - 1 and (pos // GL + 1) in bar_groups) or (pos % GL == 0 and pos // GL in bar_groups):
                    pos += 1
                self.put(pos, ('V', pend, o, (kind, s)))
                pend = []
            assert not pend
            if kind == 'W':
                assert pos < self.bar[s] * GL - 1, (s, pos, self.bar[s] * GL)
            else:
                assert pos < first[s] * GL - 1, (s, pos)
            self.slack = getattr(self, 'slack', []) + [(kind, s, (self.bar[s] if kind == 'W' else first[s]) * GL - pos)]

    def prologue_issue(self):
        for s, kind, e, ops in self.pro:
            self.emit_ops(ops, (kind, s))

    def start(self):
        k = self.k
        k(f's_waitcnt vmcnt({self.vwait(("W", 0))})')
        k('s_barrier')
        for t in range(self.PD):
            s, nt = self.groups[t]
            for q in range(self.KS):
                for h in range(2):
                    k(self.wread(nt, q, h, s % self.R, t % self.WB))

    def emit(self, g0, g1):
        k, GL = self.k, self.GL
        barat = {v: s for s, v in self.bar.items() if s > 0}
        for i in range(g0, g1):
            s, nt = self.groups[i]
            j = 0
            for mt in range(self.MT):
                for q in range(self.KS):
                    d = self.acc(nt, mt)
                    c = '0' if (self.first_zero and s == 0 and q == 0) else d
                    k(mf(d, self.wfrag(i % self.WB, q), self.afrag(s % self.R, mt, q), c))
                    g = i * GL + j
                    ops = self.gaps.get(g, [])
                    if j == GL - 1 and (i + 1) in barat:
                        k(f's_waitcnt vmcnt({self.vwait(("W", barat[i + 1]))})')
                    if j == 0 and i in barat:
                        k('s_barrier')
                    cur = [o for o in ops if isinstance(o, tuple) and o[0] == 'V']
                    nxt = [o for o in self.gaps.get(g + 1, []) if isinstance(o, tuple) and o[0] == 'V']
                    plain = sorted([o for o in ops if not isinstance(o, tuple)], key=_cls)
                    for o in plain:
                        if _cls(o) == 0:
                            k(o)
                    if not cur:
                        for o in nxt:
                            for sc in o[1]:
                                k(sc)
                    for o in plain:
                        if _cls(o) == 1:
                            k(o)
                    for o in cur:
                        self.emit_ops([o[2]], o[3])
                    if cur:
                        for o in nxt:
                            for sc in o[1]:
                                k(sc)
                    for o in plain:
                        if _cls(o) == 2:
                            k(o)
                    for o in ops:
                        if isinstance(o, tuple) and o[0] == 'raw':
                            self.emit_ops([o[1]], ('X', 0))
                    j += 1


def gen_small2(name, K, w_arg, act_off, res_arg, res_off, out_arg, out_off, gate_seg, slot_dbg, flag_idx, dbg=False,
               TS=3, spacing=3, fast=2, pro=2, stflag='', cpf=True, lateflag=True, ln=False, psleep=8, hflag=''):
    KH = K // 2
    NST = KH // 128
    R = 4
    k = Kernel(name, vgprs=256, agprs=128, sgprs=96, grid=256, block=256, lds=R * 32768)
    T = Stamper(k, dbg)
    k('s_cmp_ge_u32 s2, 256')
    k(f's_cbranch_scc1 {k.L("end")}')
    T.start()
    k(f's_load_dwordx2 s[4:5], s[0:1], {w_arg}')
    k(f's_load_dwordx2 s[44:45], s[0:1], {D_WS}')
    k(f's_load_dwordx2 s[6:7], s[0:1], {res_arg}')
    k(f's_load_dwordx2 s[28:29], s[0:1], {out_arg}')
    if cpf:
        code_prefetch(k, 88, 39, 38, 0, 256, 32768)
    lane_decomp(k)
    k('s_and_b32 s39, s2, 1')
    k('s_bfe_u32 s42, s2, 0x20001')
    k('s_lshl_b32 s42, s42, 2')
    k('s_bfe_u32 s43, s2, 0x20003')
    k('s_add_u32 s42, s42, s43')
    k('s_lshr_b32 s43, s2, 5')
    k('s_lshl_b32 s46, s43, 8')
    k(f's_mul_i32 s40, s39, {KH * 2048}')
    k('s_add_u32 s40, s40, s46')
    k('s_lshl_b32 s33, s30, 13')
    V_WD, V_HD, V_WA = 8, 12, 16
    k('s_lshl_b32 s47, s30, 16')
    k('v_lshlrev_b32 v4, 11, v3')
    k('v_add_u32 v4, s47, v4')
    for j in range(4):
        k(f'v_add_u32 v5, {4 * (j & 1)}, v3')
        k('v_lshlrev_b32 v5, 1, v5')
        k('v_xor_b32 v5, v5, v2')
        k('v_lshl_add_u32 v5, v5, 4, v4')
        k(f'v_add_u32 v{V_WD + j}, {j * (8192 - 1024)}, v5')
    k(f'v_lshlrev_b32 v{V_HD}, 4, v1')
    k('s_lshl_b32 s47, s42, 2')
    k('s_add_u32 s47, s47, s30')
    k('s_lshl_b32 s32, s47, 11')
    k(f's_mul_i32 s41, s39, {(KH // 32) * 131072}')
    k('s_add_u32 s32, s32, s41')
    k('s_waitcnt lgkmcnt(0)')
    srd(k, 8, 4, 's40', KH * 2048 - 7 * 256)
    srd(k, 16, 44, act_off, 2048 * K * 2)

    def dma_ops(s):
        ops = []
        for half in range(2):
            ops.append(f's_add_u32 m0, s33, {(s % R) * 32768 + half * 4096}')
            ops.append(f's_mov_b32 s31, {s * 128 * 2048 + half * 16 * 2048}')
            for j in range(4):
                ops.append(f'buffer_load_dwordx4 v{V_WD + j}, s[8:11], s31 offen offset:{j * 1024} lds')
        return ops

    def afrag(slot, mt, q):
        return r4('a', slot * 32 + (mt * 4 + q) * 4)

    def act_ops(s):
        ops = []
        for q in range(4):
            ops.append(f's_add_u32 s35, s32, {(s * 4 + q) * 131072}')
            for mt in range(2):
                ops.append(f'buffer_load_dwordx4 {afrag(s % R, mt, q)}, v{V_HD}, s[16:19], s35 offen offset:{mt * 1024}')
        return ops

    def acc(nt, mt):
        return r4('v', 128 + (nt * 2 + mt) * 4)

    def wfrag(buf, q):
        return r4('v', 64 + buf * 16 + q * 4)

    def wread(nt, q, h, slot, buf):
        b = 64 + buf * 16 + q * 4 + h * 2
        return f'ds_read_b64_tr_b16 v[{b}:{b + 1}], v{V_WA + nt + 8 * (slot // 2)} offset:{(slot % 2) * 32768 + q * 8192 + h * 4096}'

    groups = [(s, nt) for s in range(NST - TS) for nt in range(8)]
    groups += [(s, nt) for s in range(NST - TS, NST) for nt in range(4, 8)]
    gsend = len(groups)
    groups += [(s, nt) for s in range(NST - TS, NST) for nt in range(4)]
    U = Unrolled(k, groups, R, 2, 4, 4, 2, acc, wfrag, afrag, wread, dma_ops, act_ops)
    U.plan(pro_stages=pro, spacing=spacing, fast=fast)
    if dbg: print(name, 'slack', U.slack)
    U.prologue_issue()
    srd(k, 12, 6, res_off, 2048 * 2048)
    srd(k, 20, 28, out_off, 2048 * 2048)
    srd(k, 24, 44, 0, 64 << 20)
    k('v_lshrrev_b32 v4, 2, v2')
    k('v_lshl_add_u32 v4, v3, 2, v4')
    k('v_and_b32 v5, 7, v4')
    k('v_lshlrev_b32 v5, 1, v5')
    k('v_bfe_u32 v6, v2, 1, 1')
    k('v_xor_b32 v5, v5, v6')
    k('s_lshl_b32 s48, s39, 3')
    k('v_xor_b32 v5, s48, v5')
    k('v_lshlrev_b32 v4, 8, v4')
    k('v_and_b32 v6, 1, v2')
    k('v_lshl_add_u32 v4, v6, 3, v4')
    for nt in range(8):
        k(f'v_xor_b32 v6, {2 * nt}, v5')
        k(f'v_lshl_add_u32 v{V_WA + nt}, v6, 4, v4')
        k(f'v_add_u32 v{V_WA + 8 + nt}, 0x10000, v{V_WA + nt}')
    k('s_mul_i32 s48, s30, 8704')
    k('s_movk_i32 s49, 272')
    k('v_mul_lo_u32 v32, v2, s49')
    k('v_lshl_add_u32 v32, v3, 4, v32')
    k('v_add_u32 v32, s48, v32')
    k('v_lshrrev_b32 v4, 3, v1')
    k('v_and_b32 v5, 7, v1')
    k('v_mul_lo_u32 v33, v4, s49')
    k('v_lshl_add_u32 v33, v5, 5, v33')
    k('v_add_u32 v33, s48, v33')
    k('v_lshlrev_b32 v34, 11, v4')
    k('v_lshl_add_u32 v34, v5, 4, v34')
    k('v_lshlrev_b32 v35, 5, v5')
    k('s_lshl_b32 s50, s47, 16')
    k('s_add_u32 s50, s50, s46')
    k('s_lshl_b32 s51, s39, 7')
    k('s_add_u32 s50, s50, s51')
    k('s_lshl_b32 s51, s43, 9')
    k('s_lshl_b32 s52, s39, 8')
    k('s_add_u32 s51, s51, s52')
    k(f's_add_u32 s51, s51, {gate_seg * 4096}')
    k('s_lshl_b32 s53, s2, 2')
    k('s_add_u32 s53, s53, s30')
    k('s_xor_b32 s54, s53, 4')
    k('s_lshl_b32 s55, s53, 13')
    k(f's_add_u32 s55, s55, {WS_XCH}')
    k('s_lshl_b32 s56, s54, 13')
    k(f's_add_u32 s56, s56, {WS_XCH}')
    k('s_lshl_b32 s57, s53, 6')
    k(f's_add_u32 s57, s57, {WS_FLG + flag_idx * 65536}')
    k('s_lshl_b32 s58, s54, 6')
    k(f's_add_u32 s58, s58, {WS_FLG + flag_idx * 65536}')
    k('v_mov_b32 v36, 0')
    k('v_mov_b32 v37, 1')
    if ln:
        k('v_lshl_add_u32 v240, v5, 3, v4')
        k('v_lshlrev_b32 v240, 3, v240')
        k('v_cmp_gt_u32 vcc, 4, v5')
        k('v_mov_b32 v6, 0x40000000')
        k('v_cndmask_b32 v240, v6, v240, vcc')
        k('v_cmp_eq_u32 s[86:87], 1, v5')
        k('v_cmp_eq_u32 s[88:89], 2, v5')
        k('v_cmp_eq_u32 s[90:91], 3, v5')
        k('v_lshlrev_b32 v241, 4, v2')
        k('v_add_u32 v241, s48, v241')
        k('v_lshlrev_b32 v243, 3, v4')
        k('v_add_u32 v243, s48, v243')
        k('v_lshrrev_b32 v6, 2, v5')
        k('v_lshlrev_b32 v242, 17, v6')
        k('v_and_b32 v6, 3, v5')
        k('v_lshl_add_u32 v242, v6, 8, v242')
        k('v_lshl_add_u32 v242, v4, 4, v242')
        k('s_lshl_b32 s36, s47, 12')
        k(f's_add_u32 s36, s36, {WS_STAT}')
        k('s_lshl_b32 s37, s43, 1')
        k('s_add_u32 s37, s37, s39')
        k('s_lshl_b32 s38, s37, 18')
        k('s_lshl_b32 s37, s37, 8')
        k('s_add_u32 s37, s37, s36')
        k('s_lshl_b32 s34, s47, 11')
        k('s_add_u32 s38, s38, s34')
        k(f's_add_u32 s38, s38, {WS_H2}')
    U.start()
    T.stamp()
    GL = 8
    st_ops = []
    for j in range(4):
        for mt in range(2):
            i = j * 2 + mt
            if i == 4:
                st_ops.append('s_add_u32 s55, s55, 4096')
            st_ops.append(f'buffer_store_dwordx4 {acc(4 + j, mt)}, v{V_HD}, s[24:27], s55 offen offset:{(i % 4) * 1024} sc1')
    for i, o in enumerate(st_ops):
        U.put(gsend * GL + 2 + i, ('raw', o))
    gflag = min(gsend + 5, len(groups) - 2)
    if not lateflag:
        U.put(gflag * GL, 's_waitcnt vmcnt(0)')
        U.put(gflag * GL + 1, ('raw', 'buffer_store_dword v37, v36, s[24:27], s57 offen sc1'))
    else:
        gflag = gsend - 3
    rl = []
    for j in range(4):
        rl.append(f's_add_u32 s52, s50, {j * 16384}')
        rl.append(f'buffer_load_dwordx4 {r4("v", 40 + 4 * j)}, v34, s[12:15], s52 offen')
    rl.append('buffer_load_dwordx4 v[56:59], v35, s[24:27], s51 offen')
    rl.append('buffer_load_dwordx4 v[60:63], v35, s[24:27], s51 offen offset:16')
    if ln:
        rl.append('s_add_u32 s52, s51, 4096')
        rl.append('buffer_load_dwordx4 v[224:227], v35, s[24:27], s52 offen')
        rl.append('buffer_load_dwordx4 v[228:231], v35, s[24:27], s52 offen offset:16')
        rl.append('s_add_u32 s52, s51, 8192')
        rl.append('buffer_load_dwordx4 v[232:235], v35, s[24:27], s52 offen')
        rl.append('buffer_load_dwordx4 v[236:239], v35, s[24:27], s52 offen offset:16')
    for i, o in enumerate(rl):
        U.put(gflag * GL + 2 + i, ('raw', o))
    if dbg == 2:
        for g in range(0, len(groups), 8):
            U.emit(g, min(g + 8, len(groups)))
            if g + 8 < len(groups): T.stamp()
    else:
        U.emit(0, len(groups))
    T.stamp()
    if lateflag:
        k('s_waitcnt vmcnt(0)')
        k('buffer_store_dword v37, v36, s[24:27], s57 offen sc1')
    k('s_barrier')
    k('s_mov_b32 s59, 0')
    k.label('poll')
    k('buffer_load_dword v38, v36, s[24:27], s58 offen sc1')
    k('s_waitcnt vmcnt(0)')
    k('v_cmp_ne_u32 vcc, 1, v38')
    k(f's_cbranch_vccz {k.L("got")}')
    k('s_sleep 2')
    k('s_add_u32 s59, s59, 1')
    k('s_cmp_lt_u32 s59, 0x40000')
    k(f's_cbranch_scc1 {k.L("poll")}')
    k.label('got')
    if dbg: T.stamp()
    for i in range(8):
        if i == 4:
            k('s_add_u32 s56, s56, 4096')
        k(f'buffer_load_dwordx4 {r4("v", 192 + 4 * i)}, v{V_HD}, s[24:27], s56 offen offset:{(i % 4) * 1024} sc1')
    P = lambda b: f'v[{b}:{b + 1}]'
    for i in range(8):
        a = 128 + 4 * i
        for e in (0, 2):
            k(f'v_pk_add_f32 {P(a + e)}, {P(a + e)}, {P(192 + 4 * i + e)}')
        nt, mt = i // 2, i % 2
        k(f'ds_write_b128 v32, {r4("v", a)} offset:{mt * 16 * 272 + nt * 64}')
    k('s_waitcnt lgkmcnt(0)')
    for j in range(4):
        k(f'ds_read_b128 {r4("v", 64 + 8 * j)}, v33 offset:{j * 8 * 272}')
        k(f'ds_read_b128 {r4("v", 68 + 8 * j)}, v33 offset:{j * 8 * 272 + 16}')
    for j in range(4):
        for d in range(4):
            x = 40 + 4 * j + d
            a = 64 + 8 * j + 2 * d
            k(f'v_lshlrev_b32 v4, 16, v{x}')
            k(f'v_and_b32 v5, 0xffff0000, v{x}')
            k(f'v_pk_fma_f32 v[4:5], {P(a)}, {P(56 + 2 * d)}, v[4:5]')
            k(f'v_cvt_pk_bf16_f32 v{x}, v4, v5')
        k(f's_add_u32 s52, s50, {j * 16384}')
        k(f'buffer_store_dwordx4 {r4("v", 40 + 4 * j)}, v34, s[20:23], s52 offen {stflag}')
    if ln:
        def red8(regs):
            for m in ('quad_perm:[1,0,3,2]', 'quad_perm:[2,3,0,1]', 'row_half_mirror'):
                for r in regs:
                    k(f'v_add_f32_dpp v{r}, v{r}, v{r} {m} row_mask:0xf bank_mask:0xf')
        Y = lambda j: 64 + 8 * j
        D_ = lambda j: 96 + 8 * j
        S = lambda j: 128 + 2 * j
        for j in range(4):
            for d in range(4):
                k(f'v_lshlrev_b32 v{Y(j) + 2 * d}, 16, v{40 + 4 * j + d}')
                k(f'v_and_b32 v{Y(j) + 2 * d + 1}, 0xffff0000, v{40 + 4 * j + d}')
        for j in range(4):
            k(f'v_pk_add_f32 {P(S(j))}, {P(Y(j))}, {P(Y(j) + 2)}')
        for e in (4, 6):
            for j in range(4):
                k(f'v_pk_add_f32 {P(S(j))}, {P(S(j))}, {P(Y(j) + e)}')
        for j in range(4):
            k(f'v_add_f32 v{S(j)}, v{S(j)}, v{S(j) + 1}')
        red8([S(j) for j in range(4)])
        for j in range(4):
            k(f'v_mul_f32 v{S(j)}, {f32(1.0 / 64)}, v{S(j)}')
        for j in range(4):
            for e in range(0, 8, 2):
                k(f'v_pk_add_f32 {P(D_(j) + e)}, {P(Y(j) + e)}, {P(S(j))} op_sel_hi:[1,0] neg_lo:[0,1] neg_hi:[0,1]')
        for j in range(4):
            k(f'v_pk_mul_f32 {P(136 + 2 * j)}, {P(D_(j))}, {P(D_(j))}')
        for e in (2, 4, 6):
            for j in range(4):
                k(f'v_pk_fma_f32 {P(136 + 2 * j)}, {P(D_(j) + e)}, {P(D_(j) + e)}, {P(136 + 2 * j)}')
        for j in range(4):
            k(f'v_add_f32 v{S(j) + 1}, v{136 + 2 * j}, v{137 + 2 * j}')
        red8([S(j) + 1 for j in range(4)])
        for j in range(1, 4):
            for e in range(2):
                k(f'v_cndmask_b32 v{S(0) + e}, v{S(0) + e}, v{S(j) + e}, s[{84 + 2 * j}:{85 + 2 * j}]')
        k(f'buffer_store_dwordx2 {P(S(0))}, v240, s[24:27], s37 offen sc1')
        if dbg: T.stamp()
        k('s_mov_b32 s59, 0')
        k.label('poll2')
        k(f's_sleep {psleep}')
        for i in range(4):
            k(f'buffer_load_dwordx4 {r4("v", 144 + 4 * i)}, v{V_HD}, s[24:27], s36 offen offset:{i * 1024} sc1')
        k('s_waitcnt vmcnt(0)')
        k('v_min3_f32 v6, v145, v147, v149')
        k('v_min3_f32 v6, v6, v151, v153')
        k('v_min3_f32 v6, v6, v155, v157')
        k('v_min_f32 v6, v6, v159')
        k('v_cmp_eq_f32 vcc, -1.0, v6')
        k(f's_cbranch_vccz {k.L("got2")}')
        k('s_add_u32 s59, s59, 1')
        k('s_cmp_lt_u32 s59, 0x40000')
        k(f's_cbranch_scc1 {k.L("poll2")}')
        k.label('got2')
        if dbg: T.stamp()

        def red4g(regs, tmps):
            for sw in ('v_permlane16_swap_b32', 'v_permlane32_swap_b32'):
                for r, t in zip(regs, tmps):
                    k(f'v_mov_b32 v{t}, v{r}')
                for r, t in zip(regs, tmps):
                    k(f'{sw} v{t}, v{r}')
                for r, t in zip(regs, tmps):
                    k(f'v_add_f32 v{r}, v{r}, v{t}')
        for h in (0, 2):
            k(f'v_add_f32 v{160 + h}, v{144 + h}, v{148 + h}')
            k(f'v_add_f32 v{164 + h}, v{152 + h}, v{156 + h}')
            k(f'v_add_f32 v{161 + h}, v{145 + h}, v{149 + h}')
            k(f'v_add_f32 v{165 + h}, v{153 + h}, v{157 + h}')
        for e in range(4):
            k(f'v_add_f32 v{160 + e}, v{160 + e}, v{164 + e}')
        red4g([160, 162], [164, 165])
        for h in (0, 2):
            k(f'v_mul_f32 v{160 + h}, {f32(1.0 / 16)}, v{160 + h}')
        k(f's_mov_b32 s34, {f32(64.0)}')
        for h in (0, 2):
            for i in range(4):
                k(f'v_sub_f32 v{144 + 4 * i + h}, v{144 + 4 * i + h}, v{160 + h}')
            k(f'v_mul_f32 v{164 + h}, v{144 + h}, v{144 + h}')
            for i in range(1, 4):
                k(f'v_fmac_f32 v{164 + h}, v{144 + 4 * i + h}, v{144 + 4 * i + h}')
            k(f'v_fmac_f32 v{161 + h}, s34, v{164 + h}')
        red4g([161, 163], [164, 165])
        k(f's_mov_b32 s34, {f32(1.0 / 1024)}')
        k(f'v_mov_b32 v6, {f32(1e-5)}')
        for h in (0, 2):
            k(f'v_fma_f32 v{161 + h}, v{161 + h}, s34, v6')
        for h in (0, 2):
            k(f'v_rsq_f32 v{161 + h}, v{161 + h}')
        k('ds_write_b128 v241, v[160:163]')
        k('s_waitcnt lgkmcnt(0)')
        for j in range(4):
            k(f'ds_read_b64 {P(S(j))}, v243 offset:{64 * j}')
        for j in range(4):
            for e in range(0, 8, 2):
                k(f'v_pk_add_f32 {P(Y(j) + e)}, {P(Y(j) + e)}, {P(S(j))} op_sel_hi:[1,0] neg_lo:[0,1] neg_hi:[0,1]')
            for e in range(0, 8, 2):
                k(f'v_pk_mul_f32 {P(Y(j) + e)}, {P(Y(j) + e)}, {P(S(j))} op_sel:[0,1] op_sel_hi:[1,1]')
            for e in range(0, 8, 2):
                k(f'v_pk_fma_f32 {P(Y(j) + e)}, {P(Y(j) + e)}, {P(232 + e)}, {P(224 + e)}')
            for d in range(4):
                k(f'v_cvt_pk_bf16_f32 v{D_(j) + d}, v{Y(j) + 2 * d}, v{Y(j) + 2 * d + 1}')
            k(f'buffer_store_dwordx4 {r4("v", D_(j))}, v242, s[24:27], s38 offen offset:{(j // 2) * 1024 + (j % 2) * 128} {hflag}')
    if dbg:
        k('s_waitcnt vmcnt(0)')
    T.stamp()
    T.dump(44, 30, slot_dbg)
    k.label('end')
    k('s_endpgm')
    return k
```

```python
import random

NG = 132
SUMPOS = {2: 20, 3: 49, 0: 86, 1: 119}


def mfma_seq():
    base = [('QK', kt, qt, s) for kt in range(4) for qt in range(4) for s in range(4)]
    base += [('PV', dt, qt, ks) for dt in range(8) for qt in range(4) for ks in range(2)]
    out = []
    inv = {v: q for q, v in SUMPOS.items()}
    it = iter(base)
    for i in range(NG):
        out.append(('SUM', inv[i]) if i in inv else next(it))
    return out


def build(seed=0, G0=63, BAR=68, LAT=8, DSP=5, verbose=False):
    rnd = random.Random(seed)
    M = mfma_seq()
    first = {}
    last = {}
    for i, m in enumerate(M):
        key = (m[0], m[1])
        first.setdefault(key, i)
        last[key] = i
    firstuse = {}
    for i, m in enumerate(M):
        if m[0] == 'QK':
            firstuse.setdefault(('K', m[1], m[3]), i)
        if m[0] == 'PV':
            firstuse.setdefault(('V', m[1], m[3]), i)
    mem = []
    for s in range(4):
        mem.append((('K', 0, s), BAR + 1, NG + firstuse[('K', 0, s)] - LAT, 'ds'))
        mem.append((('K', 1, s), BAR + 1, NG + firstuse[('K', 1, s)] - LAT, 'ds'))
        mem.append((('K', 2, s), NG + last[('QK', 0)], NG + firstuse[('K', 2, s)] - LAT, 'ds'))
        mem.append((('K', 3, s), NG + last[('QK', 1)], NG + firstuse[('K', 3, s)] - LAT, 'ds'))
    for dt in range(8):
        for ks in range(2):
            for h in range(2):
                lat = firstuse[('V', dt, ks)] - LAT
                if dt < 4:
                    if dt < 2 or True:
                        e = NG + 0
                        l = NG + lat
                        mem.append((('V', dt, ks, h), e, l, 'ds'))
                else:
                    mem.append((('V', dt, ks, h), last[('PV', dt - 4)], lat, 'ds'))
    for j in range(4):
        mem.append((('D', j), BAR + 3, NG - 2 - DSP * (3 - j), 'vm'))
    for j in range(4, 9):
        mem.append((('D', j), NG + 2, NG + 58 - DSP * (8 - j), 'vm'))
    ex = [(q, ks, e) for q in range(4) for ks in range(2) for e in range(8)]
    END = G0 + NG - 1
    place = {}
    gaps = {u: [] for u in range(G0, END + 1)}
    valu = []
    for q in range(4):
        valu.append((('L', q), []))
        for j in range(4):
            valu.append((('C', q, 0, j), [('E', q, 0, 2 * j), ('E', q, 0, 2 * j + 1)] + ([('C', q, 0, j - 1)] if j else [])))
        prev = ('L', q)
        for e in range(1, 8):
            deps = [('E', q, 1, e), prev] + ([('E', q, 1, 0)] if e == 1 else [])
            valu.append((('A', q, e), deps))
            prev = ('A', q, e)
            if e % 2 == 1:
                j = e // 2
                valu.append((('C', q, 1, j), [('E', q, 1, 2 * j), ('E', q, 1, 2 * j + 1), ('A', q, max(j, 1))] + ([('C', q, 1, j - 1)] if j else [])))
        valu.append((('A', q, 8), [prev, ('SUMDONE', q)]))
    valu.append((('X', 0), [('A', 0, 8), ('A', 1, 8), ('A', 2, 8)]))
    valu.append((('X', 1), [('X', 0), ('A', 3, 8)]))
    valu.append((('X', 2), [('X', 1)]))
    for q, p in SUMPOS.items():
        pos = p if p >= G0 else p + NG
        place[('SUMDONE', q)] = pos + 3
    sumdl = {q: (p if p >= G0 else p + NG) for q, p in SUMPOS.items()}
    memw = []
    for name, e, l, kind in mem:
        wins = []
        if e <= END:
            wins.append((e, min(l, END)))
        if l > END:
            wins.append((G0, l - NG))
        memw.append([name, wins, kind])
    for m in memw:
        if len(m[1]) == 2:
            dt = m[0][1]
            m[1] = [m[1][1]] if (dt == 3 or (dt == 2 and rnd.random() < 0.5)) and m[1][1][1] >= G0 + 2 else [m[1][0]]
        m[1] = m[1][0]
    pend_mem = sorted(memw, key=lambda m: m[1][1])
    ei = 0
    over = 0
    span = NG - 6
    for u in range(G0, END + 1):
        def ready():
            return [v for v in valu if v[0] not in place and all(d in place and (place[d] < u or (place[d] == u and v[0][0] == 'C' and d[0] != 'E')) for d in v[1])]
        avail = [m for m in pend_mem if m[1][0] <= u]
        dn = min([m[0][1] for m in pend_mem if m[0][0] == 'D'], default=None)
        lastd = max([g for g in gaps if any(o[0] == 'D' for o in gaps[g])], default=-99)
        avail = [m for m in avail if m[0][0] != 'D' or (m[0][1] == dn and u - lastd >= DSP)]
        urgent = False
        for m in avail:
            cnt = sum(1 for x in pend_mem if x[1][1] <= m[1][1] and x[1][0] <= m[1][1])
            if m[1][1] - u + 1 <= cnt * 1.6:
                urgent = True
        target = (u - G0 + 1) * 64 / span + rnd.uniform(-0.7, 0.7)
        r = ready()
        do_exp = ei < 64 and ei < target and not (urgent and ei >= target - 1.5)
        if ei < 64 and (END - 4 - u) <= (64 - ei):
            do_exp = True
        if do_exp:
            q, ks, e = ex[ei]
            place[('E', q, ks, e)] = u
            gaps[u].append(('E', q, ks, e))
            ei += 1
            forced = [m for m in avail if m[1][1] <= u]
            for m in forced:
                gaps[u].insert(0, m[0]); pend_mem.remove(m); over += 1
            continue
        nv = 2
        if avail and not (len(r) >= 3 and not urgent):
            cand = sorted(avail, key=lambda m: m[1][1])
            if not r:
                vm = [m for m in cand if m[2] == 'vm']
                if vm and not urgent:
                    cand = vm
            elif cand[0][2] == 'vm' and len(cand) > 1 and cand[0][1][1] - u > 8:
                cand = cand[1:]
            m = cand[0]
            gaps[u].append(m[0]); pend_mem.remove(m)
            nv = 1 if m[2] == 'ds' else 0
        forced = [m for m in pend_mem if m[1][1] <= u and m[1][0] <= u]
        for m in forced:
            gaps[u].append(m[0]); pend_mem.remove(m); over += 1
        for _ in range(nv):
            r = ready()
            if r:
                place[r[0][0]] = u
                gaps[u].append(r[0][0])
        for q in range(4):
            if u >= sumdl[q] - 2:
                while True:
                    r = [v for v in ready() if v[0][:3] == ('C', q, 0)]
                    if not r:
                        break
                    place[r[0][0]] = u; gaps[u].append(r[0][0]); over += 1
    u = END
    left = [v for v in valu if v[0] not in place]
    for v in left:
        place[v[0]] = END; gaps[END].append(v[0]); over += 1
    ok = not pend_mem and ei == 64
    for q in range(4):
        for j in range(4):
            if place[('C', q, 0, j)] > sumdl[q] - 2:
                ok = False
    return (over if ok else 999), M, gaps


def best(n=1500, **kw):
    b = None
    for s in range(n):
        r = build(seed=s, **kw)
        if b is None or r[0] < b[0]:
            b = r + (s,)
    return b


if __name__ == '__main__':
    o, M, gaps, s = best()
    print('overflow', o, 'seed', s)
    for u in sorted(gaps):
        print(u, u % NG, M[u % NG], gaps[u])
```

```python
import sys
sys.path.insert(0, 'dev')
from asmlib import *

A_X, A_K, A_V, A_WQ, A_WO, B_X, B_WG, B_WU, B_WD, C_IN, W_MOD, D_OUT, D_DBG, D_WS = [8 * i for i in range(14)]

WS_MOD = 0
WS_H1 = 1 << 20
WS_O = 8 << 20
WS_X1 = 24 << 20
WS_H2 = 28 << 20
WS_ACT = 32 << 20

def srd(k, d, base_pair, off, nbytes):
    if off == 0:
        k(f's_mov_b32 s{d}, s{base_pair}')
        k(f's_mov_b32 s{d+1}, s{base_pair+1}')
    else:
        k(f's_add_u32 s{d}, s{base_pair}, {off}')
        k(f's_addc_u32 s{d+1}, s{base_pair+1}, 0')
    k(f's_mov_b32 s{d+2}, {nbytes}')
    k(f's_mov_b32 s{d+3}, 0x00020000')

def wave_allreduce_add(k, regs, tmps):
    for ror in (1, 2, 4, 8):
        for r in regs:
            k(f'v_add_f32_dpp v{r}, v{r}, v{r} row_ror:{ror} row_mask:0xf bank_mask:0xf')
    for sw in ('v_permlane16_swap_b32', 'v_permlane32_swap_b32'):
        for r, t in zip(regs, tmps):
            k(f'v_mov_b32 v{t}, v{r}')
        for r, t in zip(regs, tmps):
            k(f'{sw} v{t}, v{r}')
        for r, t in zip(regs, tmps):
            k(f'v_add_f32 v{r}, v{r}, v{t}')

def f32(x):
    import struct
    return '0x%08x' % struct.unpack('<I', struct.pack('<f', x))[0]


WS_STAMP = 64 << 20
class Stamper:
    def __init__(self, k, on, base=62, tmp=60):
        self.k, self.on, self.base, self.n, self.tmp = k, on, base, 0, tmp
    def stamp(self):
        if not self.on: return
        k = self.k
        k(f's_memtime s[{self.tmp}:{self.tmp+1}]')
        k('s_waitcnt lgkmcnt(0)')
        k(f's_mov_b32 s{self.base + self.n}, s{self.tmp}')
        self.n += 1
    def dump(self, ws_pair, wave_sgpr, slot, srd_base=92):
        if not self.on: return
        k = self.k
        k(f's_memrealtime s[{self.tmp}:{self.tmp+1}]')
        k('s_waitcnt lgkmcnt(0)')
        k(f's_mov_b32 s{self.base + self.n}, s{self.tmp}')
        self.n += 1
        srd(k, srd_base, ws_pair, WS_STAMP + slot * (1 << 20), 1 << 20)
        k(f's_lshl_b32 s{self.tmp}, s2, 3')
        k(f's_add_u32 s{self.tmp}, s{self.tmp}, s{wave_sgpr}')
        k(f's_lshl_b32 s{self.tmp}, s{self.tmp}, 7')
        k('v_mov_b32 v2, 0')
        for i in range(self.n):
            k(f'v_mov_b32 v3, s{self.base + i}')
            k(f'buffer_store_dword v3, v2, s[{srd_base}:{srd_base+3}], s{self.tmp} offen offset:{4*i}')
    def start(self):
        if not self.on: return
        k = self.k
        k(f's_memrealtime s[{self.tmp}:{self.tmp+1}]')
        k('s_waitcnt lgkmcnt(0)')
        k(f's_mov_b32 s{self.base + self.n}, s{self.tmp}')
        self.n += 1
        self.stamp()


def code_prefetch(k, sbase, vtmp, vdst, tid_reg, nthreads, nbytes_max):
    k(f's_getpc_b64 s[{sbase}:{sbase+1}]')
    lab = k.newlabel('pc')
    k(k.L(lab) + ':')
    k(f's_mov_b32 s{sbase+2}, {k.L("codeend")}-{k.L(lab)}')
    k(f's_mov_b32 s{sbase+3}, 0x00020000')
    k(f'v_lshlrev_b32 v{vtmp}, 7, v{tid_reg}')
    per = nthreads * 128
    n = (nbytes_max + per - 1) // per
    for i in range(n):
        if i:
            k(f'v_add_u32 v{vtmp}, {per}, v{vtmp}')
        k(f'buffer_load_dword v{vdst}, v{vtmp}, s[{sbase}:{sbase+3}], 0 offen')
    return n


def code_prefetch_light(k, sbase, soff, vtmp, vtmp2, vdst, lane_reg, wave_sgpr, nslots=128):
    k(f's_getpc_b64 s[{sbase}:{sbase+1}]')
    lab = k.newlabel('pc')
    k(k.L(lab) + ':')
    k(f's_mov_b32 s{sbase+2}, {k.L("codeend")}-{k.L(lab)}')
    k(f's_mov_b32 s{sbase+3}, 0x00020000')
    k(f's_lshr_b32 s{soff}, s2, 3')
    k(f's_lshl_b32 s{soff}, s{soff}, 2')
    k(f's_add_u32 s{soff}, s{soff}, s{wave_sgpr}')
    k(f's_and_b32 s{soff}, s{soff}, {nslots - 1}')
    k(f's_lshl_b32 s{soff}, s{soff}, 9')
    k(f'v_lshlrev_b32 v{vtmp}, 7, v{lane_reg}')
    k(f'v_cmp_gt_u32 vcc, 4, v{lane_reg}')
    k(f'v_mov_b32 v{vtmp2}, 0x40000000')
    k(f'v_cndmask_b32 v{vtmp}, v{vtmp2}, v{vtmp}, vcc')
    k(f'buffer_load_dword v{vdst}, v{vtmp}, s[{sbase}:{sbase+3}], s{soff} offen')


WS_FLG3 = (60 << 20) + 3 * 65536


def phase_publish(k, srd_ws, wave_sgpr, v0r, v1r, younger=0, second=None):
    lab = k.newlabel('pub')
    k(f'v_mov_b32 v{v0r}, 0')
    k(f'v_mov_b32 v{v1r}, 1')
    k(f's_waitcnt vmcnt({younger}) lgkmcnt(0)')
    k('s_barrier')
    k(f's_cmp_lg_u32 s{wave_sgpr}, 0')
    k(f's_cbranch_scc1 {k.L(lab)}')
    k(f'buffer_store_dword v{v1r}, v{v0r}, s[{srd_ws}:{srd_ws+3}], s3 offen sc1')
    if second is not None:
        k(f'buffer_store_dword v{v1r}, v{v0r}, s[{srd_ws}:{srd_ws+3}], s{second} offen sc1')
    k(k.L(lab) + ':')


def phase_wait(k, srd_ws, wave_sgpr, voff, vdst, soff, scnt, wide=False, sleep=1):
    lp, ld = k.newlabel('pw'), k.newlabel('pd')
    k(f's_cmp_lg_u32 s{wave_sgpr}, 0')
    k(f's_cbranch_scc1 {k.L(ld)}')
    k(f's_mov_b32 s{scnt}, 0')
    k(k.L(lp) + ':')
    if wide:
        k(f'buffer_load_dwordx4 v[{vdst}:{vdst+3}], v{voff}, s[{srd_ws}:{srd_ws+3}], s{soff} offen sc1')
        k('s_waitcnt vmcnt(0)')
        k(f'v_and_b32 v{vdst}, v{vdst}, v{vdst+1}')
        k(f'v_and_b32 v{vdst+2}, v{vdst+2}, v{vdst+3}')
        k(f'v_and_b32 v{vdst}, v{vdst}, v{vdst+2}')
    else:
        k(f'buffer_load_dword v{vdst}, v{voff}, s[{srd_ws}:{srd_ws+3}], s{soff} offen sc1')
        k('s_waitcnt vmcnt(0)')
    k(f'v_cmp_ne_u32 vcc, 1, v{vdst}')
    k(f's_cbranch_vccz {k.L(ld)}')
    k(f's_sleep {sleep}')
    k(f's_add_u32 s{scnt}, s{scnt}, 1')
    k(f's_cmp_lt_u32 s{scnt}, 0x40000')
    k(f's_cbranch_scc1 {k.L(lp)}')
    k(k.L(ld) + ':')
    k('s_waitcnt vmcnt(0)')
    k('s_barrier')


def merge(name, ks, lds):
    m = Kernel(name, vgprs=256, agprs=256, sgprs=96, grid=256, block=256, lds=lds)
    for x in ks:
        m.ins.append(Ins(f'L_{x.name}_entry:'))
        m.ins += x.ins
        m.ins.append(Ins(f'L_{x.name}_codeend:'))
    return m
```

```python
from common import *
import math
import sched_attn

V_LANE = 1
V_T0 = 2
V_KA = 8
V_VA = 12
V_KD = 20
V_VD = 24
V_WD = 26
V_HD = 30
V_PF = 31
V_PFD = 32
V_MD = 33
V_LT = 34
V_L = 38
V_KG = 42
V_CK = 43
V_TM = 44
V_CI = 48
V_S = (64, 128)
V_Q = 192
A_O = 0
A_KF = 128
A_VF = 160
A_X2 = 192

S_K, S_V, S_WQ, S_H, S_OO = 8, 12, 16, 20, 24
S_W = 30
S_KOFF = 31
S_VOFF = 32
S_M0K = 33
S_CNT = 34
S_TOFF = 35
S_THR = 36
S_RET = 38
S_T = 40
S_PF = 56
S_PT = 96 - 8 - 4
S_WM = 4
LDS_M = 131072
WS_FLG2 = (60 << 20) + 131072
S_PFO = 54
S_PFN = 55

LDS_K = 0
LDS_V = 65536
LDS_W = 98304
BIAS = 48.0

PI = [0, 2, 1, 3]


def Sreg(st, kt, qt):
    return V_S[st] + ((kt >> 1) * 4 + qt) * 8 + (kt & 1) * 4


def Preg(st, qt, ks):
    return V_S[st] + (ks * 4 + qt) * 8


def Qreg(qt, s):
    return V_Q + (qt * 4 + s) * 4


def Oreg(dt, qt):
    return A_O + (dt * 4 + qt) * 4


def r4(f, b):
    return f'{f}[{b}:{b + 3}]'


def mf(d, a, b, c):
    return f'v_mfma_f32_16x16x32_bf16 {d}, {a}, {b}, {c}'


def kread(kt, s, slot):
    b = A_KF + (kt & 1) * 16 + s * 4
    return f'ds_read_b128 {r4("a", b)}, v{V_KA + s} offset:{slot * 16384 + kt * 4096}'


def vread(dt, ks, half, slot):
    b = A_VF + (dt & 3) * 8 + ks * 4 + half * 2
    return f'ds_read_b64_tr_b16 a[{b}:{b + 1}], v{V_VA + dt} offset:{slot * 16384 + ks * 8192 + half * 4096}'


def softmax_half_ops(st, ks, first):
    ex, ad, cv = [], [], []
    for qt in range(4):
        b = Preg(st, qt, ks)
        for e in range(8):
            ex.append(f'v_exp_f32 v{b + e}, v{b + e}')
            if first and e == 0:
                ad.append(f'v_add_f32 v{V_L + qt}, v{V_L + qt}, v{V_LT + qt}')
            elif first and e == 1:
                ad.append(f'v_add_f32 v{V_LT + qt}, v{b}, v{b + 1}')
            else:
                ad.append(f'v_add_f32 v{V_LT + qt}, v{V_LT + qt}, v{b + e}')
        for j in range(4):
            cv.append(f'v_cvt_pk_bf16_f32 v{b + j}, v{b + 2 * j}, v{b + 2 * j + 1}')
    return ex, ad, cv


def _cls(t):
    if t.endswith(':'):
        return 0
    if t.startswith('s_'):
        return 0
    if t.startswith(('ds_', 'buffer_', 'global_')):
        return 1
    return 2


def emit_phase(k, mfmas, gaps):
    for i, m in enumerate(mfmas):
        if m:
            k(m)
        ops = gaps.get(i, [])
        for f in sorted([o for o in ops if not isinstance(o, tuple)], key=_cls):
            k(f)
        for f in ops:
            if isinstance(f, tuple):
                k(f[1])


def place_softmax(gaps, ex, ad, cv):
    for i in range(32):
        gaps.setdefault(2 * i, []).append(ex[i])
        gaps.setdefault(2 * i + 1, []).append(ad[i])
    for j in range(16):
        gaps.setdefault(4 * j + 3, []).append(cv[j])


SM0 = 60


def softmax_stream(st):
    e0, a0, c0 = softmax_half_ops(st, 0, True)
    e1, a1, c1 = softmax_half_ops(st, 1, False)
    ex, ad, cv = e0 + e1, a0 + a1, c0 + c1
    out = []
    E = [SM0 + 2 * i for i in range(62)] + [SM0 + 123, SM0 + 124]
    A = [e + 1 for e in E]
    for i in range(64):
        out.append((E[i], 0, ex[i]))
        out.append((A[i], 1, ad[i]))
    for j in range(32):
        out.append((A[2 * j + 1], 2, cv[j]))
    out.sort(key=lambda x: (x[0], (1, 0, 2)[x[1]]))
    return out


def gen_attn(dbg=False, mallpf=True, bias=None, stflag='sc1', qp0=16, qpn=16, wqpf=2, kvpf=0, cpf=2, wqst=(2, 6), xpf=False, fln=True, hflag='sc1', early_w=0, thr=None, v2=True, skw=None, wq0=1, wqfirst=True, tailpf=True, late_w=4, midpf=True, chain_out=None):
    global BIAS
    BIAS = 48.0 if bias is None else bias
    k = Kernel('attn_kernel', vgprs=256, agprs=256, sgprs=96, grid=256, block=256, lds=160 * 1024)
    k('s_cmp_ge_u32 s2, 256')
    k(f's_cbranch_scc1 {k.L("end")}')
    T = Stamper(k, dbg)
    T.start()
    k(f's_load_dwordx2 s[28:29], s[0:1], {A_WQ}')
    k(f's_load_dwordx2 s[{S_K}:{S_K + 1}], s[0:1], {A_X}')
    k(f's_load_dwordx2 s[44:45], s[0:1], {D_WS}')
    k(f's_load_dwordx4 s[4:7], s[0:1], {A_K}')
    k(f's_load_dwordx2 s[{S_PF}:{S_PF + 1}], s[0:1], {A_WO}')
    k(f's_load_dwordx4 s[{S_PT}:{S_PT + 3}], s[0:1], {B_WG}')
    k(f's_load_dwordx2 s[{S_PT + 4}:{S_PT + 5}], s[0:1], {B_WD}')
    k(f's_load_dwordx2 s[{S_PT + 6}:{S_PT + 7}], s[0:1], {W_MOD}')
    if cpf == 1:
        code_prefetch(k, 80, 4, V_PFD, 0, 256, 49152)
    k(f'v_lshrrev_b32 v2, 6, v0')
    k(f'v_and_b32 v{V_LANE}, 63, v0')
    k(f'v_readfirstlane_b32 s{S_W}, v2')
    if cpf == 2:
        code_prefetch_light(k, 80, 53, 4, 5, V_PFD, V_LANE, S_W, 64)
    k('s_and_b32 s40, s2, 7')
    k('s_lshl_b32 s40, s40, 2')
    k('s_lshr_b32 s41, s2, 6')
    k('s_add_u32 s40, s40, s41')
    k('s_bfe_u32 s41, s2, 0x30003')
    k('s_lshl_b32 s42, s40, 19')
    k('s_lshl_b32 s43, s40, 8')
    k(f'v_and_b32 v2, 15, v{V_LANE}')
    k(f'v_lshrrev_b32 v3, 4, v{V_LANE}')
    k(f's_lshl_b32 s{S_M0K}, s{S_W}, 12')
    k(f's_lshl_b32 s46, s{S_W}, 17')
    k(f'v_lshlrev_b32 v4, 13, v3')
    k(f'v_add_u32 v4, s46, v4')
    for j in range(4):
        k(f'v_add_u32 v5, {4 * (j >> 1)}, v3')
        k(f'v_lshlrev_b32 v5, 1, v5')
        k(f'v_xor_b32 v5, v5, v2')
        k(f'v_lshl_add_u32 v5, v5, 4, v4')
        k(f'v_add_u32 v{V_WD + j}, {4 * j * 8192 - 1024 * j}, v5')
    k(f'v_lshlrev_b32 v{V_HD}, 4, v{V_LANE}')
    k('s_lshl_b32 s46, s41, 2')
    k(f's_add_u32 s46, s46, s{S_W}')
    k('s_lshl_b32 s47, s46, 12')
    k('s_lshl_b32 s48, s46, 12')
    k('s_lshl_b32 s49, s40, 19')
    k('s_add_u32 s48, s48, s49')
    k('s_waitcnt lgkmcnt(0)')
    srd(k, S_WQ, 28, 's43', 1024 * 8192 - 31 * 256)
    srd(k, S_H, 44, WS_H1, 2048 * 2048)

    def setup_rest():
        srd(k, S_K, 4, 's42', 524288)
        srd(k, S_V, 6, 's42', 524288)
        srd(k, S_OO, 44, WS_O, 2048 * 8192)
        k(f'v_lshlrev_b32 v4, 8, v3')
        k(f'v_add_u32 v4, s{S_M0K}, v4')
        for j in range(4):
            k(f'v_add_u32 v5, {4 * j}, v3')
            k(f'v_xor_b32 v5, v5, v2')
            k(f'v_lshl_add_u32 v{V_KD + j}, v5, 4, v4')
        for j in range(2):
            k(f'v_add_u32 v5, {4 * j}, v3')
            k(f'v_lshlrev_b32 v5, 1, v5')
            k(f'v_xor_b32 v5, v5, v2')
            k(f'v_lshl_add_u32 v{V_VD + j}, v5, 4, v4')
        k('v_and_b32 v4, 1, v3')
        k('v_lshlrev_b32 v4, 1, v4')
        k('v_lshrrev_b32 v5, 1, v3')
        k('v_or_b32 v4, v4, v5')
        k('v_lshlrev_b32 v6, 8, v2')
        k(f'v_lshl_add_u32 v{V_KG}, v4, 4, v6')
        for s in range(4):
            k(f'v_add_u32 v5, {4 * s}, v4')
            k('v_xor_b32 v5, v5, v2')
            k(f'v_lshl_add_u32 v{V_KA + s}, v5, 4, v6')
        k('v_lshrrev_b32 v4, 2, v2')
        k('v_and_b32 v5, 1, v3')
        k('v_lshl_or_b32 v5, v5, 2, v4')
        k('v_lshlrev_b32 v5, 1, v5')
        k('v_bfe_u32 v6, v2, 1, 1')
        k('v_xor_b32 v5, v5, v6')
        k('v_lshl_add_u32 v4, v3, 3, v4')
        k('v_lshlrev_b32 v4, 8, v4')
        k('v_and_b32 v6, 1, v2')
        k('v_lshl_add_u32 v4, v6, 3, v4')
        k(f'v_add_u32 v4, {LDS_W}, v4')
        for dt in range(8):
            k(f'v_xor_b32 v6, {2 * dt}, v5')
            k(f'v_lshl_add_u32 v{V_VA + dt}, v6, 4, v4')
        k(f'v_lshlrev_b32 v{V_CK}, 10, v3')
        k(f'v_add_u32 v{V_CK}, {LDS_W - LDS_V}, v{V_CK}')
        k(f's_mov_b32 s{S_THR}, {f32(2.0 ** (BIAS if thr is None else thr))}')
        k(f's_mov_b32 s{S_PF + 2}, {4096 * 2048}')
        k(f's_mov_b32 s{S_PF + 3}, 0x00020000')
        k(f's_lshl_b32 s{S_PFO}, s2, 2')
        k(f's_add_u32 s{S_PFO}, s{S_PFO}, s{S_W}')
        k(f's_lshl_b32 s{S_PFO}, s{S_PFO}, 13')
        k(f'v_lshlrev_b32 v{V_PF}, 7, v{V_LANE}')
        k(f'v_cmp_gt_u32 vcc, 16, v{V_LANE}')
        k(f'v_mov_b32 v5, 0x40000000')
        k(f'v_cndmask_b32 v{V_PF}, v5, v{V_PF}, vcc')
        for qt in range(4):
            k(f'v_mov_b32 v{V_L + qt}, 0')
            k(f'v_mov_b32 v{V_LT + qt}, 0')
        srd(k, S_WM, S_PT + 6, 0, 1024 * 12288)
        k(f'v_lshrrev_b32 v4, 1, v{V_LANE}')
        k('s_movk_i32 s53, 12288')
        k('v_mul_lo_u32 v4, v4, s53')
        k(f'v_and_b32 v5, 1, v{V_LANE}')
        k(f'v_lshl_add_u32 v{V_MD}, v5, 4, v4')
        k('s_and_b32 s28, s2, 7')
        k('s_lshl_b32 s28, s28, 5')
        k('s_lshr_b32 s29, s2, 3')
        k('s_add_u32 s28, s28, s29')
        k(f's_mul_i32 s29, s{S_W}, {256 * 12288}')
        k('s_lshl_b32 s53, s28, 5')
        k('s_add_u32 s29, s29, s53')
        k('s_add_u32 s29, s29, 4096')
        k(f's_lshr_b32 s{S_PFN}, s{S_PFO}, 13')
        k(f's_mul_i32 s{S_PFN}, s{S_PFN}, 12288')
        k(f's_add_u32 s{S_PFN}, s{S_PFN}, 4096')

    vm = []

    def vwait(tag):
        last = max(i for i, t in enumerate(vm) if t == tag)
        return min(63, len(vm) - 1 - last)

    def wq_dma(st):
        ops = [f's_add_u32 m0, s{S_M0K}, {LDS_W + (st & 3) * 16384}', f's_mov_b32 s50, {st * 64 * 8192}']
        for j in range(4):
            ops.append((f'buffer_load_dwordx4 v{V_WD + j}, s[{S_WQ}:{S_WQ + 3}], s50 offen offset:{j * 1024} lds', ('W', st)))
        return ops

    def h_loads(st):
        ops = []
        for s in range(2):
            ops.append(f's_add_u32 s51, s47, {(st * 2 + s) * 131072}')
            for qt in range(4):
                b = (st & 3) * 32 + (qt * 2 + s) * 4
                ops.append((f'buffer_load_dwordx4 {r4("a", b)}, v{V_HD}, s[{S_H}:{S_H + 3}], s51 offen offset:{qt * 1024} {hflag if fln else ""}', ('H', st)))
        return ops

    def kv_dma(which, t, soff):
        ops = []
        if which == 'K':
            ops.append(f's_add_u32 m0, s{S_M0K}, {LDS_K + (t & 3) * 16384}')
            for j in range(4):
                ops.append((f'buffer_load_dwordx4 v{V_KD + j}, s[{S_K}:{S_K + 3}], {soff} offen offset:{j * 1024} lds', ('K', t)))
        else:
            ops.append(f's_add_u32 m0, s{S_M0K}, {LDS_V + (t & 3) * 16384}')
            for j in range(4):
                ops.append((f'buffer_load_dwordx4 v{V_VD + (j & 1)}, s[{S_V}:{S_V + 3}], {soff} offen offset:{j * 1024} lds', ('V', t)))
        return ops

    def emit_ops(ops):
        for o in ops:
            if isinstance(o, tuple):
                k(o[0]); vm.append(o[1])
            else:
                k(o)

    def wread(dt, s, half, st):
        b = A_X2 + (dt & 3) * 8 + s * 4 + half * 2
        return f'ds_read_b64_tr_b16 a[{b}:{b + 1}], v{V_VA + dt} offset:{(st & 3) * 16384 + s * 8192 + half * 1024}'

    def qacc(dt, qt):
        return 64 + (qt * 8 + dt) * 4

    NST = 16
    queue = []
    for st in range(NST):
        if not (fln and st < late_w):
            queue.append((st - 3, wq_dma(st)))
        queue.append((st - 3, h_loads(st)))
    for w, t, e in [('K', 0, 0), ('V', 0, 0), ('K', 1, 0), ('V', 1, 0), ('K', 2, 0), ('V', 2, 13), ('K', 3, 0)]:
        queue.append((e, [f's_mov_b32 s52, {t * 16384}'] + kv_dma(w, t, 's52')))
    flat = [(e, o) for e, ops in queue for o in ops]
    nvm = lambda ops: sum(1 for o in ops if isinstance(o, tuple))

    def take(stage, maxv):
        out = []
        while flat and flat[0][0] <= stage:
            if isinstance(flat[0][1], tuple) and nvm(out) >= maxv:
                break
            if not isinstance(flat[0][1], tuple) and nvm(out) >= maxv:
                break
            out.append(flat.pop(0)[1])
        return out
    P = lambda b: f'v[{b}:{b + 1}]'
    if fln:
        X, Yb, PB, MS, MH, TT = 192, 64, 96, 160, 176, 208
        post = math.log2(math.e) / math.sqrt(128)
        k(f's_mov_b32 s{S_K + 2}, {2048 * 2048}')
        k(f's_mov_b32 s{S_K + 3}, 0x00020000')
        srd(k, S_V, 44, 0, 64 << 20)
        k('s_lshl_b32 s50, s41, 8')
        k('s_lshl_b32 s51, s40, 3')
        k('s_add_u32 s50, s50, s51')
        k(f's_lshl_b32 s51, s{S_W}, 1')
        k('s_add_u32 s51, s51, s50')
        k('s_lshl_b32 s51, s51, 11')
        for r in range(2):
            for h in range(2):
                b = X + 8 * r + 4 * h
                emit_ops([(f'buffer_load_dwordx4 {r4("v", b)}, v{V_HD}, s[{S_K}:{S_K + 3}], s51 offen offset:{r * 2048 + h * 1024}', ('L', 0))])
        k(f'v_lshlrev_b32 v{TT + 8}, 4, v0')
        k('s_mov_b32 s52, 65536')
        for p in range(8):
            for h in range(2):
                b = PB + 8 * p + 4 * h
                emit_ops([(f'buffer_load_dwordx4 {r4("v", b)}, v{TT + 8}, s[{S_V}:{S_V + 3}], s52 offen', ('L', 1))])
                k('s_add_u32 s52, s52, 4096')
        k('s_lshr_b32 s53, s50, 4')
        k('s_lshl_b32 s53, s53, 10')
        k('s_and_b32 s52, s50, 8')
        k('s_lshl_b32 s52, s52, 4')
        k('s_add_u32 s53, s53, s52')
        k(f's_lshl_b32 s52, s{S_W}, 20')
        k('s_add_u32 s53, s53, s52')
        for st in range(early_w):
            emit_ops(wq_dma(st))
    else:
        emit_ops(take(-1, 12))
        setup_rest()
        emit_ops(take(-1, qp0 - 12))
    def wq_prefetch():
        if wqpf == 1:
            k('s_lshr_b32 s50, s2, 3')
            k('s_lshl_b32 s50, s50, 2')
            k(f's_add_u32 s50, s50, s{S_W}')
            k('s_lshl_b32 s50, s50, 16')
            k('s_lshr_b32 s51, s2, 6')
            k('s_lshl_b32 s51, s51, 8')
            k('s_add_u32 s50, s50, 8192')
            k('s_sub_u32 s50, s50, s51')
            k(f'v_lshrrev_b32 v4, 3, v{V_LANE}')
            k('v_lshlrev_b32 v4, 13, v4')
            k(f'v_and_b32 v5, 7, v{V_LANE}')
            k('v_lshl_add_u32 v4, v5, 7, v4')
            emit_ops([(f'buffer_load_dword v{V_PFD}, v4, s[{S_WQ}:{S_WQ + 3}], s50 offen', ('P', 0))])
        elif wqpf == 2:
            k('s_lshr_b32 s37, s2, 3')
            k('s_lshl_b32 s37, s37, 2')
            k(f's_add_u32 s37, s37, s{S_W}')
            k('s_lshl_b32 s37, s37, 14')
            k('s_lshr_b32 s51, s2, 6')
            k('s_lshl_b32 s51, s51, 8')
            k(f's_add_u32 s37, s37, {(wq0 - (0 if wqfirst else 256)) * 8192}')
            k('s_sub_u32 s37, s37, s51')
            k(f'v_lshrrev_b32 v4, 3, v{V_LANE}')
            k('v_lshlrev_b32 v4, 13, v4')
            k(f'v_and_b32 v5, 7, v{V_LANE}')
            k('v_lshl_add_u32 v4, v5, 7, v4')
            k(f'v_cmp_gt_u32 vcc, 16, v{V_LANE}')
            k('v_mov_b32 v5, 0x40000000')
            k('v_cndmask_b32 v7, v5, v4, vcc')
            if wqfirst:
                emit_ops([(f'buffer_load_dword v{V_PFD}, v7, s[{S_WQ}:{S_WQ + 3}], s37 offen', ('P', 0))])
        pass
    if not fln:
        wq_prefetch()
    if fln:
        A0, A1 = TT, TT + 2
        for r in range(2):
            for d in range(8):
                k(f'v_lshlrev_b32 v{Yb + 16 * r + 2 * d}, 16, v{X + 8 * r + d}')
                k(f'v_and_b32 v{Yb + 16 * r + 2 * d + 1}, 0xffff0000, v{X + 8 * r + d}')
        for r in range(2):
            k(f'v_pk_add_f32 {P(TT + 2 * r)}, {P(Yb + 16 * r)}, {P(Yb + 16 * r + 2)}')
        for e in range(4, 16, 2):
            for r in range(2):
                k(f'v_pk_add_f32 {P(TT + 2 * r)}, {P(TT + 2 * r)}, {P(Yb + 16 * r + e)}')
        for r in range(2):
            k(f'v_add_f32 v{TT + 2 * r}, v{TT + 2 * r}, v{TT + 2 * r + 1}')
        wave_allreduce_add(k, [TT, TT + 2], [TT + 1, TT + 3])
        for r in range(2):
            k(f'v_mul_f32 v{TT + 2 * r}, {f32(-1.0 / 1024)}, v{TT + 2 * r}')
        for r in range(2):
            for e in range(0, 16, 2):
                o = Yb + 16 * r + e
                k(f'v_pk_add_f32 {P(o)}, {P(o)}, {P(TT + 2 * r)} op_sel_hi:[1,0]')
        for r in range(2):
            k(f'v_pk_mul_f32 {P(TT + 2 * r)}, {P(Yb + 16 * r)}, {P(Yb + 16 * r)}')
        for e in range(2, 16, 2):
            for r in range(2):
                o = Yb + 16 * r + e
                k(f'v_pk_fma_f32 {P(TT + 2 * r)}, {P(o)}, {P(o)}, {P(TT + 2 * r)}')
        for r in range(2):
            k(f'v_add_f32 v{TT + 2 * r}, v{TT + 2 * r}, v{TT + 2 * r + 1}')
        k(f's_mov_b32 s50, {f32(post)}')
        for p in range(1, 8):
            for e in range(0, 8, 2):
                k(f'v_pk_add_f32 {P(PB + e)}, {P(PB + e)}, {P(PB + 8 * p + e)}')
        if midpf:
            k('s_mov_b32 s36, s50')
            wq_prefetch()
            k('s_mov_b32 s50, s36')
        for e in range(0, 8, 2):
            k(f'v_cvt_pk_bf16_f32 v{PB + 8 + e // 2}, v{PB + e}, v{PB + 1 + e}')
        for e in range(0, 8, 2):
            k(f'v_lshlrev_b32 v{PB + e}, 16, v{PB + 8 + e // 2}')
            k(f'v_and_b32 v{PB + 1 + e}, 0xffff0000, v{PB + 8 + e // 2}')
        for e in range(4):
            k(f'v_mul_f32 v{PB + e}, s50, v{PB + e}')
            k(f'v_add_f32 v{PB + 4 + e}, 1.0, v{PB + 4 + e}')
        for e in range(0, 4, 2):
            k(f'v_cvt_pk_bf16_f32 v{PB + 8 + e // 2}, v{PB + 4 + e}, v{PB + 5 + e}')
        for e in range(0, 4, 2):
            k(f'v_lshlrev_b32 v{PB + 4 + e}, 16, v{PB + 8 + e // 2}')
            k(f'v_and_b32 v{PB + 5 + e}, 0xffff0000, v{PB + 8 + e // 2}')
        k(f'ds_write_b128 v{TT + 8}, {r4("v", PB)}')
        k(f'ds_write_b128 v{TT + 8}, {r4("v", PB + 4)} offset:4096')
        k(f'v_lshlrev_b32 v{TT + 9}, 5, v{V_LANE}')
        k('s_waitcnt lgkmcnt(0)')
        k('s_barrier')
        for h in range(2):
            for j in range(2):
                k(f'ds_read_b128 {r4("v", MS + 8 * h + 4 * j)}, v{TT + 9} offset:{4096 + h * 2048 + j * 16}')
                k(f'ds_read_b128 {r4("v", MH + 8 * h + 4 * j)}, v{TT + 9} offset:{h * 2048 + j * 16}')
        wave_allreduce_add(k, [TT, TT + 2], [TT + 1, TT + 3])
        k(f's_mov_b32 s51, {f32(1.0 / 1024)}')
        k(f'v_mov_b32 v{TT + 4}, {f32(1e-5)}')
        for r in range(2):
            k(f'v_fma_f32 v{TT + 2 * r}, v{TT + 2 * r}, s51, v{TT + 4}')
        for r in range(2):
            k(f'v_rsq_f32 v{TT + 2 * r}, v{TT + 2 * r}')
        for r in range(2):
            k(f'v_mul_f32 v{TT + 2 * r}, s50, v{TT + 2 * r}')
        k(f'v_lshlrev_b32 v{TT + 10}, 7, v{V_LANE}')
        k(f'v_and_b32 v{TT + 11}, 7, v{V_LANE}')
        k(f's_lshl_b32 s51, s{S_W}, 1')
        for r in range(2):
            for e in range(0, 16, 2):
                o = Yb + 16 * r + e
                k(f'v_pk_mul_f32 {P(o)}, {P(o)}, {P(TT + 2 * r)} op_sel_hi:[1,0]')
            for e in range(0, 16, 2):
                o = Yb + 16 * r + e
                k(f'v_pk_fma_f32 {P(o)}, {P(o)}, {P(MS + e)}, {P(MH + e)}')
            for d in range(8):
                o = Yb + 16 * r + 2 * d
                k(f'v_cvt_pk_bf16_f32 v{Yb + 16 * r + d}, v{o}, v{o + 1}')
            k(f'v_xor_b32 v{TT + 12}, s51, v{TT + 11}')
            k(f'v_lshl_add_u32 v{TT + 12}, v{TT + 12}, 4, v{TT + 10}')
            k(f'ds_write_b128 v{TT + 12}, {r4("v", Yb + 16 * r)} offset:8192')
            k(f'ds_write_b128 v{TT + 12}, {r4("v", Yb + 16 * r + 4)} offset:16384')
            k('s_add_u32 s51, s51, 1')
        k(f'v_lshrrev_b32 v{TT + 13}, 3, v{V_LANE}')
        k(f'v_xor_b32 v{TT + 12}, v{TT + 13}, v{TT + 11}')
        k(f'v_lshlrev_b32 v{TT + 12}, 4, v{TT + 12}')
        k(f'v_lshl_add_u32 v{TT + 12}, v{TT + 13}, 7, v{TT + 12}')
        k(f'v_add_u32 v{TT + 12}, s{S_M0K}, v{TT + 12}')
        k(f'v_lshrrev_b32 v{TT + 14}, 2, v{TT + 13}')
        k(f'v_lshlrev_b32 v{TT + 14}, 17, v{TT + 14}')
        k(f'v_and_b32 v{TT + 15}, 3, v{TT + 13}')
        k(f'v_lshl_add_u32 v{TT + 14}, v{TT + 15}, 8, v{TT + 14}')
        k(f'v_lshl_add_u32 v{TT + 14}, v{TT + 11}, 4, v{TT + 14}')
        k('s_waitcnt lgkmcnt(0)')
        k('s_barrier')
        for i in range(4):
            k(f'ds_read_b128 {r4("v", PB + 4 * i)}, v{TT + 12} offset:{8192 + i * 1024}')
        for i in range(4):
            emit_ops([(f'buffer_store_dwordx4 {r4("v", PB + 4 * i)}, v{TT + 14}, s[{S_H}:{S_H + 3}], s53 offen sc1', ('S', 0))])
            k(f's_add_u32 s53, s53, {2 * 131072}')
        k('s_lshl_b32 s52, s41, 7')
        k(f's_add_u32 s52, s52, {WS_FLG2}')
        k('s_lshl_b32 s53, s40, 2')
        k('s_add_u32 s53, s53, s52')
        k(f's_mov_b64 s[80:81], s[{S_V}:{S_V + 1}]')
        k(f's_mov_b32 s82, {64 << 20}')
        k(f's_mov_b32 s83, 0x00020000')
        k(f'v_mov_b32 v{TT}, 0')
        k(f'v_mov_b32 v{TT + 1}, 1')
        k(f'v_and_b32 v{TT + 2}, 31, v{V_LANE}')
        k(f'v_lshlrev_b32 v{TT + 2}, 2, v{TT + 2}')
        if dbg: T.stamp()
        k('s_mov_b32 s39, s52')
        k('s_mov_b32 s38, s53')
        setup_rest()
        k('s_waitcnt vmcnt(0)')
        k('s_barrier')
        k(f's_cmp_lg_u32 s{S_W}, 0')
        k(f's_cbranch_scc1 {k.L("noflag")}')
        k(f'buffer_store_dword v{TT + 1}, v{TT}, s[80:83], s38 offen sc1')
        k.label('noflag')
        if dbg: T.stamp()
        for st in range(early_w, late_w):
            emit_ops(wq_dma(st))
        if midpf:
            k(f's_add_u32 s37, s37, {256 * 8192}')
            k(f'buffer_load_dword v{V_PFD}, v7, s[{S_WQ}:{S_WQ + 3}], s37 offen')
        else:
            wq_prefetch()
        k(f's_cmp_lg_u32 s{S_W}, 0')
        k(f's_cbranch_scc1 {k.L("hgot")}')
        k('s_mov_b32 s53, 0')
        k.label('hpoll')
        k(f'buffer_load_dword v{TT + 3}, v{TT + 2}, s[80:83], s39 offen sc1')
        k('s_waitcnt vmcnt(0)')
        k(f'v_cmp_ne_u32 vcc, 1, v{TT + 3}')
        k(f's_cbranch_vccz {k.L("hgot")}')
        k('s_sleep 1')
        k('s_add_u32 s53, s53, 1')
        k('s_cmp_lt_u32 s53, 0x40000')
        k(f's_cbranch_scc1 {k.L("hpoll")}')
        k.label('hgot')
        k('s_waitcnt vmcnt(0)')
        k('s_barrier')
        if dbg: T.stamp()
        del vm[:]
        vm.extend([('W', i) for i in range(late_w)])
        emit_ops(take(-1, 8))
    else:
        k(f's_waitcnt vmcnt({vwait(("W", 0))})')
        k('s_barrier')
    T.stamp()
    PD = 3
    for dt in range(PD):
        for s in range(2):
            for h in range(2):
                k(wread(dt, s, h, 0))

    def qcvt(sp):
        ops = []
        for qt in range(4):
            q = Qreg(qt, sp)
            t0, t1 = qacc(2 * sp, qt), qacc(2 * sp + 1, qt)
            ops += [f'v_cvt_pk_bf16_f32 v{q}, v{t0}, v{t0 + 1}', f'v_cvt_pk_bf16_f32 v{q + 1}, v{t0 + 2}, v{t0 + 3}',
                    f'v_cvt_pk_bf16_f32 v{q + 2}, v{t1}, v{t1 + 1}', f'v_cvt_pk_bf16_f32 v{q + 3}, v{t1 + 2}, v{t1 + 3}']
        for qt in range(4):
            q = Qreg(qt, sp)
            ops += [f'v_permlane16_swap_b32 v{q}, v{q + 2}', f'v_permlane16_swap_b32 v{q + 1}, v{q + 3}']
        return ops
    for st in range(NST):
        gaps = {}

        def put(g, op):
            gaps.setdefault(g, []).append(op)
        M = []
        busy = set()
        BG = 6
        for dt in range(8):
            tgt = dt + PD
            rd = []
            if tgt < 8:
                rd = [wread(tgt, s, h, st) for s in range(2) for h in range(2)]
                pos = [0, 2, 4, 6]
            elif st + 1 < NST:
                if dt == 6:
                    rd = [wread(x, s, h, st + 1) for x in (0, 1) for s in range(2) for h in range(2)][:7]
                    pos = [1, 2, 3, 4, 5, 6, 7]
                elif dt == 7:
                    rd = [wread(1, 1, 1, st + 1)] + [wread(2, s, h, st + 1) for s in range(2) for h in range(2)]
                    pos = [0, 1, 2, 4, 6]
            else:
                if dt == 6:
                    rd = [kread(0, s, 0) for s in range(4)]
                    pos = [1, 3, 5, 7]
                elif dt == 7:
                    rd = [kread(1, s, 0) for s in range(4)]
                    pos = [0, 2, 4, 6]
            for r, p in zip(rd, pos):
                put(dt * 8 + p, r)
                busy.add(dt * 8 + p)
            for qt in range(4):
                for s in range(2):
                    d = r4('v', qacc(dt, qt))
                    a = r4('a', A_X2 + (dt & 3) * 8 + s * 4)
                    b = r4('a', (st & 3) * 32 + (qt * 2 + s) * 4)
                    M.append(mf(d, a, b, '0' if (st == 0 and s == 0) else d))
        side = take(st, qpn)
        if wqpf == 2 and st in wqst:
            side = [f's_add_u32 s37, s37, {256 * 8192}',
                    (f'buffer_load_dword v{V_PFD}, v7, s[{S_WQ}:{S_WQ + 3}], s37 offen', ('P', 0))] + side
        if kvpf and st == kvpf:
            side = [f's_lshl_b32 s53, s46, 11',
                    (f'buffer_load_dword v{V_PFD}, v{V_PF}, s[{S_K}:{S_K + 3}], s53 offen', ('P', 1)),
                    (f'buffer_load_dword v{V_PFD}, v{V_PF}, s[{S_V}:{S_V + 3}], s53 offen', ('P', 1))] + side
        free = [g for g in range(1, 63) if g not in busy and g not in (47, 48)]
        n = nvm(side)
        pos = [free[(i * len(free)) // n] for i in range(n)] if n else []
        vi = 0
        pend_s = []
        for o in side:
            if isinstance(o, tuple):
                put(pos[vi], ('V', pend_s, o))
                pend_s = []
                vi += 1
            else:
                pend_s.append(o)
        assert not pend_s
        if st >= 13:
            z = [f'v_accvgpr_write_b32 a{((st - 13) & 3) * 32 + i}, 0' for i in range(32)]
            for i, o in enumerate(z):
                put(2 * i + (1 if st < 15 else 0) if st < 15 else i // 2, o)
        if st == 15:
            for sp in range(3):
                for i, o in enumerate(qcvt(sp)):
                    put(16 * (sp + 1) + 3 + i // 2, o)
        for i, m in enumerate(M):
            k(m)
            ops = gaps.get(i, [])
            if i == 47:
                if st + 1 < NST:
                    k(f's_waitcnt vmcnt({vwait(("W", st + 1))}) lgkmcnt(0)')
                else:
                    k(f's_waitcnt vmcnt({vwait(("K", 0))})')
            if i == 48:
                k('s_barrier')
            nxt = [o for o in gaps.get(i + 1, []) if isinstance(o, tuple)]
            cur = [o for o in ops if isinstance(o, tuple)]
            if not cur:
                for o in nxt:
                    for sc in o[1]:
                        k(sc)
            for o in cur:
                emit_ops([o[2]])
            if cur:
                for o in nxt:
                    for sc in o[1]:
                        k(sc)
            for o in sorted([o for o in ops if not isinstance(o, tuple)], key=_cls):
                k(o)
        if dbg == 3: T.stamp()
    assert not flat, flat
    T.stamp()
    for o in qcvt(3):
        k(o)
    extras = [f'v_accvgpr_write_b32 a{96 + i}, 0' for i in range(32)]
    extras += [f'v_sub_u32 v{V_VA + dt}, v{V_VA + dt}, v{V_CK}' for dt in range(8)]
    gaps = {}
    for i, o in enumerate(extras):
        gaps.setdefault(i // 2, []).append(o)
    M = []
    for kt in range(4):
        for qt in range(4):
            for s in range(4):
                d = r4('v', Sreg(0, kt, qt))
                M.append(mf(d, r4('a', A_KF + (kt & 1) * 16 + s * 4), r4('v', Qreg(qt, s)), '0' if s == 0 else d))
            if kt < 3:
                b = Sreg(0, kt, qt)
                g = 16 * kt + 4 * qt + 12
                if kt == 0:
                    gaps.setdefault(g + 8, []).append(f'v_max3_f32 v{V_TM + qt}, v{b}, v{b + 1}, v{b + 2}')
                    gaps.setdefault(g + 9, []).append(f'v_max_f32 v{V_TM + qt}, v{V_TM + qt}, v{b + 3}')
                else:
                    gaps.setdefault(g, []).append(f'v_max3_f32 v{V_TM + qt}, v{V_TM + qt}, v{b}, v{b + 1}')
                    gaps.setdefault(g + 1, []).append(f'v_max3_f32 v{V_TM + qt}, v{V_TM + qt}, v{b + 2}, v{b + 3}')
        if kt + 2 < 4:
            for s in range(4):
                gaps.setdefault(16 * (kt + 1) + 2 * s, []).append(kread(kt + 2, s, 0))
    gaps.setdefault(55, []).append(f's_waitcnt vmcnt({min(vwait(("V", 0)), vwait(("K", 1)))}) lgkmcnt(0)')
    gaps.setdefault(56, []).append('s_barrier')
    for s in range(4):
        gaps.setdefault(57 + s, []).append(kread(0, s, 1))
    emit_phase(k, M, gaps)
    for qt in range(4):
        b = Sreg(0, 3, qt)
        k(f'v_max3_f32 v{V_TM + qt}, v{V_TM + qt}, v{b}, v{b + 1}')
        k(f'v_max3_f32 v{V_TM + qt}, v{V_TM + qt}, v{b + 2}, v{b + 3}')

    def rowmax(st, dst, local=True):
        for qt in range(4 if local else 0):
            regs = [Sreg(st, kt, qt) + r for kt in range(4) for r in range(4)]
            d = dst + qt
            k(f'v_max3_f32 v{d}, v{regs[0]}, v{regs[1]}, v{regs[2]}')
            for i in range(3, 15, 2):
                k(f'v_max3_f32 v{d}, v{d}, v{regs[i]}, v{regs[i + 1]}')
            k(f'v_max_f32 v{d}, v{d}, v{regs[15]}')
        for sw in ('v_permlane16_swap_b32', 'v_permlane32_swap_b32'):
            for qt in range(4):
                k(f'v_mov_b32 v{V_T0 + qt}, v{dst + qt}')
            for qt in range(4):
                k(f'{sw} v{V_T0 + qt}, v{dst + qt}')
            for qt in range(4):
                k(f'v_max_f32 v{dst + qt}, v{dst + qt}, v{V_T0 + qt}')

    rowmax(0, V_TM, local=False)
    k(f's_mov_b32 s53, {f32(BIAS)}')
    for qt in range(4):
        k(f'v_add_f32 v{V_TM + qt}, s53, v{V_TM + qt}')
        for r in range(4):
            k(f'v_sub_f32 v{V_CI + qt * 4 + r}, 0, v{V_TM + qt}')
    for kt in range(4):
        for qt in range(4):
            for r in range(4):
                x = Sreg(0, kt, qt) + r
                k(f'v_sub_f32 v{x}, v{x}, v{V_TM + qt}')
    k(f's_mov_b32 s{S_KOFF}, {4 * 16384}')
    k(f's_mov_b32 s{S_VOFF}, {3 * 16384}')
    k(f's_mov_b32 s{S_TOFF}, 0')
    k(f's_mov_b32 s{S_CNT}, 0')
    if tailpf:
        k('s_getpc_b64 s[80:81]')
        k.label('tpc')
        k(f's_add_u32 s80, s80, {k.L("tail")}-{k.L("tpc")}')
        k('s_addc_u32 s81, s81, 0')
        k(f's_mov_b32 s82, {k.L("end")}-{k.L("tail")}')
        k(f's_and_b32 s37, s{S_W}, 1')
        k('s_lshl_b32 s37, s37, 13')
    tramps = []

    def epi_ops(j):
        ops = [f's_add_u32 s49, s48, {j * 131072}']
        for qt in range(4):
            gi = j * 4 + qt
            t = (64 + gi * 8) if gi < 8 else (192 + (gi - 8) * 8)
            for h in range(2):
                for r in range(4):
                    ops.append(f'v_accvgpr_read_b32 v{t + h * 4 + r}, a{Oreg(2 * j + h, qt) + r}')
            for e in range(8):
                ops.append(f'v_mul_f32 v{t + e}, v{t + e}, v{V_L + qt}')
            for e in range(4):
                ops.append(f'v_cvt_pk_bf16_f32 v{t + e}, v{t + 2 * e}, v{t + 2 * e + 1}')
            ops.append(f'buffer_store_dwordx4 {r4("v", t)}, v{V_HD}, s[{S_OO}:{S_OO + 3}], s49 offen offset:{qt * 1024} {stflag}')
        return ops

    def tile(t4, last=False, tag='', pf=False, peel=False):
        st, sn = t4 & 1, (t4 + 1) & 1
        M = []
        gaps = {}

        def put(g, op):
            gaps.setdefault(g, []).append(op)
        for pos, _, op in softmax_stream(st):
            if pos >= 128:
                put(pos - 128, op)
        put(58, f'v_max3_f32 v{V_CK}, v{V_LT}, v{V_LT + 1}, v{V_LT + 2}')
        put(58, f'v_max_f32 v{V_CK}, v{V_CK}, v{V_LT + 3}')
        put(59, f'v_cmp_nge_f32 vcc, s{S_THR}, v{V_CK}')
        lab = k.newlabel('tr')
        put(60, f's_cbranch_vccnz {k.L(lab)}')
        put(60, k.L(lab + 'r') + ':')
        tramps.append((lab, st))
        if not last:
            for pos, _, op in softmax_stream(sn):
                if pos < 128:
                    put(pos, op)
        else:
            lops = [f'v_add_f32 v{V_L + qt}, v{V_L + qt}, v{V_LT + qt}' for qt in range(4)]
            for sw in ('v_permlane16_swap_b32', 'v_permlane32_swap_b32'):
                lops += [f'v_mov_b32 v{V_T0 + qt}, v{V_L + qt}' for qt in range(4)]
                lops += [f'{sw} v{V_T0 + qt}, v{V_L + qt}' for qt in range(4)]
                lops += [f'v_add_f32 v{V_L + qt}, v{V_L + qt}, v{V_T0 + qt}' for qt in range(4)]
            lops += [f'v_rcp_f32 v{V_L + qt}, v{V_L + qt}' for qt in range(4)]
            for i, o in enumerate(lops):
                put(64 + i // 2, o)
            put(61, f's_add_u32 s{S_H}, s44, {WS_MOD}')
            put(61, f's_addc_u32 s{S_H + 1}, s45, 0')
            put(61, f's_mov_b32 s{S_H + 2}, 65536')
            put(62, f's_lshl_b32 s50, s{S_W}, 9')
            put(62, f's_add_u32 s50, s50, 32768')
            put(62, f'v_and_b32 v{V_KG}, 0x30, v{V_LANE}')
            put(63, f's_waitcnt vmcnt(0)')
            put(63, f'v_lshlrev_b32 v{V_CK}, 4, v{V_KG}')
            put(63, f'v_and_b32 v{V_MD}, 15, v{V_LANE}')
            put(63, f'v_lshl_add_u32 v{V_CK}, v{V_MD}, 3, v{V_CK}')
            put(63, f's_lshl_b32 s51, s{S_M0K}, 1')
            put(63, f's_add_u32 s51, s51, {LDS_M}')
            put(63, ('raw', f'v_add_u32 v{V_CK}, s51, v{V_CK}'))
            for s8 in range(8):
                put(64 + 2 * s8, f'buffer_load_dwordx4 {r4("a", A_X2 + 4 * s8)}, v{V_KG}, s[{S_H}:{S_H + 3}], s50 offen offset:{s8 * 64}')
                for h in range(2):
                    b = A_X2 + 32 + 4 * s8 + 2 * h
                    put(106 + 2 * s8 + h, f'ds_read_b64_tr_b16 a[{b}:{b + 1}], v{V_CK} offset:{s8 * 1024 + h * 128}')
            for j in range(3):
                eo = epi_ops(j)
                g0 = 64 + 16 * (j + 1) + 2
                span = min(16, 128 - g0)
                for i, o in enumerate(eo):
                    put(g0 + (i * span) // len(eo), ('raw', o))
        kslot = (t4 + 1) & 3
        if not last:
            for kt in range(4):
                for qt in range(4):
                    for s in range(4):
                        d = r4('v', Sreg(sn, kt, qt))
                        c = r4('v', V_CI + qt * 4) if s == 0 else d
                        M.append(mf(d, r4('a', A_KF + (kt & 1) * 16 + s * 4), r4('v', Qreg(qt, s)), c))
                if kt + 1 < 4:
                    for s, g in enumerate([1, 3, 5, 9]):
                        put(16 * kt + g, kread(kt + 1, s, kslot))
            ops = kv_dma('V', t4 + 3, f's{S_VOFF}') + [f's_add_u32 s{S_VOFF}, s{S_VOFF}, 16384'] \
                + kv_dma('K', t4, f's{S_KOFF}') + [f's_add_u32 s{S_KOFF}, s{S_KOFF}, 16384']
            ops = [o[0] if isinstance(o, tuple) else o for o in ops]
            slots = [10, 11, 13, 27, 29, 30, 42, 43, 45, 47, 49, 50]
            if peel:
                def wm(half):
                    o = [f's_lshl_b32 m0, s{S_M0K}, 1', f's_add_u32 m0, m0, {LDS_M + half * 4096}']
                    sl = [40, 42]
                    for j, g in enumerate([43, 45, 47, 49]):
                        o += [f'buffer_load_dwordx4 v{V_MD}, s[{S_WM}:{S_WM + 3}], s29 offen offset:{j * 1024} lds',
                              f's_add_u32 s29, s29, {32 * 12288 - 1024 + (4096 if j == 3 else 0)}']
                        sl += [g, g + 1]
                    return o, sl
                ops, slots = (ops[:6], slots[:6]) if t4 == 0 else ([], [])
                if t4 < 2:
                    o, sl = wm(t4)
                    ops, slots = ops + o, slots + sl
            for o, g in zip(ops, slots):
                put(g, o)
        else:
            M = [None] * 64
        vr = [vread(dt, ks, h, t4) for dt in range(3) for ks in range(2) for h in range(2)]
        for i, g in enumerate([7, 15, 23, 31, 39, 51, 53, 55, 57, 59, 61, 63]):
            put(g, vr[i])
        for dt in range(8):
            for qt in range(4):
                for ks in range(2):
                    d = r4('a', Oreg(dt, qt))
                    M.append(mf(d, r4('a', A_VF + (dt & 3) * 8 + ks * 4), r4('v', Preg(st, qt, ks)), d))
            if dt + 3 < 8:
                vr = [vread(dt + 3, ks, h, t4) for ks in range(2) for h in range(2)]
                for i, g in enumerate([1, 3, 5, 7]):
                    put(64 + 8 * dt + g, vr[i])
        put(66, f's_add_u32 s{S_TOFF}, s{S_TOFF}, 16384')
        if pf:
            put(105, f'buffer_load_dword v{V_PFD}, v{V_PF}, s[{S_PF}:{S_PF + 3}], s{S_PFO} offen offset:{(t4 & 1) * 2048}')
            if t4 == 1:
                put(106, f's_add_u32 s{S_PFO}, s{S_PFO}, 4096')
            if t4 == 3:
                rot = [f's_sub_u32 s{S_PFO}, s{S_PFO}, 4096',
                       f's_mov_b64 s[{S_PF}:{S_PF + 1}], s[{S_PT}:{S_PT + 1}]',
                       f's_mov_b64 s[{S_PT}:{S_PT + 1}], s[{S_PT + 2}:{S_PT + 3}]',
                       f's_mov_b64 s[{S_PT + 2}:{S_PT + 3}], s[{S_PT + 4}:{S_PT + 5}]',
                       f's_mov_b64 s[{S_PT + 4}:{S_PT + 5}], s[{S_PT + 6}:{S_PT + 7}]',
                       f's_mov_b64 s[{S_PT + 6}:{S_PT + 7}], s[44:45]',
                       f's_cmp_lt_u32 s{S_CNT}, 3',
                       f's_cselect_b32 s{S_PF + 2}, {1024 * 7168}, 0',
                       f's_cmp_eq_u32 s{S_CNT}, 3',
                       f's_cselect_b32 s{S_PF + 2}, {1024 * 12288}, s{S_PF + 2}',
                       f's_cselect_b32 s{S_PFO}, s{S_PFN}, s{S_PFO}']
                if xpf:
                    rot += [f's_cmp_eq_u32 s{S_CNT}, 4',
                            f's_cselect_b32 s{S_PF + 2}, {64 << 20}, s{S_PF + 2}',
                            f's_cselect_b32 s{S_PFO}, s37, s{S_PFO}']
                for o, g in zip(rot, [106, 107, 108, 109, 110, 114, 116, 118, 119, 120, 122, 123, 124, 126]):
                    put(g, o)
        if not last:
            put(111, f's_waitcnt vmcnt({[16, 12, 4][t4] if peel else 17 if pf else 16}) lgkmcnt(0)')
            put(112, 's_barrier')
            for s, g in enumerate([113, 115, 117, 121]):
                put(g, kread(0, s, (t4 + 2) & 3))
        emit_phase(k, M, gaps)

    SCH = sched_attn.best(**(skw or {})) if v2 else None
    V_ONE = V_WD

    def sop(o, ss):
        if o[0] == 'E':
            r = Preg(ss, o[1], o[2]) + o[3]
            return f'v_exp_f32 v{r}, v{r}'
        if o[0] == 'C':
            b = Preg(ss, o[1], o[2])
            return f'v_cvt_pk_bf16_f32 v{b + o[3]}, v{b + 2 * o[3]}, v{b + 2 * o[3] + 1}'
        if o[0] == 'L':
            return f'v_add_f32 v{V_L + o[1]}, v{V_L + o[1]}, v{V_LT + o[1]}'
        if o[0] == 'A':
            b = Preg(ss, o[1], 1)
            lt = V_LT + o[1]
            if o[2] == 1:
                return f'v_add_f32 v{lt}, v{b}, v{b + 1}'
            if o[2] == 8:
                return f'v_add_f32 v{lt}, v{lt}, v{Preg(ss, o[1], 0) + 4}'
            return f'v_add_f32 v{lt}, v{lt}, v{b + o[2]}'
        if o[0] == 'X':
            return [f'v_max3_f32 v{V_CK}, v{V_LT}, v{V_LT + 1}, v{V_LT + 2}', f'v_max_f32 v{V_CK}, v{V_CK}, v{V_LT + 3}',
                    f'v_cmp_nge_f32 vcc, s{S_THR}, v{V_CK}'][o[1]]

    def summ(q, ss):
        b = Preg(ss, q, 0)
        return mf(r4('v', b + 4), r4('v', V_ONE), r4('v', b), '0')

    def tile2(t4, last=False, pf=False, peel=False):
        NG, G0, BAR = sched_attn.NG, 63, 68
        _, MS, SG, _ = SCH
        st, sn = t4 & 1, (t4 + 1) & 1
        gaps = {}

        def put(g, op):
            gaps.setdefault(g, []).append(op)
        M = []
        for i, m in enumerate(MS):
            if m[0] == 'QK':
                _, kt, qt, s = m
                d = r4('v', Sreg(sn, kt, qt))
                M.append(None if last else mf(d, r4('a', A_KF + (kt & 1) * 16 + s * 4), r4('v', Qreg(qt, s)), r4('v', V_CI + qt * 4) if s == 0 else d))
            elif m[0] == 'PV':
                _, dt, qt, ks = m
                d = r4('a', Oreg(dt, qt))
                M.append(mf(d, r4('a', A_VF + (dt & 3) * 8 + ks * 4), r4('v', Preg(st, qt, ks)), d))
            else:
                M.append(summ(m[1], st) if i < G0 else (None if last else summ(m[1], sn)))
        seen = set()
        wg = {BAR - 1, BAR, G0}
        for i, m in enumerate(MS):
            key = (m[0], m[1], m[3]) if m[0] != 'SUM' else None
            if key and key not in seen:
                seen.add(key)
                wg.add((i - 1) % NG)
        used_s = set(wg)

        def put_s(lo, hi, op):
            for g in range(lo, hi + 1):
                if g not in used_s:
                    used_s.add(g)
                    put(g, op)
                    return g
            put(hi, op)
            return hi
        vd = [o[0] if isinstance(o, tuple) else o for o in kv_dma('V', t4 + 3, f's{S_VOFF}')]
        kd = [o[0] if isinstance(o, tuple) else o for o in kv_dma('K', t4, f's{S_KOFF}')]
        dpos = {}
        for u, ops in SG.items():
            g = u % NG
            for o in ops:
                if o[0] in 'ECLAX':
                    if u >= NG:
                        put(g, sop(o, st))
                    elif not last:
                        put(g, sop(o, sn))
                elif o[0] == 'K':
                    if not last:
                        put(g, kread(o[1], o[2], (t4 + (1 if u >= NG else 2)) & 3))
                elif o[0] == 'V':
                    put(g, vread(o[1], o[2], o[3], t4))
                elif o[0] == 'D':
                    dpos[o[1]] = g
        lab = k.newlabel('tr')
        put(G0, f's_cbranch_vccnz {k.L(lab)}')
        put(G0, k.L(lab + 'r') + ':')
        tramps.append((lab, st))
        put_s(G0 + 1, G0 + 12, f's_add_u32 s{S_TOFF}, s{S_TOFF}, 16384')
        if not last:
            if not peel or t4 == 0:
                put_s(BAR + 1, dpos[0] - 1, vd[0])
                for j in range(4):
                    put(dpos[j], vd[1 + j])
                put(dpos[3] + 1, f's_add_u32 s{S_VOFF}, s{S_VOFF}, 16384')
                used_s.add(dpos[3] + 1)
            if not peel:
                put_s(4, dpos[4] - 1, kd[0])
                for j in range(4):
                    put(dpos[4 + j], kd[1 + j])
                put_s(dpos[7] + 1, G0 - 1, f's_add_u32 s{S_KOFF}, s{S_KOFF}, 16384')
            elif t4 < 2:
                g = put_s(4, dpos[4] - 3, f's_lshl_b32 m0, s{S_M0K}, 1')
                put_s(g + 1, dpos[4] - 1, f's_add_u32 m0, m0, {LDS_M + t4 * 4096}')
                for j in range(4):
                    put(dpos[4 + j], f'buffer_load_dwordx4 v{V_MD}, s[{S_WM}:{S_WM + 3}], s29 offen offset:{j * 1024} lds')
                    put_s(dpos[4 + j] + 1, dpos[5 + j] - 1, f's_add_u32 s29, s29, {32 * 12288 - 1024 + (4096 if j == 3 else 0)}')
            put(BAR - 1, f's_waitcnt vmcnt({4 if (peel and t4 == 2) else 12})')
            put(BAR, 's_barrier')
        if pf:
            put(dpos[8], f'buffer_load_dword v{V_PFD}, v{V_PF}, s[{S_PF}:{S_PF + 3}], s{S_PFO} offen offset:{(t4 & 1) * 2048}')
            if t4 == 1:
                put_s(80, 100, f's_add_u32 s{S_PFO}, s{S_PFO}, 4096')
            if t4 == 3:
                rot = [f's_sub_u32 s{S_PFO}, s{S_PFO}, 4096',
                       f's_mov_b64 s[{S_PF}:{S_PF + 1}], s[{S_PT}:{S_PT + 1}]',
                       f's_mov_b64 s[{S_PT}:{S_PT + 1}], s[{S_PT + 2}:{S_PT + 3}]',
                       f's_mov_b64 s[{S_PT + 2}:{S_PT + 3}], s[{S_PT + 4}:{S_PT + 5}]',
                       f's_mov_b64 s[{S_PT + 4}:{S_PT + 5}], s[{S_PT + 6}:{S_PT + 7}]',
                       f's_cmp_lt_u32 s{S_CNT}, 3',
                       f's_cselect_b32 s{S_PF + 2}, {1024 * 7168}, 0',
                       f's_cmp_eq_u32 s{S_CNT}, 3',
                       f's_cselect_b32 s{S_PF + 2}, {1024 * 12288}, s{S_PF + 2}',
                       f's_cselect_b32 s{S_PFO}, s{S_PFN}, s{S_PFO}']
                if tailpf:
                    rot += [f's_cmp_eq_u32 s{S_CNT}, 5',
                            f's_cselect_b64 s[{S_PF}:{S_PF + 1}], s[80:81], s[{S_PF}:{S_PF + 1}]',
                            f's_cselect_b32 s{S_PF + 2}, s82, s{S_PF + 2}',
                            f's_cselect_b32 s{S_PFO}, s37, s{S_PFO}']
                rot += [f's_add_u32 s{S_CNT}, s{S_CNT}, 1']
                g = 80
                for o in rot:
                    g = put_s(g + 1, 120, o)
        if last:
            B0 = 66
            lops = [f'v_add_f32 v{V_L + qt}, v{V_L + qt}, v{V_LT + qt}' for qt in range(4)]
            for sw in ('v_permlane16_swap_b32', 'v_permlane32_swap_b32'):
                lops += [f'v_mov_b32 v{V_T0 + qt}, v{V_L + qt}' for qt in range(4)]
                lops += [f'{sw} v{V_T0 + qt}, v{V_L + qt}' for qt in range(4)]
                lops += [f'v_add_f32 v{V_L + qt}, v{V_L + qt}, v{V_T0 + qt}' for qt in range(4)]
            lops += [f'v_rcp_f32 v{V_L + qt}, v{V_L + qt}' for qt in range(4)]
            for i, o in enumerate(lops):
                put(B0 + i // 2, o)
            for o in [f's_add_u32 s{S_H}, s44, {WS_MOD}', f's_addc_u32 s{S_H + 1}, s45, 0', f's_mov_b32 s{S_H + 2}, 65536',
                      f's_lshl_b32 s50, s{S_W}, 9', f's_add_u32 s50, s50, 32768', f'v_and_b32 v{V_KG}, 0x30, v{V_LANE}',
                      's_waitcnt vmcnt(0)', f'v_lshlrev_b32 v{V_CK}, 4, v{V_KG}', f'v_and_b32 v{V_MD}, 15, v{V_LANE}',
                      f'v_lshl_add_u32 v{V_CK}, v{V_MD}, 3, v{V_CK}', f's_lshl_b32 s51, s{S_M0K}, 1', f's_add_u32 s51, s51, {LDS_M}',
                      f'v_add_u32 v{V_CK}, s51, v{V_CK}']:
                put(65, ('raw', o))
            for s8 in range(8):
                put(B0 + 2 * s8, f'buffer_load_dwordx4 {r4("a", A_X2 + 4 * s8)}, v{V_KG}, s[{S_H}:{S_H + 3}], s50 offen offset:{s8 * 64}')
                for h in range(2):
                    b = A_X2 + 32 + 4 * s8 + 2 * h
                    put(114 + 2 * s8 + h, f'ds_read_b64_tr_b16 a[{b}:{b + 1}], v{V_CK} offset:{s8 * 1024 + h * 128}')
            for j in range(3):
                eo = epi_ops(j)
                g0 = max(i for i, m in enumerate(MS) if m[0] == 'PV' and m[1] == 2 * j + 1) + 3
                span = min(16, NG - g0)
                for i, o in enumerate(eo):
                    put(g0 + (i * span) // len(eo), ('raw', o))
        emit_phase(k, M, gaps)

    if not v2:
        pre = [(pos + (0 if kind == 0 else 3), op) for pos, kind, op in softmax_stream(0) if pos < 128]
        pre.sort(key=lambda x: x[0])
        for pos, op in pre:
            k(op)
    else:
        for r in range(4):
            k(f'v_mov_b32 v{V_ONE + r}, 0x3e803e80')
        for u in sorted(SCH[2]):
            if u >= sched_attn.NG:
                break
            if SCH[1][u][0] == 'SUM':
                k(summ(SCH[1][u][1], 0))
            for o in SCH[2][u]:
                if o[0] in 'ECLA':
                    k(sop(o, 0))
                elif o[0] == 'K' and o[1] == 1:
                    k(kread(1, o[2], 1))
    T.stamp()
    k('.p2align 6')
    k.label('loop')
    for t4 in range(4):
        (tile2 if v2 else tile)(t4, pf=mallpf)
    if not (v2 and mallpf):
        k(f's_add_u32 s{S_CNT}, s{S_CNT}, 1')
    k(f's_cmp_lt_u32 s{S_CNT}, 7')
    k(f's_cbranch_scc1 {k.L("loop")}')
    k.label('tail')
    T.stamp()
    for t4 in range(4):
        (tile2 if v2 else tile)(t4, last=(t4 == 3), peel=True)
    T.stamp()

    for s8 in range(8):
        k(mf(r4('v', V_TM), r4('a', A_X2 + 32 + 4 * s8), r4('a', A_X2 + 4 * s8), '0' if s8 == 0 else r4('v', V_TM)))
    for o in epi_ops(3):
        k(o)
    k(f'v_lshlrev_b32 v2, 6, v{V_LANE}')
    k(f's_lshl_b32 s51, s{S_W}, 6')
    k(f'v_add_u32 v3, s51, v{V_KG}')
    k(f'ds_write_b128 v3, {r4("v", V_TM)}')
    k('s_waitcnt lgkmcnt(0)')
    k('s_barrier')
    k(f's_cmp_lg_u32 s{S_W}, 0')
    k(f's_cbranch_scc1 {k.L("fin")}')
    k(f'v_lshlrev_b32 v2, 2, v{V_MD}')
    for w in range(4):
        k(f'ds_read_b32 v{4 + w}, v2 offset:{w * 64}')
    k('v_add_f32 v4, v4, v5')
    k('v_add_f32 v6, v6, v7')
    k('v_add_f32 v4, v4, v6')
    k('v_cvt_pk_bf16_f32 v4, v4, v4')
    k('v_and_b32 v4, 0xffff0000, v4')
    k('s_lshr_b32 s29, s28, 6')
    k('s_cmp_eq_u32 s29, 2')
    k('s_cselect_b32 s29, 1.0, 0')
    k('v_add_f32 v4, s29, v4')
    k('v_cvt_pk_bf16_f32 v4, v4, v4')
    k('v_and_b32 v4, 0xffff0000, v4')
    k('s_lshl_b32 s29, s28, 6')
    k('s_add_u32 s29, s29, 8192')
    k(f'buffer_store_dword v4, v2, s[{S_H}:{S_H + 3}], s29 offen {"sc1" if chain_out else ""}')
    k.label('fin')
    k('s_waitcnt vmcnt(0)') if dbg else None
    T.stamp()
    T.dump(44, S_W, 0)
    if chain_out:
        k('s_lshl_b32 s3, s41, 5')
        k('s_add_u32 s3, s3, s40')
        k('s_lshl_b32 s3, s3, 2')
        k(f's_add_u32 s3, s3, {WS_FLG3}')
        k('s_lshl_b32 s79, s28, 2')
        k(f's_add_u32 s79, s79, {WS_FLG3 + 3072}')
        k(f's_branch {chain_out}')
    k.label('end')
    k('s_endpgm')

    for lab, st in tramps:
        k.label(lab)
        k(f's_call_b64 s[{S_RET}:{S_RET + 1}], {k.L("slow%d" % st)}')
        k(f's_branch {k.L(lab + "r")}')
    for st in range(2):
        sn = st ^ 1
        k.label(f'slow{st}')
        for kt in range(4):
            k(f's_add_u32 s52, s{S_TOFF}, {kt * 4096}')
            for s in range(4):
                k(f'buffer_load_dwordx4 {r4("a", A_X2 + (kt * 4 + s) * 4)}, v{V_KG}, s[{S_K}:{S_K + 3}], s52 offen offset:{s * 64}')
        k('s_waitcnt vmcnt(0)')
        for kt in range(4):
            for qt in range(4):
                for s in range(4):
                    d = r4('v', Sreg(st, kt, qt))
                    c = r4('v', V_CI + qt * 4) if s == 0 else d
                    k(mf(d, r4('a', A_X2 + (kt * 4 + s) * 4), r4('v', Qreg(qt, s)), c))
        rowmax(st, V_TM)
        k(f's_mov_b32 s53, {f32(BIAS)}')
        for qt in range(4):
            k(f'v_add_f32 v{V_TM + qt}, s53, v{V_TM + qt}')
            k(f'v_max_f32 v{V_TM + qt}, 0, v{V_TM + qt}')
            k(f'v_sub_f32 v{V_T0 + qt}, 0, v{V_TM + qt}')
            k(f'v_exp_f32 v{V_T0 + qt}, v{V_T0 + qt}')
            for r in range(4):
                k(f'v_sub_f32 v{V_CI + qt * 4 + r}, v{V_CI + qt * 4 + r}, v{V_TM + qt}')
            k(f'v_mul_f32 v{V_L + qt}, v{V_L + qt}, v{V_T0 + qt}')
        for ss in (st, sn):
            for kt in range(4):
                for qt in range(4):
                    for r in range(4):
                        x = Sreg(ss, kt, qt) + r
                        k(f'v_sub_f32 v{x}, v{x}, v{V_TM + qt}')
        for dt in range(8):
            for qt in range(4):
                for r in range(4):
                    a = Oreg(dt, qt) + r
                    k(f'v_accvgpr_read_b32 v6, a{a}')
                    k(f'v_mul_f32 v6, v6, v{V_T0 + qt}')
                    k(f'v_accvgpr_write_b32 a{a}, v6')
        for qt in range(4):
            k(f'v_mov_b32 v{V_LT + qt}, 0')
        for ks in range(2):
            ex, ad, cv = softmax_half_ops(st, ks, False)
            g0 = {}
            place_softmax(g0, ex, ad, cv)
            emit_phase(k, [None] * 64, g0)
        k(f's_setpc_b64 s[{S_RET}:{S_RET + 1}]')
    return k
```

```python
from common import *
import math


def r4(f, b):
    return f'{f}[{b}:{b + 3}]'


def mf(d, a, b, c):
    return f'v_mfma_f32_16x16x32_bf16 {d}, {a}, {b}, {c}'


def _cls(t):
    if t.startswith('s_'):
        return 0
    if t.startswith(('ds_', 'buffer_', 'global_')):
        return 1
    return 2


def lane_decomp(k):
    k('v_lshrrev_b32 v2, 6, v0')
    k('v_and_b32 v1, 63, v0')
    k('v_readfirstlane_b32 s30, v2')
    k('v_and_b32 v2, 15, v1')
    k('v_lshrrev_b32 v3, 4, v1')


def mainloop(k, NST, R, D, NT, MT, KS, WB, PD, acc, wfrag, afrag, wread, dma_ops, act_ops, adv_ops, T=None, need_lgkm=True, pf=None, fill=None, chain=None):
    assert NST % R == 0
    nv = lambda ops: sum(1 for o in ops if o.startswith('buffer_'))
    per_stage = dma_ops(0) + act_ops(0) + adv_ops
    ndma, nact = nv(dma_ops(0)), nv(act_ops(0))
    npf = lambda st: (nv(pf[2]) if (pf and st % pf[0] == 0) else 0)
    if pf:
        for _ in range(pf[1]):
            for o in pf[2]:
                k(o)
    fill = list(fill or [])
    if chain:
        nf = chain[2]
        for _ in range(min(nf, len(fill))):
            k(fill.pop(0))
        chain[0]()
        nper = -(-len(fill) // (D * ndma))
        for st in range(D):
            for o in dma_ops(st % R) + adv_ops:
                k(o)
                if o.startswith('buffer_'):
                    for _ in range(nper):
                        if fill:
                            k(fill.pop(0))
        for o in fill:
            k(o)
        chain[1]()
        for g in range(PD):
            for s in range(KS):
                for h in range(2):
                    k(wread(g, s, h, 0, g % WB))
        for st in range(D):
            for o in act_ops(st % R):
                k(o)
        yield 'after_issue'
    else:
        nper = -(-len(fill) // max(1, D * (ndma + nact) - 4))
        cnt = 0
        for st in range(D):
            for o in dma_ops(st % R) + act_ops(st % R) + adv_ops:
                k(o)
                if o.startswith('buffer_'):
                    cnt += 1
                    if cnt > 4:
                        for _ in range(nper):
                            if fill:
                                k(fill.pop(0))
        for o in fill:
            k(o)
        yield 'after_issue'
        k(f's_waitcnt vmcnt({min(63, nact + (D - 1) * (ndma + nact))})')
        k('s_barrier')
    if T: T.stamp()
    for g in range(0 if chain else PD):
        for s in range(KS):
            for h in range(2):
                k(wread(g, s, h, 0, g % WB))
    k('s_mov_b32 s34, 0')
    k('.p2align 6')
    k.label('loop')
    GL = MT * KS
    BG = NT - PD + (1 if need_lgkm else 0)
    assert (NT * R) % WB == 0
    for st in range(R):
        gaps = {}

        def put(g, op):
            gaps.setdefault(g, []).append(op)
        M = []
        pend = []
        busy = set()
        for nt in range(NT):
            G = st * NT + nt
            tgt = nt + PD
            rd = [wread(tgt % NT, s, h, (st + tgt // NT) % R, (G + PD) % WB) for s in range(KS) for h in range(2)]
            if tgt >= NT and nt < BG:
                pend += rd
                rd = []
            elif tgt >= NT:
                rd = pend + rd
                pend = []
            first = 1 if nt == BG else 0
            step = 1 if len(rd) * 2 > GL - first else 2
            for i, r in enumerate(rd):
                g = nt * GL + min(first + i * step, GL - 1)
                put(g, r)
                busy.add(g)
            for mt in range(MT):
                for s in range(KS):
                    d = acc(nt, mt)
                    M.append(mf(d, wfrag(G % WB, s), afrag(st, mt, s), d))
        assert not pend
        side = dma_ops((st + D) % R) + act_ops((st + D) % R) + adv_ops
        if pf and st % pf[0] == 0:
            side = pf[2] + side
        limit = NT * GL - 4
        free = [g for g in range(limit) if g not in busy and g not in (BG * GL - 1, BG * GL)]
        nvm = nv(side)
        if len(free) < 2 * nvm:
            free = [g for g in range(limit) if g not in (BG * GL - 1, BG * GL)]
        pos = [free[1 + (i * (len(free) - 1)) // nvm] for i in range(nvm)]
        vi = 0
        for i, o in enumerate(side):
            if o.startswith('buffer_'):
                put(pos[vi], o)
                vi += 1
            else:
                g = pos[vi] - 1 if vi < nvm else pos[-1] + 1
                if vi > 0:
                    g = max(g, pos[vi - 1] + (1 if vi >= nvm else 0))
                    if g == pos[vi - 1]:
                        put(g, ('late', o))
                        continue
                put(g, o)
        nbefore = sum(1 for p in pos if p < BG * GL - 1) - npf(st)
        assert D >= 2 and nbefore >= 0
        w = f's_waitcnt vmcnt({min(63, nact + (D - 2) * (ndma + nact) + nbefore)})' + (' lgkmcnt(0)' if need_lgkm else '')
        put(BG * GL - 1, w)
        put(BG * GL, 's_barrier')
        if st == R - 1:
            put(NT * GL - 3, 's_add_u32 s34, s34, 1')
            put(NT * GL - 2, f's_cmp_lt_u32 s34, {NST // R}')
        for i, m in enumerate(M):
            k(m)
            ops = gaps.get(i, [])
            early = sorted([o for o in ops if not isinstance(o, tuple)], key=_cls)
            for o in early:
                k(o)
            for o in ops:
                if isinstance(o, tuple):
                    k(o[1])
    k(f's_cbranch_scc1 {k.L("loop")}')
    if T: T.stamp()


def gen_gateup(dbg=False, cpf=True, stflag='sc1', D=2):
    k = Kernel('gateup_kernel', vgprs=256, agprs=256, sgprs=96, grid=224, block=256, lds=128 * 1024)
    T = Stamper(k, dbg)
    k('s_cmp_ge_u32 s2, 224')
    k(f's_cbranch_scc1 {k.L("end")}')
    T.start()
    k(f's_load_dwordx4 s[4:7], s[0:1], {B_WG}')
    k(f's_load_dwordx2 s[44:45], s[0:1], {D_WS}')
    if cpf:
        code_prefetch(k, 88, 60, 61, 0, 256, 32768)
    lane_decomp(k)
    k('s_and_b32 s40, s2, 7')
    k('s_lshr_b32 s41, s2, 3')
    k('s_and_b32 s42, s40, 1')
    k('s_lshl_b32 s42, s42, 2')
    k('s_and_b32 s43, s41, 3')
    k('s_add_u32 s42, s42, s43')
    k('s_lshr_b32 s43, s40, 1')
    k('s_mul_i32 s43, s43, 7')
    k('s_lshr_b32 s46, s41, 2')
    k('s_add_u32 s43, s43, s46')
    k('s_lshl_b32 s46, s43, 8')
    k('s_lshl_b32 s33, s30, 12')
    V_WD, V_HD, V_WA = 8, 12, 16
    k('s_mul_i32 s47, s30, %d' % (16 * 7168))
    k('s_movk_i32 s48, 7168')
    k('v_mul_lo_u32 v4, v3, s48')
    k('v_add_u32 v4, s47, v4')
    for j in range(4):
        k(f'v_add_u32 v5, {4 * (j >> 1)}, v3')
        k('v_lshlrev_b32 v5, 1, v5')
        k('v_xor_b32 v5, v5, v2')
        k('v_lshl_add_u32 v5, v5, 4, v4')
        k(f'v_add_u32 v{V_WD + j}, {4 * j * 7168 - 1024 * j}, v5')
    k(f'v_lshlrev_b32 v{V_HD}, 4, v1')
    k('s_waitcnt lgkmcnt(0)')
    srd(k, 8, 4, 's46', 1024 * 7168 - 27 * 256)
    srd(k, 12, 6, 's46', 1024 * 7168 - 27 * 256)
    srd(k, 16, 44, WS_H2, 2048 * 2048)
    srd(k, 20, 44, WS_ACT, 2048 * 7168)
    k('s_lshl_b32 s47, s42, 2')
    k('s_add_u32 s47, s47, s30')
    k('s_lshl_b32 s47, s47, 12')
    k('s_mov_b32 s31, 0')
    k('s_mov_b32 s32, s47')

    def dma_ops(slot):
        ops = []
        for mat in range(2):
            ops.append(f's_add_u32 m0, s33, {mat * 65536 + slot * 16384}')
            for j in range(4):
                ops.append(f'buffer_load_dwordx4 v{V_WD + j}, s[{8 + 4 * mat}:{11 + 4 * mat}], s31 offen offset:{j * 1024} lds')
        return ops

    def afrag(slot, mt, s):
        return r4('a', 128 + slot * 32 + (mt * 2 + s) * 4)

    def act_ops(slot):
        ops = []
        for s in range(2):
            for mt in range(4):
                ops.append(f'buffer_load_dwordx4 {afrag(slot, mt, s)}, v{V_HD}, s[16:19], s32 offen offset:{mt * 1024}')
            ops.append('s_add_u32 s32, s32, 131072')
        return ops
    adv = [f's_add_u32 s31, s31, {64 * 7168}']

    def acc(nt, mt):
        return r4('v', 128 + (nt * 4 + mt) * 4) if nt < 8 else r4('a', ((nt - 8) * 4 + mt) * 4)

    def wfrag(buf, s):
        return r4('v', 64 + buf * 8 + s * 4)

    def wread(nt, s, h, slot, buf):
        b = 64 + buf * 8 + s * 4 + h * 2
        return f'ds_read_b64_tr_b16 v[{b}:{b + 1}], v{V_WA + nt} offset:{slot * 16384 + s * 8192 + h * 1024}'

    fill = []
    f = fill.append
    f('v_lshrrev_b32 v4, 2, v2')
    f('v_and_b32 v5, 1, v3')
    f('v_lshl_or_b32 v5, v5, 2, v4')
    f('v_lshlrev_b32 v5, 1, v5')
    f('v_bfe_u32 v6, v2, 1, 1')
    f('v_xor_b32 v5, v5, v6')
    f('v_lshl_add_u32 v4, v3, 3, v4')
    f('v_lshlrev_b32 v4, 8, v4')
    f('v_and_b32 v6, 1, v2')
    f('v_lshl_add_u32 v4, v6, 3, v4')
    for nt in range(8):
        f(f'v_xor_b32 v6, {2 * nt}, v5')
        f(f'v_lshl_add_u32 v{V_WA + nt}, v6, 4, v4')
        f(f'v_add_u32 v{V_WA + 8 + nt}, 0x10000, v{V_WA + nt}')
    for i in range(0, 128, 2):
        f(f'v_mov_b64 v[{128 + i}:{129 + i}], 0')
    for i in range(128):
        f(f'v_accvgpr_write_b32 a{i}, 0')
    gen = mainloop(k, 16, 4, D, 16, 4, 2, 4, 3, acc, wfrag, afrag, wread, dma_ops, act_ops, adv, T, need_lgkm=(D == 3), fill=fill)
    for _ in gen:
        pass
    c0 = -2.0 * math.sqrt(2.0 / math.pi) * math.log2(math.e)
    c1 = c0 * 0.044715
    k(f'v_mov_b32 v8, {f32(c0)}')
    k(f'v_mov_b32 v9, {f32(c0)}')
    k(f'v_mov_b32 v10, {f32(c1)}')
    k(f'v_mov_b32 v11, {f32(c1)}')
    k('v_mov_b32 v14, 1.0')
    k('v_mov_b32 v15, 1.0')
    k('s_lshl_b32 s48, s43, 19')
    k('s_add_u32 s48, s48, s47')
    for j in range(4):
        k(f's_add_u32 s49, s48, {j * 131072}')
        for mt in range(4):
            tb = 32 + ((j * 4 + mt) & 1) * 24
            G = [128 + ((2 * j + h) * 4 + mt) * 4 + r for h in range(2) for r in range(4)]
            U = [((2 * j + h) * 4 + mt) * 4 + r for h in range(2) for r in range(4)]
            P = lambda b: f'v[{b}:{b + 1}]'
            for e in range(8):
                k(f'v_accvgpr_read_b32 v{tb + e}, a{U[e]}')
            for e in range(0, 8, 2):
                k(f'v_pk_mul_f32 {P(tb + 8 + e)}, {P(G[e])}, {P(G[e])}')
            for e in range(0, 8, 2):
                k(f'v_pk_fma_f32 {P(tb + 8 + e)}, {P(tb + 8 + e)}, v[10:11], v[8:9]')
            for e in range(0, 8, 2):
                k(f'v_pk_mul_f32 {P(tb + 8 + e)}, {P(tb + 8 + e)}, {P(G[e])}')
            for e in range(8):
                k(f'v_exp_f32 v{tb + 8 + e}, v{tb + 8 + e}')
            for e in range(0, 8, 2):
                k(f'v_pk_mul_f32 {P(tb + e)}, {P(tb + e)}, {P(G[e])}')
            for e in range(0, 8, 2):
                k(f'v_pk_add_f32 {P(tb + 8 + e)}, {P(tb + 8 + e)}, v[14:15]')
            for e in range(8):
                k(f'v_rcp_f32 v{tb + 8 + e}, v{tb + 8 + e}')
            for e in range(0, 8, 2):
                k(f'v_pk_mul_f32 {P(tb + e)}, {P(tb + e)}, {P(tb + 8 + e)}')
            for e in range(4):
                k(f'v_cvt_pk_bf16_f32 v{tb + 16 + e}, v{tb + 2 * e}, v{tb + 2 * e + 1}')
            k(f'buffer_store_dwordx4 {r4("v", tb + 16)}, v{V_HD}, s[20:23], s49 offen offset:{mt * 1024} {stflag}')
    if dbg:
        k('s_waitcnt vmcnt(0)')
    T.stamp()
    T.dump(44, 30, 2)
    k.label('end')
    k('s_endpgm')
    return k


def gen_gateup7(dbg=False, cpf=2, stflag='sc1', D=2, sflag2='', recpf=True, chain_in=False, chain_out=None, nf=0, wsleep=3):
    k = Kernel('gateup_kernel', vgprs=256, agprs=256, sgprs=96, grid=256, block=256, lds=128 * 1024)
    T = Stamper(k, dbg)
    if not chain_in:
        k('s_cmp_ge_u32 s2, 256')
        k(f's_cbranch_scc1 {k.L("end")}')
    SC = 'sc1' if chain_in else ''
    if chain_out:
        sflag2 = 'sc1'
    T.start()
    k(f's_load_dwordx4 s[4:7], s[0:1], {B_WG}')
    k(f's_load_dwordx2 s[44:45], s[0:1], {D_WS}')
    if cpf == 1:
        code_prefetch(k, 88, 60, 61, 0, 256, 32768)
    lane_decomp(k)
    if cpf == 2:
        code_prefetch_light(k, 88, 59, 60, 6, 61, 1, 30, 32)
    k('s_and_b32 s40, s2, 7')
    k('s_lshr_b32 s41, s2, 3')
    k('s_and_b32 s42, s40, 1')
    k('s_lshl_b32 s42, s42, 2')
    k('s_and_b32 s43, s41, 3')
    k('s_add_u32 s42, s42, s43')
    k('s_lshr_b32 s43, s40, 1')
    k('s_lshl_b32 s43, s43, 3')
    k('s_lshr_b32 s46, s41, 2')
    k('s_add_u32 s43, s43, s46')
    k('s_mul_i32 s46, s43, 224')
    k('s_and_b32 s39, s43, 1')
    k('s_lshl_b32 s33, s30, 12')
    V_WD, V_HD, V_WA = 8, 12, 16
    k('s_mul_i32 s47, s30, %d' % (16 * 7168))
    k('s_movk_i32 s48, 7168')
    k('v_mul_lo_u32 v4, v3, s48')
    k('v_mov_b32 v7, 0x40000000')
    k('v_add_u32 v4, s47, v4')
    for j in range(4):
        k(f'v_add_u32 v5, {4 * (j >> 1)}, v3')
        k('v_lshlrev_b32 v5, 1, v5')
        k('v_xor_b32 v5, v5, v2')
        k('v_cmp_gt_u32 vcc, 14, v5')
        k('v_lshl_add_u32 v5, v5, 4, v4')
        k(f'v_add_u32 v5, {4 * j * 7168 - 1024 * j}, v5')
        k(f'v_cndmask_b32 v{V_WD + j}, v7, v5, vcc')
    k(f'v_lshlrev_b32 v{V_HD}, 4, v1')
    k('s_waitcnt lgkmcnt(0)')
    srd(k, 8, 4, 's46', 1023 * 7168 + 224)
    srd(k, 12, 6, 's46', 1023 * 7168 + 224)
    srd(k, 16, 44, WS_H2, 2048 * 2048)
    srd(k, 20, 44, WS_ACT, 2048 * 7168)
    k('s_lshl_b32 s47, s42, 2')
    k('s_add_u32 s47, s47, s30')
    k('s_lshl_b32 s47, s47, 12')
    k('s_mov_b32 s31, 0')
    k('s_mov_b32 s32, s47')

    def dma_ops(slot):
        ops = []
        for mat in range(2):
            ops.append(f's_add_u32 m0, s33, {mat * 65536 + slot * 16384}')
            for j in range(4):
                ops.append(f'buffer_load_dwordx4 v{V_WD + j}, s[{8 + 4 * mat}:{11 + 4 * mat}], s31 offen offset:{j * 1024} lds')
        return ops

    def afrag(slot, mt, s):
        return r4('a', 128 + slot * 32 + (mt * 2 + s) * 4)

    def act_ops(slot):
        ops = []
        for s in range(2):
            for mt in range(4):
                ops.append(f'buffer_load_dwordx4 {afrag(slot, mt, s)}, v{V_HD}, s[16:19], s32 offen offset:{mt * 1024} {SC}')
            ops.append('s_add_u32 s32, s32, 131072')
        return ops
    adv = [f's_add_u32 s31, s31, {64 * 7168}']

    def acc(nt, mt):
        return r4('v', 128 + (nt * 4 + mt) * 4) if nt < 7 else r4('a', ((nt - 7) * 4 + mt) * 4)

    def wfrag(buf, s):
        return r4('v', 64 + buf * 8 + s * 4)

    def wread(nt, s, h, slot, buf):
        b = 64 + buf * 8 + s * 4 + h * 2
        return f'ds_read_b64_tr_b16 v[{b}:{b + 1}], v{V_WA + nt} offset:{slot * 16384 + s * 8192 + h * 1024}'

    fill = []
    f = fill.append
    f('v_lshrrev_b32 v4, 2, v2')
    f('v_and_b32 v5, 1, v3')
    f('v_lshl_or_b32 v5, v5, 2, v4')
    f('v_lshlrev_b32 v5, 1, v5')
    f('v_bfe_u32 v6, v2, 1, 1')
    f('v_xor_b32 v5, v5, v6')
    f('v_lshl_add_u32 v4, v3, 3, v4')
    f('v_lshlrev_b32 v4, 8, v4')
    f('v_and_b32 v6, 1, v2')
    f('v_lshl_add_u32 v4, v6, 3, v4')
    for nt in range(7):
        f(f's_mul_i32 s50, s39, {2 if nt < 6 else -12}')
        f(f's_add_u32 s50, s50, {2 * nt}')
        f('v_xor_b32 v6, s50, v5')
        f(f'v_lshl_add_u32 v{V_WA + nt}, v6, 4, v4')
        f(f'v_add_u32 v{V_WA + 7 + nt}, 0x10000, v{V_WA + nt}')
    for i in range(0, 112, 2):
        f(f'v_mov_b64 v[{128 + i}:{129 + i}], 0')
    for i in range(112):
        f(f'v_accvgpr_write_b32 a{i}, 0')
    pf = None
    if recpf and cpf:
        for o in ['s_lshl_b32 s59, s41, 2', 's_add_u32 s59, s59, s30', 's_and_b32 s59, s59, 31', 's_lshl_b32 s59, s59, 9',
                  'v_lshlrev_b32 v60, 7, v1', 'v_cmp_gt_u32 vcc, 4, v1', 'v_cndmask_b32 v60, v7, v60, vcc']:
            f(o)
        pf = (4, 0, ['buffer_load_dword v61, v60, s[88:91], s59 offen'])
    chain = None
    if chain_in:
        srd(k, 24, 44, 0, 64 << 20)

        def c1():
            k('s_lshl_b32 s52, s42, 7')
            k(f's_add_u32 s52, s52, {WS_FLG3 + 1024}')
            k('v_and_b32 v41, 31, v1')
            k('v_lshlrev_b32 v41, 2, v41')
            phase_wait(k, 24, 30, 41, 40, 52, 53, sleep=wsleep)
            if dbg: T.stamp()
        chain = (lambda: phase_publish(k, 24, 30, 36, 37), c1, nf)
    gen = mainloop(k, 16, 4, D, 14, 4, 2, 4, 3, acc, wfrag, afrag, wread, dma_ops, act_ops, adv, T, need_lgkm=(D == 3), fill=fill, pf=pf, chain=chain)
    for _ in gen:
        pass
    k('s_waitcnt vmcnt(0)')
    c0 = -2.0 * math.sqrt(2.0 / math.pi) * math.log2(math.e)
    c1 = c0 * 0.044715
    k(f'v_mov_b32 v8, {f32(c0)}')
    k(f'v_mov_b32 v9, {f32(c0)}')
    k(f'v_mov_b32 v10, {f32(c1)}')
    k(f'v_mov_b32 v11, {f32(c1)}')
    k('v_mov_b32 v14, 1.0')
    k('v_mov_b32 v15, 1.0')
    k('s_mul_i32 s48, s43, 7')
    k('s_cmp_eq_u32 s39, 0')
    k('s_cselect_b32 s51, 6, 0')
    k('s_add_u32 s51, s51, s48')
    k('s_lshr_b32 s51, s51, 1')
    k('s_lshl_b32 s51, s51, 17')
    k('s_add_u32 s51, s51, s47')
    k('s_lshl_b32 s52, s39, 3')
    k('s_add_u32 s51, s51, s52')
    k('s_add_u32 s48, s48, s39')
    k('s_lshr_b32 s48, s48, 1')
    k('s_lshl_b32 s48, s48, 17')
    k('s_add_u32 s48, s48, s47')
    P = lambda b: f'v[{b}:{b + 1}]'
    cnt = 0
    for j in (3, 0, 1, 2):
        nh = 2 if j < 3 else 1
        if j < 3:
            k(f's_add_u32 s49, s48, {j * 131072}')
        for mt in range(4) if j < 3 else range(0, 4, 2):
            tb = 32 + (cnt & 1) * 24
            cnt += 1
            if j < 3:
                G = [128 + ((2 * j + h) * 4 + mt) * 4 + r for h in range(2) for r in range(4)]
                U = [((2 * j + h) * 4 + mt) * 4 + r for h in range(2) for r in range(4)]
            else:
                G = [128 + (6 * 4 + mt + h) * 4 + r for h in range(2) for r in range(4)]
                U = [(6 * 4 + mt + h) * 4 + r for h in range(2) for r in range(4)]
            for e in range(8):
                k(f'v_accvgpr_read_b32 v{tb + e}, a{U[e]}')
            for e in range(0, 8, 2):
                k(f'v_pk_mul_f32 {P(tb + 8 + e)}, {P(G[e])}, {P(G[e])}')
            for e in range(0, 8, 2):
                k(f'v_pk_fma_f32 {P(tb + 8 + e)}, {P(tb + 8 + e)}, v[10:11], v[8:9]')
            for e in range(0, 8, 2):
                k(f'v_pk_mul_f32 {P(tb + 8 + e)}, {P(tb + 8 + e)}, {P(G[e])}')
            for e in range(8):
                k(f'v_exp_f32 v{tb + 8 + e}, v{tb + 8 + e}')
            for e in range(0, 8, 2):
                k(f'v_pk_mul_f32 {P(tb + e)}, {P(tb + e)}, {P(G[e])}')
            for e in range(0, 8, 2):
                k(f'v_pk_add_f32 {P(tb + 8 + e)}, {P(tb + 8 + e)}, v[14:15]')
            for e in range(8):
                k(f'v_rcp_f32 v{tb + 8 + e}, v{tb + 8 + e}')
            for e in range(0, 8, 2):
                k(f'v_pk_mul_f32 {P(tb + e)}, {P(tb + e)}, {P(tb + 8 + e)}')
            for e in range(4):
                k(f'v_cvt_pk_bf16_f32 v{tb + 16 + e}, v{tb + 2 * e}, v{tb + 2 * e + 1}')
            if j < 3:
                k(f'buffer_store_dwordx4 {r4("v", tb + 16)}, v{V_HD}, s[20:23], s49 offen offset:{mt * 1024} {stflag}')
            else:
                for h in range(2):
                    k(f'buffer_store_dwordx2 {P(tb + 16 + 2 * h)}, v{V_HD}, s[20:23], s51 offen offset:{(mt + h) * 1024} {sflag2}')
    if dbg:
        k('s_waitcnt vmcnt(0)')
    T.stamp()
    T.dump(44, 30, 2)
    if chain_out:
        k('s_lshl_b32 s3, s42, 5')
        k('s_add_u32 s3, s3, s43')
        k('s_lshl_b32 s3, s3, 2')
        k(f's_add_u32 s3, s3, {WS_FLG3 + 2048}')
        k(f's_branch {chain_out}')
    k.label('end')
    k('s_endpgm')
    return k


def gen_small(name, K, w_arg, act_off, res_arg, res_off, out_arg, out_off, gate_seg, R, D, slot_dbg, dbg=False, pfd=0, same=False):
    NST = K // 128
    EPI = R * 16384
    k = Kernel(name, vgprs=160, agprs=256, sgprs=96, grid=256, block=256, lds=R * 16384 + 4 * 8704 if R * 16384 + 4 * 8704 <= 163840 else R * 16384)
    alias_epi = R * 16384 + 4 * 8704 > 163840
    if alias_epi:
        EPI = 0
    T = Stamper(k, dbg)
    k('s_cmp_ge_u32 s2, 256')
    k(f's_cbranch_scc1 {k.L("end")}')
    T.start()
    k(f's_load_dwordx2 s[4:5], s[0:1], {w_arg}')
    k(f's_load_dwordx2 s[6:7], s[0:1], {res_arg}')
    k(f's_load_dwordx2 s[28:29], s[0:1], {out_arg}')
    k(f's_load_dwordx2 s[44:45], s[0:1], {D_WS}')
    lane_decomp(k)
    k('s_and_b32 s40, s2, 7')
    k('s_lshr_b32 s41, s2, 3')
    k('s_lshr_b32 s42, s40, 1')
    k('s_lshl_b32 s42, s42, 2')
    k('s_and_b32 s43, s41, 3')
    k('s_add_u32 s42, s42, s43')
    k('s_and_b32 s43, s40, 1')
    k('s_lshl_b32 s43, s43, 3')
    k('s_lshr_b32 s46, s41, 2')
    k('s_add_u32 s43, s43, s46')
    if same:
        k('s_mov_b32 s42, 0')
        k('s_mov_b32 s43, 0')
    k('s_lshl_b32 s46, s43, 7')
    k('s_lshl_b32 s33, s30, 12')
    V_WD, V_HD, V_WA = 8, 12, 16
    k('v_lshrrev_b32 v4, 3, v1')
    k('v_lshlrev_b32 v4, 11, v4')
    k('s_lshl_b32 s47, s30, 16')
    k('v_add_u32 v4, s47, v4')
    k('v_and_b32 v5, 7, v1')
    k('v_lshlrev_b32 v6, 1, v3')
    k('v_xor_b32 v5, v5, v6')
    k('v_lshl_add_u32 v4, v5, 4, v4')
    for j in range(4):
        k(f'v_add_u32 v{V_WD + j}, {j * (16384 - 1024)}, v4')
    k(f'v_lshlrev_b32 v{V_HD}, 4, v1')
    k('s_waitcnt lgkmcnt(0)')
    if dbg == 2: T.stamp()
    srd(k, 8, 4, 's46', K * 2048 - 15 * 128)
    srd(k, 16, 44, act_off, 2048 * K * 2)
    srd(k, 12, 6, res_off, 2048 * 2048)
    srd(k, 20, 28, out_off, 2048 * 2048)
    srd(k, 24, 44, WS_MOD, 6144 * 4)
    k('s_lshl_b32 s47, s42, 2')
    k('s_add_u32 s47, s47, s30')
    k('s_lshl_b32 s32, s47, 11')
    k('s_mov_b32 s31, 0')

    def dma_ops(slot):
        ops = [f's_add_u32 m0, s33, {slot * 16384}']
        for j in range(4):
            ops.append(f'buffer_load_dwordx4 v{V_WD + j}, s[8:11], s31 offen offset:{j * 1024} lds')
        return ops

    def afrag(slot, mt, s):
        return r4('a', slot * 32 + (mt * 4 + s) * 4)

    def act_ops(slot):
        ops = []
        for s in range(4):
            for mt in range(2):
                ops.append(f'buffer_load_dwordx4 {afrag(slot, mt, s)}, v{V_HD}, s[16:19], s32 offen offset:{mt * 1024}')
            ops.append('s_add_u32 s32, s32, 131072')
        return ops
    adv = [f's_add_u32 s31, s31, {128 * 2048}']

    def acc(nt, mt):
        return r4('v', 128 + (nt * 2 + mt) * 4)

    def wfrag(buf, s):
        return r4('v', 64 + buf * 16 + s * 4)

    def wread(nt, s, h, slot, buf):
        b = 64 + buf * 16 + s * 4 + h * 2
        return f'ds_read_b64_tr_b16 v[{b}:{b + 1}], v{V_WA + nt + 4 * (slot // 4)} offset:{(slot % 4) * 16384 + s * 4096 + h * 2048}'

    pf = None
    if pfd:
        k('s_cmp_lt_u32 s41, 16')
        k('s_cselect_b32 s52, s16, s4')
        k('s_cselect_b32 s53, s17, s5')
        k(f's_mov_b32 s54, {K * 2048}')
        k(f's_cselect_b32 s54, {2048 * K * 2}, s54')
        k('s_mov_b32 s55, 0x00020000')
        k(f's_mov_b32 s57, {128 * 2048}')
        k(f's_cselect_b32 s57, {4 * 131072}, s57')
        k('s_lshr_b32 s58, s41, 2')
        k('s_lshl_b32 s58, s58, 17')
        k('s_lshr_b32 s59, s40, 1')
        k('s_lshl_b32 s59, s59, 15')
        k('s_add_u32 s58, s58, s59')
        k('s_and_b32 s59, s41, 3')
        k('s_lshl_b32 s59, s59, 13')
        k('s_add_u32 s58, s58, s59')
        k('s_and_b32 s59, s41, 15')
        k('s_lshl_b32 s59, s59, 14')
        k('s_and_b32 s60, s40, 1')
        k('s_lshl_b32 s60, s60, 10')
        k('s_add_u32 s59, s59, s60')
        k('s_cmp_lt_u32 s41, 16')
        k('s_cselect_b32 s56, s58, s59')
        k('s_mul_i32 s58, s57, s30')
        k('s_add_u32 s56, s56, s58')
        k('s_lshl_b32 s57, s57, 2')
        k('v_lshlrev_b32 v28, 7, v1')
        k('v_lshrrev_b32 v4, 3, v1')
        k('v_lshlrev_b32 v4, 11, v4')
        k('v_and_b32 v5, 7, v1')
        k('v_lshl_add_u32 v4, v5, 7, v4')
        k('s_cmp_lt_u32 s41, 16')
        k('s_cselect_b64 vcc, -1, 0')
        k('v_cndmask_b32 v28, v4, v28, vcc')
        one = ['buffer_load_dword v29, v28, s[52:55], s56 offen', 's_add_u32 s56, s56, s57']
        if R % 4 == 0:
            pf = (4, pfd // 4, one)
        else:
            pf = (R, (pfd + 7) // 8, one + one)
    gen = mainloop(k, NST, R, D, 4, 2, 4, 4, 2, acc, wfrag, afrag, wread, dma_ops, act_ops, adv, T, need_lgkm=(R < D + 2), pf=pf)
    next(gen)
    if dbg == 2: T.stamp()
    k('v_lshrrev_b32 v4, 2, v2')
    k('v_lshl_add_u32 v4, v3, 2, v4')
    k('v_and_b32 v5, 6, v4')
    k('v_bfe_u32 v6, v2, 1, 1')
    k('v_xor_b32 v5, v5, v6')
    k('v_lshlrev_b32 v4, 7, v4')
    k('v_and_b32 v6, 1, v2')
    k('v_lshl_add_u32 v4, v6, 3, v4')
    for nt in range(4):
        k(f'v_xor_b32 v6, {2 * nt}, v5')
        k(f'v_lshl_add_u32 v{V_WA + nt}, v6, 4, v4')
        k(f'v_add_u32 v{V_WA + 4 + nt}, 0x10000, v{V_WA + nt}')
    for i in range(32):
        k(f'v_mov_b32 v{128 + i}, 0')
    k(f's_mul_i32 s48, s30, 8704')
    k(f's_add_u32 s48, s48, {EPI}')
    k('s_movk_i32 s49, 272')
    k('v_mul_lo_u32 v24, v2, s49')
    k('v_lshl_add_u32 v24, v3, 4, v24')
    k('v_add_u32 v24, s48, v24')
    k('v_lshrrev_b32 v4, 3, v1')
    k('v_and_b32 v5, 7, v1')
    k('v_mul_lo_u32 v25, v4, s49')
    k('v_lshl_add_u32 v25, v5, 5, v25')
    k('v_add_u32 v25, s48, v25')
    k('v_lshlrev_b32 v26, 11, v4')
    k('v_lshl_add_u32 v26, v5, 4, v26')
    k('v_lshlrev_b32 v27, 5, v5')
    k('s_lshl_b32 s50, s47, 16')
    k('s_add_u32 s50, s50, s46')
    k('s_lshl_b32 s51, s43, 8')
    k(f's_add_u32 s51, s51, {gate_seg * 4096}')
    if dbg == 2: T.stamp()
    for _ in gen:
        pass
    for j in range(4):
        k(f's_add_u32 s52, s50, {j * 16384}')
        k(f'buffer_load_dwordx4 {r4("v", 32 + 4 * j)}, v26, s[12:15], s52 offen')
    k('buffer_load_dwordx4 v[48:51], v27, s[24:27], s51 offen')
    k('buffer_load_dwordx4 v[52:55], v27, s[24:27], s51 offen offset:16')
    if alias_epi:
        k('s_waitcnt vmcnt(6) lgkmcnt(0)')
        k('s_barrier')
    for nt in range(4):
        for mt in range(2):
            k(f'ds_write_b128 v24, {acc(nt, mt)} offset:{mt * 16 * 272 + nt * 64}')
    k('s_waitcnt lgkmcnt(0)')
    for j in range(4):
        k(f'ds_read_b128 {r4("v", 64 + 8 * j)}, v25 offset:{j * 8 * 272}')
        k(f'ds_read_b128 {r4("v", 68 + 8 * j)}, v25 offset:{j * 8 * 272 + 16}')
    for j in range(4):
        for d in range(4):
            x = 32 + 4 * j + d
            a = 64 + 8 * j + 2 * d
            k(f'v_lshlrev_b32 v4, 16, v{x}')
            k(f'v_and_b32 v5, 0xffff0000, v{x}')
            k(f'v_fma_f32 v4, v{a}, v{48 + 2 * d}, v4')
            k(f'v_fma_f32 v5, v{a + 1}, v{49 + 2 * d}, v5')
            k(f'v_cvt_pk_bf16_f32 v{x}, v4, v5')
        k(f's_add_u32 s52, s50, {j * 16384}')
        k(f'buffer_store_dwordx4 {r4("v", 32 + 4 * j)}, v26, s[20:23], s52 offen')
    if dbg:
        k('s_waitcnt vmcnt(0)')
    T.stamp()
    T.dump(44, 30, slot_dbg)
    k.label('end')
    k('s_endpgm')
    return k
```

```python
from common import *
from k_gemm import r4, mf, _cls, lane_decomp
import math

WS_XCH = 48 << 20
WS_FLG = 60 << 20
WS_STAT = 61 << 20


class Unrolled:
    def __init__(self, k, groups, R, MT, KS, WB, PD, acc, wfrag, afrag, wread, dma_ops, act_ops, first_zero=True):
        self.__dict__.update(locals())
        self.GL = MT * KS
        self.vm = []
        self.gaps = {}

    def put(self, g, op):
        self.gaps.setdefault(g, []).append(op)

    def vwait(self, tag):
        last = max(i for i, t in enumerate(self.vm) if t == tag)
        return min(63, len(self.vm) - 1 - last)

    def emit_ops(self, ops, tag):
        for o in ops:
            self.k(o)
            if o.startswith('buffer_'):
                self.vm.append(tag)

    def plan(self, pro_stages=1, spacing=4, fast=2, NL=0):
        groups, PD, GL, R = self.groups, self.PD, self.GL, self.R
        NG = len(groups)
        stages = sorted({s for s, _ in groups})
        first = {s: min(i for i, (a, _) in enumerate(groups) if a == s) for s in stages}
        last = {s: max(i for i, (a, _) in enumerate(groups) if a == s) for s in stages}
        self.bar = {s: max(first[s] - PD, 0) for s in stages}
        bar_groups = sorted(self.bar[s] for s in stages if s > 0)
        busy = set()
        for i in range(NG):
            t = i + PD
            if t >= NG:
                continue
            s, nt = groups[t]
            rd = [self.wread(nt, q, h, s % R, t % self.WB) for q in range(self.KS) for h in range(2)]
            f = 1 if i in bar_groups else 0
            step = 1 if len(rd) * 2 > GL - f else 2
            for j, r in enumerate(rd):
                g = i * GL + min(f + j * step, GL - 1)
                self.put(g, r)
                busy.add(g)
        self.busy = busy
        q = []
        for s in stages:
            if s < R:
                e_w = e_a = -1
            else:
                e_w = min(b for b in bar_groups if b >= last[s - R] + 1) * GL + 1
                e_a = (last[s - R] + 1) * GL
            two = [(s, 'W', e_w, self.dma_ops(s)), (s, 'A', e_a, self.act_ops(s))]
            q += two if (s < R or NL) else two[::-1]
        self.pro = [x for x in q if x[0] < pro_stages]
        pos = 0
        for s, kind, e, ops in q:
            if s < pro_stages:
                continue
            pend = []
            for o in ops:
                if not o.startswith('buffer_'):
                    pend.append(o)
                    continue
                ahead = (first[s] * GL - pos) / (GL * (last[0] + 1))
                sp = fast if (ahead < 1.3 or s < R) else spacing
                if NL and s - 2 < NL:
                    SL = GL * (last[0] + 1)
                    base = (s - 2) * SL
                    cnt = self.__dict__.setdefault('_cnt', {})
                    cnt[s] = cnt.get(s, -1) + 1
                    pos = base + [1, 5, 9, 13, 17, 21, 25, 29, 33, 37, 41, 45, 50, 54, 58, 62][cnt[s]]
                    assert pos >= e
                else:
                    pos = max(pos + sp, e, 1)
                while (pos % GL == GL - 1 and (pos // GL + 1) in bar_groups) or (pos % GL == 0 and pos // GL in bar_groups):
                    pos += 1
                self.put(pos, ('V', pend, o, (kind, s)))
                pend = []
            assert not pend
            if kind == 'W':
                assert pos < self.bar[s] * GL - 1, (s, pos, self.bar[s] * GL)
            else:
                assert pos < first[s] * GL - 1, (s, pos)
            self.slack = getattr(self, 'slack', []) + [(kind, s, (self.bar[s] if kind == 'W' else first[s]) * GL - pos)]

    def prologue_issue(self, kinds='WA'):
        for s, kind, e, ops in self.pro:
            if kind in kinds:
                self.emit_ops(ops, (kind, s))

    def start(self, sync=True):
        k = self.k
        if sync:
            k(f's_waitcnt vmcnt({self.vwait(("W", 0))})')
            k('s_barrier')
        for t in range(self.PD):
            s, nt = self.groups[t]
            for q in range(self.KS):
                for h in range(2):
                    k(self.wread(nt, q, h, s % self.R, t % self.WB))

    def emit(self, g0, g1):
        k, GL = self.k, self.GL
        barat = {v: s for s, v in self.bar.items() if s > 0}
        for i in range(g0, g1):
            s, nt = self.groups[i]
            j = 0
            for mt in range(self.MT):
                for q in range(self.KS):
                    d = self.acc(nt, mt)
                    c = '0' if (self.first_zero and s == 0 and q == 0) else d
                    k(mf(d, self.wfrag(i % self.WB, q), self.afrag(s % self.R, mt, q), c))
                    g = i * GL + j
                    ops = self.gaps.get(g, [])
                    if j == GL - 1 and (i + 1) in barat:
                        k(f's_waitcnt vmcnt({self.vwait(("W", barat[i + 1]))})')
                    if j == 0 and i in barat:
                        k('s_barrier')
                    cur = [o for o in ops if isinstance(o, tuple) and o[0] == 'V']
                    nxt = [o for o in self.gaps.get(g + 1, []) if isinstance(o, tuple) and o[0] == 'V']
                    plain = sorted([o for o in ops if not isinstance(o, tuple)], key=_cls)
                    for o in plain:
                        if _cls(o) == 0:
                            k(o)
                    if not cur:
                        for o in nxt:
                            for sc in o[1]:
                                k(sc)
                    for o in plain:
                        if _cls(o) == 1:
                            k(o)
                    for o in cur:
                        self.emit_ops([o[2]], o[3])
                    if cur:
                        for o in nxt:
                            for sc in o[1]:
                                k(sc)
                    for o in plain:
                        if _cls(o) == 2:
                            k(o)
                    for o in ops:
                        if isinstance(o, tuple) and o[0] == 'raw':
                            self.emit_ops([o[1]], ('X', 0))
                    j += 1


def gen_small2(name, K, w_arg, act_off, res_arg, res_off, out_arg, out_off, gate_seg, slot_dbg, flag_idx, dbg=False,
               TS=3, spacing=4, fast=3, pro=2, stflag='sc1', cpf=2, lateflag=True, ln=False, psleep=8, hflag='', nbx=0, map8=True, split=False, recpf=True, roll=True, wflag='', rowpf=4, xl=1, xbf=True, hx=True, chain_in=False, chain_out=None, early=False, narrow=True, wsleep=3):
    if roll and K == 3584: TS = min(TS, 2)
    KH = K // 2
    NST = KH // 128
    R = 4
    k = Kernel(name, vgprs=256, agprs=128, sgprs=96, grid=256, block=256, lds=R * 32768)
    T = Stamper(k, dbg)
    if not chain_in:
        k('s_cmp_ge_u32 s2, 256')
        k(f's_cbranch_scc1 {k.L("end")}')
    SC = 'sc1' if chain_in else ''
    T.start()
    k(f's_load_dwordx2 s[4:5], s[0:1], {w_arg}')
    k(f's_load_dwordx2 s[44:45], s[0:1], {D_WS}')
    k(f's_load_dwordx2 s[6:7], s[0:1], {res_arg}')
    k(f's_load_dwordx2 s[28:29], s[0:1], {out_arg}')
    if cpf == 1:
        code_prefetch(k, 92, 39, 38, 0, 256, 32768)
    lane_decomp(k)
    if cpf == 2:
        code_prefetch_light(k, 92, 59, 39, 6, 38, 1, 30, 32)
    k('s_and_b32 s39, s2, 1')
    if map8:
        k('s_bfe_u32 s42, s2, 0x10002')
        k('s_lshl_b32 s42, s42, 3')
        k('s_bfe_u32 s43, s2, 0x30003')
        k('s_add_u32 s42, s42, s43')
        k('s_bfe_u32 s43, s2, 0x10001')
        k('s_lshl_b32 s43, s43, 2')
        k('s_lshr_b32 s46, s2, 6')
        k('s_add_u32 s43, s43, s46')
    else:
        k('s_bfe_u32 s42, s2, 0x20001')
        k('s_lshl_b32 s42, s42, 2')
        k('s_bfe_u32 s43, s2, 0x20003')
        k('s_add_u32 s42, s42, s43')
        k('s_lshr_b32 s43, s2, 5')
    if nbx: k(f's_xor_b32 s43, s43, {nbx}')
    PS = 2 if split else 1
    if split:
        k('s_lshr_b32 s46, s43, 1')
        k('s_lshl_b32 s46, s46, 2')
        k('s_and_b32 s43, s43, 1')
        k('s_add_u32 s43, s43, s46')
    else:
        k('s_lshl_b32 s43, s43, 1')
    k('s_lshl_b32 s46, s43, 7')
    k(f's_mul_i32 s40, s39, {PS}')
    k('s_add_u32 s43, s43, s40')
    k(f's_mul_i32 s40, s39, {KH * 2048}')
    k('s_add_u32 s40, s40, s46')
    k('s_lshl_b32 s33, s30, 13')
    V_WD, V_HD, V_WA = 8, 12, 16
    k('s_lshl_b32 s47, s30, 16')
    k('v_lshlrev_b32 v4, 11, v3')
    k('v_add_u32 v4, s47, v4')
    for j in range(4):
        k(f'v_add_u32 v5, {4 * (j & 1)}, v3')
        k('v_lshlrev_b32 v5, 1, v5')
        k('v_xor_b32 v5, v5, v2')
        if split:
            k('v_and_b32 v6, 8, v5')
            k('v_add_u32 v5, v5, v6')
        k('v_lshl_add_u32 v5, v5, 4, v4')
        k(f'v_add_u32 v{V_WD + j}, {j * (8192 - 1024)}, v5')
    k(f'v_lshlrev_b32 v{V_HD}, 4, v1')
    k('s_lshl_b32 s47, s42, 2')
    k('s_add_u32 s47, s47, s30')
    k('s_lshl_b32 s32, s47, 11')
    k(f's_mul_i32 s41, s39, {(KH // 32) * 131072}')
    k('s_add_u32 s32, s32, s41')
    k('s_sub_u32 s35, s32, 131072')
    k(f's_mov_b32 s31, {(-112 * 2048) & 0xffffffff}')
    k('s_waitcnt lgkmcnt(0)')
    srd(k, 8, 4, 's40', (KH - 1) * 2048 + (384 if split else 256))
    srd(k, 16, 44, act_off, 2048 * K * 2)

    def dma_ops(s):
        ops = []
        for half in range(2):
            ops.append(f's_add_u32 m0, s33, {(s % R) * 32768 + half * 4096}')
            ops.append(f's_add_u32 s31, s31, {(16 if half else 112) * 2048}')
            for j in range(4):
                ops.append(f'buffer_load_dwordx4 v{V_WD + j}, s[8:11], s31 offen offset:{j * 1024} {wflag} lds')
        return ops

    def afrag(slot, mt, q):
        return r4('a', slot * 32 + (mt * 4 + q) * 4)

    def act_ops(s):
        ops = []
        for q in range(4):
            ops.append('s_add_u32 s35, s35, 131072')
            for mt in range(2):
                ops.append(f'buffer_load_dwordx4 {afrag(s % R, mt, q)}, v{V_HD}, s[16:19], s35 offen offset:{mt * 1024} {SC}')
        return ops

    def acc(nt, mt):
        return r4('v', 128 + (nt * 2 + mt) * 4)

    def wfrag(buf, q):
        return r4('v', 64 + buf * 16 + q * 4)

    def wread(nt, q, h, slot, buf):
        b = 64 + buf * 16 + q * 4 + h * 2
        return f'ds_read_b64_tr_b16 v[{b}:{b + 1}], v{V_WA + nt + 8 * (slot // 2)} offset:{(slot % 2) * 32768 + q * 8192 + h * 4096}'

    groups = [(s, nt) for s in range(NST - TS) for nt in (4, 5, 6, 7, 0, 1, 2, 3)]
    groups += [(s, nt) for s in range(NST - TS, NST) for nt in range(4, 8)]
    gsend = len(groups)
    groups += [(s, nt) for s in range(NST - TS, NST) for nt in range(4)]
    NL = 12 if roll else 0
    assert NST - TS >= NL
    U = Unrolled(k, groups, R, 2, 4, 4, 2, acc, wfrag, afrag, wread, dma_ops, act_ops, first_zero=not roll)
    U.plan(pro_stages=pro, spacing=spacing, fast=fast, NL=NL)
    if dbg: print(name, 'slack', U.slack)
    srd(k, 24, 44, 0, 64 << 20)
    if chain_in and early:
        k('s_barrier')
        U.prologue_issue('W')
    elif chain_in:
        phase_publish(k, 24, 30, 36, 37, second=79 if (ln and narrow) else None)
        U.prologue_issue('W')
    else:
        U.prologue_issue()
    srd(k, 12, 6, res_off, 2048 * 2048)
    srd(k, 20, 28, out_off, 2048 * 2048)
    k('v_lshrrev_b32 v4, 2, v2')
    k('v_lshl_add_u32 v4, v3, 2, v4')
    k('v_and_b32 v5, 7, v4')
    k('v_lshlrev_b32 v5, 1, v5')
    k('v_bfe_u32 v6, v2, 1, 1')
    k('v_xor_b32 v5, v5, v6')
    k('s_lshl_b32 s48, s39, 3')
    k('v_xor_b32 v5, s48, v5')
    k('v_lshlrev_b32 v4, 8, v4')
    k('v_and_b32 v6, 1, v2')
    k('v_lshl_add_u32 v4, v6, 3, v4')
    for nt in range(8):
        k(f'v_xor_b32 v6, {2 * nt}, v5')
        k(f'v_lshl_add_u32 v{V_WA + nt}, v6, 4, v4')
        k(f'v_add_u32 v{V_WA + 8 + nt}, 0x10000, v{V_WA + nt}')
    k('s_mul_i32 s48, s30, 8704')
    k('s_movk_i32 s49, 272')
    k('v_mul_lo_u32 v32, v2, s49')
    k('v_lshl_add_u32 v32, v3, 4, v32')
    k('v_add_u32 v32, s48, v32')
    k('v_lshrrev_b32 v4, 3, v1')
    k('v_and_b32 v5, 7, v1')
    k('v_mul_lo_u32 v33, v4, s49')
    k('v_lshl_add_u32 v33, v5, 5, v33')
    k('v_add_u32 v33, s48, v33')
    k('v_lshlrev_b32 v34, 11, v4')
    k('v_lshl_add_u32 v34, v5, 4, v34')
    k('v_lshlrev_b32 v35, 5, v5')
    k('s_lshl_b32 s50, s47, 16')
    k('s_lshl_b32 s51, s43, 7')
    k('s_add_u32 s50, s50, s51')
    k('s_lshl_b32 s51, s43, 8')
    k(f's_add_u32 s51, s51, {gate_seg * 4096}')
    k('s_lshl_b32 s53, s2, 2')
    k('s_add_u32 s53, s53, s30')
    k('s_xor_b32 s54, s53, 4')
    k(f's_lshl_b32 s55, s53, {10 if xl else 13}')
    k(f's_add_u32 s55, s55, {WS_XCH + flag_idx * (4 << 20)}')
    k(f's_lshl_b32 s56, s54, {10 if xl else 13}')
    k(f's_add_u32 s56, s56, {WS_XCH + flag_idx * (4 << 20)}')
    k('s_lshl_b32 s57, s53, 6')
    k(f's_add_u32 s57, s57, {WS_FLG + flag_idx * 65536}')
    k('s_lshl_b32 s58, s54, 6')
    k(f's_add_u32 s58, s58, {WS_FLG + flag_idx * 65536}')
    k('v_mov_b32 v36, 0')
    k('v_mov_b32 v37, 1')
    if ln:
        k('v_lshl_add_u32 v240, v5, 3, v4')
        k('v_lshlrev_b32 v240, 3, v240')
        k('v_cmp_gt_u32 vcc, 4, v5')
        k('v_mov_b32 v6, 0x40000000')
        k('v_cndmask_b32 v240, v6, v240, vcc')
        k('v_cmp_eq_u32 s[86:87], 1, v5')
        k('v_cmp_eq_u32 s[88:89], 2, v5')
        k('v_cmp_eq_u32 s[90:91], 3, v5')
        k('v_lshlrev_b32 v241, 4, v2')
        k('v_add_u32 v241, s48, v241')
        k('v_lshlrev_b32 v243, 3, v4')
        k('v_add_u32 v243, s48, v243')
        cc, rr = ('v4', 'v5') if hx else ('v5', 'v4')
        k(f'v_lshrrev_b32 v6, 2, {cc}')
        k('v_lshlrev_b32 v242, 17, v6')
        k(f'v_and_b32 v6, 3, {cc}')
        k('v_lshl_add_u32 v242, v6, 8, v242')
        k(f'v_lshl_add_u32 v242, {rr}, 4, v242')
        if hx:
            k('v_xor_b32 v6, v4, v5')
            k('v_lshl_add_u32 v244, v5, 3, v6')
            k('v_lshlrev_b32 v244, 4, v244')
            k('v_add_u32 v244, s48, v244')
            k('v_lshl_add_u32 v245, v4, 3, v6')
            k('v_lshlrev_b32 v245, 4, v245')
            k('v_add_u32 v245, s48, v245')
        k('s_lshl_b32 s36, s47, 12')
        k(f's_add_u32 s36, s36, {WS_STAT}')
        k('s_mov_b32 s37, s43')
        k('s_lshl_b32 s38, s37, 18')
        k('s_lshl_b32 s37, s37, 8')
        k('s_add_u32 s37, s37, s36')
        k('s_lshl_b32 s34, s47, 11')
        k('s_add_u32 s38, s38, s34')
        k(f's_add_u32 s38, s38, {WS_H2}')
    if roll:
        for i in range(0, 64, 2):
            k(f'v_mov_b64 v[{128 + i}:{129 + i}], 0')
        k('s_mov_b32 s34, 0')
        if cpf != 2:
            k('s_lshr_b32 s59, s2, 3')
            k('s_lshl_b32 s59, s59, 2')
            k('s_add_u32 s59, s59, s30')
            k('s_and_b32 s59, s59, 31')
            k('s_lshl_b32 s59, s59, 9')
            k('v_lshlrev_b32 v39, 7, v1')
            k('v_cmp_gt_u32 vcc, 4, v1')
            k('v_mov_b32 v6, 0x40000000')
            k('v_cndmask_b32 v39, v6, v39, vcc')
    if chain_in and early:
        phase_publish(k, 24, 30, 36, 37, younger=8 * pro)
    if rowpf:
        assert map8 and roll and not split
        srd(k, 80, 4, 0, K * 2048)
        k('s_lshr_b32 s84, s2, 3')
        k('s_lshl_b32 s84, s84, 2')
        k('s_add_u32 s84, s84, s30')
        k('s_lshl_b32 s84, s84, 11')
        k(f's_mul_i32 s85, s39, {KH * 2048}')
        k('s_add_u32 s84, s84, s85')
        k('s_bfe_u32 s85, s2, 0x10001')
        k('s_lshl_b32 s85, s85, 10')
        k('s_add_u32 s84, s84, s85')
        k(f's_add_u32 s84, s84, {2 * 128 * 2048}')
        k('v_lshlrev_b32 v7, 7, v1')
        k('v_cmp_gt_u32 vcc, 8, v1')
        k('v_mov_b32 v6, 0x40000000')
        k('v_cndmask_b32 v7, v6, v7, vcc')
        for _ in range(2, rowpf):
            k('buffer_load_dword v38, v7, s[80:83], s84 offen')
            k(f's_add_u32 s84, s84, {128 * 2048}')
        for st_ in range(4, 8):
            U.put(st_ * 64 + 3, ('raw', 'buffer_load_dword v38, v7, s[80:83], s84 offen'))
            U.put(st_ * 64 + 6, f's_add_u32 s84, s84, {128 * 2048}')
    if chain_in:
        if ln and narrow:
            k('s_lshr_b32 s52, s42, 1')
            k('s_lshl_b32 s52, s52, 7')
            k('s_lshl_b32 s49, s39, 6')
            k('s_add_u32 s52, s52, s49')
            k('v_lshlrev_b32 v41, 2, v2')
            k('v_add_u32 v41, s52, v41')
            k('v_lshrrev_b32 v42, 2, v2')
            k('v_lshlrev_b32 v42, 6, v42')
            k('v_and_b32 v43, 3, v2')
            k('v_add_u32 v42, v42, v43')
            k('s_lshl_b32 s49, s43, 2')
            k('v_add_u32 v42, s49, v42')
            k('v_lshlrev_b32 v42, 2, v42')
            k('v_add_u32 v42, 3072, v42')
            k('v_and_b32 v43, 1, v3')
            k('v_cmp_eq_u32 vcc, 0, v43')
            k('v_cndmask_b32 v41, v42, v41, vcc')
            k(f's_mov_b32 s52, {WS_FLG3}')
            phase_wait(k, 24, 30, 41, 40, 52, 49, sleep=wsleep)
        elif ln:
            k(f's_mov_b32 s52, {WS_FLG3}')
            phase_wait(k, 24, 30, V_HD, 40, 52, 49, wide=True, sleep=wsleep)
        else:
            k('s_lshr_b32 s52, s42, 1')
            k('s_lshl_b32 s52, s52, 7')
            k('s_lshl_b32 s49, s39, 6')
            k('s_add_u32 s52, s52, s49')
            k(f's_add_u32 s52, s52, {WS_FLG3 + 2048}')
            k('v_lshlrev_b32 v41, 2, v2')
            phase_wait(k, 24, 30, 41, 40, 52, 49, sleep=wsleep)
        if dbg: T.stamp()
        U.start(sync=False)
        U.prologue_issue('A')
        U.vm = [t for st_ in range(pro) for kind in 'WA' for t in [(kind, st_)] * 8]
    else:
        U.start()
    T.stamp()
    GL = 8
    st_ops = []
    for j in range(4):
        for mt in range(2):
            i = j * 2 + mt
            if xl:
                if i:
                    st_ops.append(f's_add_u32 s55, s55, {1 << 20}')
                st_ops.append(f'buffer_store_dwordx4 {acc(4 + j, mt)}, v{V_HD}, s[24:27], s55 offen sc1')
                continue
            if i == 4:
                st_ops.append('s_add_u32 s55, s55, 4096')
            st_ops.append(f'buffer_store_dwordx4 {acc(4 + j, mt)}, v{V_HD}, s[24:27], s55 offen offset:{(i % 4) * 1024} sc1')
    if xbf:
        st_ops = []
        for j in range(4):
            b = 128 + (4 + j) * 8
            for e in range(4):
                st_ops.append(f'v_cvt_pk_bf16_f32 v{b + e}, v{b + 2 * e}, v{b + 2 * e + 1}')
            if j:
                st_ops.append(f's_add_u32 s55, s55, {1 << 20}')
            st_ops.append(f'buffer_store_dwordx4 {r4("v", b)}, v{V_HD}, s[24:27], s55 offen sc1')
    for i, o in enumerate(st_ops):
        U.put(gsend * GL + 2 + i, ('raw', o))
    gflag = min(gsend + 5, len(groups) - 2)
    if not lateflag:
        U.put(gflag * GL, 's_waitcnt vmcnt(0)')
        U.put(gflag * GL + 1, ('raw', 'buffer_store_dword v37, v36, s[24:27], s57 offen sc1'))
    else:
        gflag = gsend - 3
    rl = []
    for j in range(4):
        rl.append(f's_add_u32 s52, s50, {j * 16384}')
        rl.append(f'buffer_load_dwordx4 {r4("v", 40 + 4 * j)}, v34, s[12:15], s52 offen {SC}')
    rl.append('buffer_load_dwordx4 v[56:59], v35, s[24:27], s51 offen '+SC)
    rl.append('buffer_load_dwordx4 v[60:63], v35, s[24:27], s51 offen offset:16 '+SC)
    if ln:
        rl.append('s_add_u32 s52, s51, 4096')
        rl.append('buffer_load_dwordx4 v[224:227], v35, s[24:27], s52 offen '+SC)
        rl.append('buffer_load_dwordx4 v[228:231], v35, s[24:27], s52 offen offset:16 '+SC)
        rl.append('s_add_u32 s52, s51, 8192')
        rl.append('buffer_load_dwordx4 v[232:235], v35, s[24:27], s52 offen '+SC)
        rl.append('buffer_load_dwordx4 v[236:239], v35, s[24:27], s52 offen offset:16 '+SC)
    for i, o in enumerate(rl):
        U.put(gflag * GL + 2 + i, ('raw', o))
    if roll:
        sink = Kernel('sink')
        U.k = sink
        U.emit(0, 32)
        U.k = k
        U.put(7 * 64 + 59, 's_add_u32 s34, s34, 1')
        U.put(7 * 64 + 63, ('raw', 's_cmp_lt_u32 s34, 3'))
        if recpf:
            U.put(6 * 64 + 32, ('raw', 'buffer_load_dword v38, v39, s[92:95], s59 offen'))
        k('.p2align 6')
        k.label('loop')
        n0 = len(U.vm)
        U.emit(32, 64)
        k(f's_cbranch_scc1 {k.L("loop")}')
        U.vm = [t for t in U.vm if t != ('X', 0)]
        U.k = sink
        U.emit(64, 96)
        U.k = k
        if dbg == 2: T.stamp()
        for g in range(96, len(groups), 8):
            U.emit(g, min(g + 8, len(groups)))
            if dbg == 2 and g + 8 < len(groups): T.stamp()
    elif dbg == 2:
        for g in range(0, len(groups), 8):
            U.emit(g, min(g + 8, len(groups)))
            if g + 8 < len(groups): T.stamp()
    else:
        U.emit(0, len(groups))
    T.stamp()
    if lateflag:
        k('s_waitcnt vmcnt(0)')
        k('buffer_store_dword v37, v36, s[24:27], s57 offen sc1')
    k('s_barrier')
    k('s_mov_b32 s59, 0')
    k.label('poll')
    k('buffer_load_dword v38, v36, s[24:27], s58 offen sc1')
    k('s_waitcnt vmcnt(0)')
    k('v_cmp_ne_u32 vcc, 1, v38')
    k(f's_cbranch_vccz {k.L("got")}')
    k('s_sleep 2')
    k('s_add_u32 s59, s59, 1')
    k('s_cmp_lt_u32 s59, 0x40000')
    k(f's_cbranch_scc1 {k.L("poll")}')
    k.label('got')
    if dbg: T.stamp()
    for i in range(4 if xbf else 8):
        if xl:
            if i:
                k(f's_add_u32 s56, s56, {1 << 20}')
            k(f'buffer_load_dwordx4 {r4("v", 192 + 4 * i)}, v{V_HD}, s[24:27], s56 offen sc1')
            continue
        if i == 4:
            k('s_add_u32 s56, s56, 4096')
        k(f'buffer_load_dwordx4 {r4("v", 192 + 4 * i)}, v{V_HD}, s[24:27], s56 offen offset:{(i % 4) * 1024} sc1')
    P = lambda b: f'v[{b}:{b + 1}]'
    for i in range(8):
        a = 128 + 4 * i
        for e in (0, 2):
            if xbf:
                src = 192 + 2 * i + e // 2
                t = 208 + 4 * (i % 4) + e
                k(f'v_lshlrev_b32 v{t}, 16, v{src}')
                k(f'v_and_b32 v{t + 1}, 0xffff0000, v{src}')
                k(f'v_pk_add_f32 {P(a + e)}, {P(a + e)}, {P(t)}')
            else:
                k(f'v_pk_add_f32 {P(a + e)}, {P(a + e)}, {P(192 + 4 * i + e)}')
        nt, mt = i // 2, i % 2
        k(f'ds_write_b128 v32, {r4("v", a)} offset:{mt * 16 * 272 + nt * 64}')
    k('s_waitcnt lgkmcnt(0)')
    for j in range(4):
        k(f'ds_read_b128 {r4("v", 64 + 8 * j)}, v33 offset:{j * 8 * 272}')
        k(f'ds_read_b128 {r4("v", 68 + 8 * j)}, v33 offset:{j * 8 * 272 + 16}')
    for j in range(4):
        for d in range(4):
            x = 40 + 4 * j + d
            a = 64 + 8 * j + 2 * d
            k(f'v_lshlrev_b32 v4, 16, v{x}')
            k(f'v_and_b32 v5, 0xffff0000, v{x}')
            k(f'v_pk_fma_f32 v[4:5], {P(a)}, {P(56 + 2 * d)}, v[4:5]')
            k(f'v_cvt_pk_bf16_f32 v{x}, v4, v5')
        k(f's_add_u32 s52, s50, {j * 16384}')
        k(f'buffer_store_dwordx4 {r4("v", 40 + 4 * j)}, v34, s[20:23], s52 offen {stflag}')
    if ln:
        def red8(regs):
            for m in ('quad_perm:[1,0,3,2]', 'quad_perm:[2,3,0,1]', 'row_half_mirror'):
                for r in regs:
                    k(f'v_add_f32_dpp v{r}, v{r}, v{r} {m} row_mask:0xf bank_mask:0xf')
        Y = lambda j: 64 + 8 * j
        D_ = lambda j: 96 + 8 * j
        S = lambda j: 128 + 2 * j
        for j in range(4):
            for d in range(4):
                k(f'v_lshlrev_b32 v{Y(j) + 2 * d}, 16, v{40 + 4 * j + d}')
                k(f'v_and_b32 v{Y(j) + 2 * d + 1}, 0xffff0000, v{40 + 4 * j + d}')
        for j in range(4):
            k(f'v_pk_add_f32 {P(S(j))}, {P(Y(j))}, {P(Y(j) + 2)}')
        for e in (4, 6):
            for j in range(4):
                k(f'v_pk_add_f32 {P(S(j))}, {P(S(j))}, {P(Y(j) + e)}')
        for j in range(4):
            k(f'v_add_f32 v{S(j)}, v{S(j)}, v{S(j) + 1}')
        red8([S(j) for j in range(4)])
        for j in range(4):
            k(f'v_mul_f32 v{S(j)}, {f32(1.0 / 64)}, v{S(j)}')
        for j in range(4):
            for e in range(0, 8, 2):
                k(f'v_pk_add_f32 {P(D_(j) + e)}, {P(Y(j) + e)}, {P(S(j))} op_sel_hi:[1,0] neg_lo:[0,1] neg_hi:[0,1]')
        for j in range(4):
            k(f'v_pk_mul_f32 {P(136 + 2 * j)}, {P(D_(j))}, {P(D_(j))}')
        for e in (2, 4, 6):
            for j in range(4):
                k(f'v_pk_fma_f32 {P(136 + 2 * j)}, {P(D_(j) + e)}, {P(D_(j) + e)}, {P(136 + 2 * j)}')
        for j in range(4):
            k(f'v_add_f32 v{S(j) + 1}, v{136 + 2 * j}, v{137 + 2 * j}')
        red8([S(j) + 1 for j in range(4)])
        for j in range(1, 4):
            for e in range(2):
                k(f'v_cndmask_b32 v{S(0) + e}, v{S(0) + e}, v{S(j) + e}, s[{84 + 2 * j}:{85 + 2 * j}]')
        k(f'buffer_store_dwordx2 {P(S(0))}, v240, s[24:27], s37 offen sc1')
        if dbg: T.stamp()
        k('s_mov_b32 s59, 0')
        k.label('poll2')
        k(f's_sleep {psleep}')
        for i in range(4):
            k(f'buffer_load_dwordx4 {r4("v", 144 + 4 * i)}, v{V_HD}, s[24:27], s36 offen offset:{i * 1024} sc1')
        k('s_waitcnt vmcnt(0)')
        k('v_min3_f32 v6, v145, v147, v149')
        k('v_min3_f32 v6, v6, v151, v153')
        k('v_min3_f32 v6, v6, v155, v157')
        k('v_min_f32 v6, v6, v159')
        k('v_cmp_eq_f32 vcc, -1.0, v6')
        k(f's_cbranch_vccz {k.L("got2")}')
        k('s_add_u32 s59, s59, 1')
        k('s_cmp_lt_u32 s59, 0x40000')
        k(f's_cbranch_scc1 {k.L("poll2")}')
        k.label('got2')
        if dbg: T.stamp()

        def red4g(regs, tmps):
            for sw in ('v_permlane16_swap_b32', 'v_permlane32_swap_b32'):
                for r, t in zip(regs, tmps):
                    k(f'v_mov_b32 v{t}, v{r}')
                for r, t in zip(regs, tmps):
                    k(f'{sw} v{t}, v{r}')
                for r, t in zip(regs, tmps):
                    k(f'v_add_f32 v{r}, v{r}, v{t}')
        for h in (0, 2):
            k(f'v_add_f32 v{160 + h}, v{144 + h}, v{148 + h}')
            k(f'v_add_f32 v{164 + h}, v{152 + h}, v{156 + h}')
            k(f'v_add_f32 v{161 + h}, v{145 + h}, v{149 + h}')
            k(f'v_add_f32 v{165 + h}, v{153 + h}, v{157 + h}')
        for e in range(4):
            k(f'v_add_f32 v{160 + e}, v{160 + e}, v{164 + e}')
        red4g([160, 162], [164, 165])
        for h in (0, 2):
            k(f'v_mul_f32 v{160 + h}, {f32(1.0 / 16)}, v{160 + h}')
        k(f's_mov_b32 s34, {f32(64.0)}')
        for h in (0, 2):
            for i in range(4):
                k(f'v_sub_f32 v{144 + 4 * i + h}, v{144 + 4 * i + h}, v{160 + h}')
            k(f'v_mul_f32 v{164 + h}, v{144 + h}, v{144 + h}')
            for i in range(1, 4):
                k(f'v_fmac_f32 v{164 + h}, v{144 + 4 * i + h}, v{144 + 4 * i + h}')
            k(f'v_fmac_f32 v{161 + h}, s34, v{164 + h}')
        red4g([161, 163], [164, 165])
        k(f's_mov_b32 s34, {f32(1.0 / 1024)}')
        k(f'v_mov_b32 v6, {f32(1e-5)}')
        for h in (0, 2):
            k(f'v_fma_f32 v{161 + h}, v{161 + h}, s34, v6')
        for h in (0, 2):
            k(f'v_rsq_f32 v{161 + h}, v{161 + h}')
        k('ds_write_b128 v241, v[160:163]')
        k('s_waitcnt lgkmcnt(0)')
        for j in range(4):
            k(f'ds_read_b64 {P(S(j))}, v243 offset:{64 * j}')
        for j in range(4):
            for e in range(0, 8, 2):
                k(f'v_pk_add_f32 {P(Y(j) + e)}, {P(Y(j) + e)}, {P(S(j))} op_sel_hi:[1,0] neg_lo:[0,1] neg_hi:[0,1]')
            for e in range(0, 8, 2):
                k(f'v_pk_mul_f32 {P(Y(j) + e)}, {P(Y(j) + e)}, {P(S(j))} op_sel:[0,1] op_sel_hi:[1,1]')
            for e in range(0, 8, 2):
                k(f'v_pk_fma_f32 {P(Y(j) + e)}, {P(Y(j) + e)}, {P(232 + e)}, {P(224 + e)}')
            for d in range(4):
                k(f'v_cvt_pk_bf16_f32 v{D_(j) + d}, v{Y(j) + 2 * d}, v{Y(j) + 2 * d + 1}')
            if hx:
                k(f'ds_write_b128 v244, {r4("v", D_(j))} offset:{1024 + j * 1024}')
                k(f'ds_read_b128 {r4("v", D_(j) + 4)}, v245 offset:{1024 + j * 1024}')
            else:
                k(f'buffer_store_dwordx4 {r4("v", D_(j))}, v242, s[24:27], s38 offen offset:{(j // 2) * 1024 + (j % 2) * 128} {hflag}')
        if hx:
            for j in range(4):
                k(f'buffer_store_dwordx4 {r4("v", D_(j) + 4)}, v242, s[24:27], s38 offen offset:{(j // 2) * 1024 + (j % 2) * 128} sc1')
    if dbg:
        k('s_waitcnt vmcnt(0)')
    T.stamp()
    T.dump(44, 30, slot_dbg)
    if chain_out:
        k('s_lshl_b32 s3, s42, 4')
        k('s_add_u32 s3, s3, s43')
        k('s_lshl_b32 s3, s3, 2')
        k(f's_add_u32 s3, s3, {WS_FLG3 + 1024}')
        k(f's_branch {chain_out}')
    k.label('end')
    k('s_endpgm')
    return k
```

```python
from common import *
import math
import sched_attn

V_LANE = 1
V_T0 = 2
V_KA = 8
V_VA = 12
V_KD = 20
V_VD = 24
V_WD = 26
V_HD = 30
V_PF = 31
V_PFD = 32
V_MD = 33
V_LT = 34
V_L = 38
V_KG = 42
V_CK = 43
V_TM = 44
V_CI = 48
V_S = (64, 128)
V_Q = 192
A_O = 0
A_KF = 128
A_VF = 160
A_X2 = 192

S_K, S_V, S_WQ, S_H, S_OO = 8, 12, 16, 20, 24
S_W = 30
S_KOFF = 31
S_VOFF = 32
S_M0K = 33
S_CNT = 34
S_TOFF = 35
S_THR = 36
S_RET = 38
S_T = 40
S_PF = 56
S_PT = 96 - 8 - 4
S_WM = 4
LDS_M = 131072
WS_FLG2 = (60 << 20) + 131072
S_PFO = 54
S_PFN = 55

LDS_K = 0
LDS_V = 65536
LDS_W = 98304
BIAS = 48.0

PI = [0, 2, 1, 3]


def Sreg(st, kt, qt):
    return V_S[st] + ((kt >> 1) * 4 + qt) * 8 + (kt & 1) * 4


def Preg(st, qt, ks):
    return V_S[st] + (ks * 4 + qt) * 8


def Qreg(qt, s):
    return V_Q + (qt * 4 + s) * 4


def Oreg(dt, qt):
    return A_O + (dt * 4 + qt) * 4


def r4(f, b):
    return f'{f}[{b}:{b + 3}]'


def mf(d, a, b, c):
    return f'v_mfma_f32_16x16x32_bf16 {d}, {a}, {b}, {c}'


def kread(kt, s, slot):
    b = A_KF + (kt & 1) * 16 + s * 4
    return f'ds_read_b128 {r4("a", b)}, v{V_KA + s} offset:{slot * 16384 + kt * 4096}'


def vread(dt, ks, half, slot):
    b = A_VF + (dt & 3) * 8 + ks * 4 + half * 2
    return f'ds_read_b64_tr_b16 a[{b}:{b + 1}], v{V_VA + dt} offset:{slot * 16384 + ks * 8192 + half * 4096}'


def softmax_half_ops(st, ks, first):
    ex, ad, cv = [], [], []
    for qt in range(4):
        b = Preg(st, qt, ks)
        for e in range(8):
            ex.append(f'v_exp_f32 v{b + e}, v{b + e}')
            if first and e == 0:
                ad.append(f'v_add_f32 v{V_L + qt}, v{V_L + qt}, v{V_LT + qt}')
            elif first and e == 1:
                ad.append(f'v_add_f32 v{V_LT + qt}, v{b}, v{b + 1}')
            else:
                ad.append(f'v_add_f32 v{V_LT + qt}, v{V_LT + qt}, v{b + e}')
        for j in range(4):
            cv.append(f'v_cvt_pk_bf16_f32 v{b + j}, v{b + 2 * j}, v{b + 2 * j + 1}')
    return ex, ad, cv


def _cls(t):
    if t.endswith(':'):
        return 0
    if t.startswith('s_'):
        return 0
    if t.startswith(('ds_', 'buffer_', 'global_')):
        return 1
    return 2


def emit_phase(k, mfmas, gaps):
    for i, m in enumerate(mfmas):
        if m:
            k(m)
        ops = gaps.get(i, [])
        for f in sorted([o for o in ops if not isinstance(o, tuple)], key=_cls):
            k(f)
        for f in ops:
            if isinstance(f, tuple):
                k(f[1])


def place_softmax(gaps, ex, ad, cv):
    for i in range(32):
        gaps.setdefault(2 * i, []).append(ex[i])
        gaps.setdefault(2 * i + 1, []).append(ad[i])
    for j in range(16):
        gaps.setdefault(4 * j + 3, []).append(cv[j])


SM0 = 60


def softmax_stream(st):
    e0, a0, c0 = softmax_half_ops(st, 0, True)
    e1, a1, c1 = softmax_half_ops(st, 1, False)
    ex, ad, cv = e0 + e1, a0 + a1, c0 + c1
    out = []
    E = [SM0 + 2 * i for i in range(62)] + [SM0 + 123, SM0 + 124]
    A = [e + 1 for e in E]
    for i in range(64):
        out.append((E[i], 0, ex[i]))
        out.append((A[i], 1, ad[i]))
    for j in range(32):
        out.append((A[2 * j + 1], 2, cv[j]))
    out.sort(key=lambda x: (x[0], (1, 0, 2)[x[1]]))
    return out


def gen_attn(dbg=False, mallpf=True, bias=None, stflag='sc1', qp0=16, qpn=16, wqpf=2, kvpf=0, cpf=2, wqst=(2, 6), xpf=False, fln=True, hflag='sc1', early_w=0, thr=None, v2=True, skw=None, wq0=1, wqfirst=True, tailpf=True, late_w=4, midpf=True, chain_out=None, chain_in=False, nsh=16):
    global BIAS
    BIAS = 48.0 if bias is None else bias
    k = Kernel('attn_kernel', vgprs=256, agprs=256, sgprs=96, grid=256, block=256, lds=160 * 1024)
    if not chain_in:
        k('s_cmp_ge_u32 s2, 256')
        k(f's_cbranch_scc1 {k.L("end")}')
    T = Stamper(k, dbg)
    T.start()
    k(f's_load_dwordx2 s[28:29], s[0:1], {A_WQ}')
    k(f's_load_dwordx2 s[{S_K}:{S_K + 1}], s[0:1], {A_X}')
    k(f's_load_dwordx2 s[{S_OO}:{S_OO + 1}], s[0:1], {D_DBG}')
    k(f's_load_dwordx2 s[44:45], s[0:1], {D_WS}')
    k(f's_load_dwordx4 s[4:7], s[0:1], {A_K}')
    k(f's_load_dwordx2 s[{S_PF}:{S_PF + 1}], s[0:1], {A_WO}')
    k(f's_load_dwordx4 s[{S_PT}:{S_PT + 3}], s[0:1], {B_WG}')
    k(f's_load_dwordx2 s[{S_PT + 4}:{S_PT + 5}], s[0:1], {B_WD}')
    k(f's_load_dwordx2 s[{S_PT + 6}:{S_PT + 7}], s[0:1], {W_MOD}')
    if cpf == 1:
        code_prefetch(k, 80, 4, V_PFD, 0, 256, 49152)
    k(f'v_lshrrev_b32 v2, 6, v0')
    k(f'v_and_b32 v{V_LANE}, 63, v0')
    k(f'v_readfirstlane_b32 s{S_W}, v2')
    if cpf == 2:
        code_prefetch_light(k, 80, 53, 4, 5, V_PFD, V_LANE, S_W, 64)
    k('s_and_b32 s40, s2, 7')
    k('s_lshl_b32 s40, s40, 2')
    k('s_lshr_b32 s41, s2, 6')
    k('s_add_u32 s40, s40, s41')
    k('s_bfe_u32 s41, s2, 0x30003')
    k('s_lshl_b32 s42, s40, 19')
    k('s_lshl_b32 s43, s40, 8')
    k(f'v_and_b32 v2, 15, v{V_LANE}')
    k(f'v_lshrrev_b32 v3, 4, v{V_LANE}')
    k(f's_lshl_b32 s{S_M0K}, s{S_W}, 12')
    k(f's_lshl_b32 s46, s{S_W}, 17')
    k(f'v_lshlrev_b32 v4, 13, v3')
    k(f'v_add_u32 v4, s46, v4')
    for j in range(4):
        k(f'v_add_u32 v5, {4 * (j >> 1)}, v3')
        k(f'v_lshlrev_b32 v5, 1, v5')
        k(f'v_xor_b32 v5, v5, v2')
        k(f'v_lshl_add_u32 v5, v5, 4, v4')
        k(f'v_add_u32 v{V_WD + j}, {4 * j * 8192 - 1024 * j}, v5')
    k(f'v_lshlrev_b32 v{V_HD}, 4, v{V_LANE}')
    k('s_lshl_b32 s46, s41, 2')
    k(f's_add_u32 s46, s46, s{S_W}')
    k('s_lshl_b32 s47, s46, 12')
    k('s_lshl_b32 s48, s46, 12')
    k('s_lshl_b32 s49, s40, 19')
    k('s_add_u32 s48, s48, s49')
    k('s_waitcnt lgkmcnt(0)')
    srd(k, S_WQ, 28, 's43', 1024 * 8192 - 31 * 256)
    srd(k, S_H, 44, WS_H1, 2048 * 2048)

    def setup_rest():
        srd(k, S_K, 4, 's42', 524288)
        srd(k, S_V, 6, 's42', 524288)
        srd(k, S_OO, 44, WS_O, 2048 * 8192)
        k(f'v_lshlrev_b32 v4, 8, v3')
        k(f'v_add_u32 v4, s{S_M0K}, v4')
        for j in range(4):
            k(f'v_add_u32 v5, {4 * j}, v3')
            k(f'v_xor_b32 v5, v5, v2')
            k(f'v_lshl_add_u32 v{V_KD + j}, v5, 4, v4')
        for j in range(2):
            k(f'v_add_u32 v5, {4 * j}, v3')
            k(f'v_lshlrev_b32 v5, 1, v5')
            k(f'v_xor_b32 v5, v5, v2')
            k(f'v_lshl_add_u32 v{V_VD + j}, v5, 4, v4')
        k('v_and_b32 v4, 1, v3')
        k('v_lshlrev_b32 v4, 1, v4')
        k('v_lshrrev_b32 v5, 1, v3')
        k('v_or_b32 v4, v4, v5')
        k('v_lshlrev_b32 v6, 8, v2')
        k(f'v_lshl_add_u32 v{V_KG}, v4, 4, v6')
        for s in range(4):
            k(f'v_add_u32 v5, {4 * s}, v4')
            k('v_xor_b32 v5, v5, v2')
            k(f'v_lshl_add_u32 v{V_KA + s}, v5, 4, v6')
        k('v_lshrrev_b32 v4, 2, v2')
        k('v_and_b32 v5, 1, v3')
        k('v_lshl_or_b32 v5, v5, 2, v4')
        k('v_lshlrev_b32 v5, 1, v5')
        k('v_bfe_u32 v6, v2, 1, 1')
        k('v_xor_b32 v5, v5, v6')
        k('v_lshl_add_u32 v4, v3, 3, v4')
        k('v_lshlrev_b32 v4, 8, v4')
        k('v_and_b32 v6, 1, v2')
        k('v_lshl_add_u32 v4, v6, 3, v4')
        k(f'v_add_u32 v4, {LDS_W}, v4')
        for dt in range(8):
            k(f'v_xor_b32 v6, {2 * dt}, v5')
            k(f'v_lshl_add_u32 v{V_VA + dt}, v6, 4, v4')
        k(f'v_lshlrev_b32 v{V_CK}, 10, v3')
        k(f'v_add_u32 v{V_CK}, {LDS_W - LDS_V}, v{V_CK}')
        k(f's_mov_b32 s{S_THR}, {f32(2.0 ** (BIAS if thr is None else thr))}')
        k(f's_mov_b32 s{S_PF + 2}, {4096 * 2048}')
        k(f's_mov_b32 s{S_PF + 3}, 0x00020000')
        k(f's_lshl_b32 s{S_PFO}, s2, 2')
        k(f's_add_u32 s{S_PFO}, s{S_PFO}, s{S_W}')
        k(f's_lshl_b32 s{S_PFO}, s{S_PFO}, 13')
        k(f'v_lshlrev_b32 v{V_PF}, 7, v{V_LANE}')
        k(f'v_cmp_gt_u32 vcc, 16, v{V_LANE}')
        k(f'v_mov_b32 v5, 0x40000000')
        k(f'v_cndmask_b32 v{V_PF}, v5, v{V_PF}, vcc')
        for qt in range(4):
            k(f'v_mov_b32 v{V_L + qt}, 0')
            k(f'v_mov_b32 v{V_LT + qt}, 0')
        srd(k, S_WM, S_PT + 6, 0, 1024 * 12288)
        k(f'v_lshrrev_b32 v4, 1, v{V_LANE}')
        k('s_movk_i32 s53, 12288')
        k('v_mul_lo_u32 v4, v4, s53')
        k(f'v_and_b32 v5, 1, v{V_LANE}')
        k(f'v_lshl_add_u32 v{V_MD}, v5, 4, v4')
        k('s_and_b32 s28, s2, 7')
        k('s_lshl_b32 s28, s28, 5')
        k('s_lshr_b32 s29, s2, 3')
        k('s_add_u32 s28, s28, s29')
        k(f's_mul_i32 s29, s{S_W}, {256 * 12288}')
        k('s_lshl_b32 s53, s28, 5')
        k('s_add_u32 s29, s29, s53')
        k('s_add_u32 s29, s29, 4096')
        k(f's_lshr_b32 s{S_PFN}, s{S_PFO}, 13')
        k(f's_mul_i32 s{S_PFN}, s{S_PFN}, 12288')
        k(f's_add_u32 s{S_PFN}, s{S_PFN}, 4096')

    vm = []

    def vwait(tag):
        last = max(i for i, t in enumerate(vm) if t == tag)
        return min(63, len(vm) - 1 - last)

    def wq_dma(st):
        ops = [f's_add_u32 m0, s{S_M0K}, {LDS_W + (st & 3) * 16384}', f's_mov_b32 s50, {st * 64 * 8192}']
        for j in range(4):
            ops.append((f'buffer_load_dwordx4 v{V_WD + j}, s[{S_WQ}:{S_WQ + 3}], s50 offen offset:{j * 1024} lds', ('W', st)))
        return ops

    def h_loads(st):
        ops = []
        for s in range(2):
            ops.append(f's_add_u32 s51, s47, {(st * 2 + s) * 131072}')
            for qt in range(4):
                b = (st & 3) * 32 + (qt * 2 + s) * 4
                ops.append((f'buffer_load_dwordx4 {r4("a", b)}, v{V_HD}, s[{S_H}:{S_H + 3}], s51 offen offset:{qt * 1024} {hflag if fln else ""}', ('H', st)))
        return ops

    def kv_dma(which, t, soff):
        ops = []
        if which == 'K':
            ops.append(f's_add_u32 m0, s{S_M0K}, {LDS_K + (t & 3) * 16384}')
            for j in range(4):
                ops.append((f'buffer_load_dwordx4 v{V_KD + j}, s[{S_K}:{S_K + 3}], {soff} offen offset:{j * 1024} lds', ('K', t)))
        else:
            ops.append(f's_add_u32 m0, s{S_M0K}, {LDS_V + (t & 3) * 16384}')
            for j in range(4):
                ops.append((f'buffer_load_dwordx4 v{V_VD + (j & 1)}, s[{S_V}:{S_V + 3}], {soff} offen offset:{j * 1024} lds', ('V', t)))
        return ops

    def emit_ops(ops):
        for o in ops:
            if isinstance(o, tuple):
                k(o[0]); vm.append(o[1])
            else:
                k(o)

    def wread(dt, s, half, st):
        b = A_X2 + (dt & 3) * 8 + s * 4 + half * 2
        return f'ds_read_b64_tr_b16 a[{b}:{b + 1}], v{V_VA + dt} offset:{(st & 3) * 16384 + s * 8192 + half * 1024}'

    def qacc(dt, qt):
        return 64 + (qt * 8 + dt) * 4

    NST = 16
    queue = []
    for st in range(NST):
        if not (fln and st < late_w):
            queue.append((st - 3, wq_dma(st)))
        queue.append((st - 3, h_loads(st)))
    for w, t, e in [('K', 0, 0), ('V', 0, 0), ('K', 1, 0), ('V', 1, 0), ('K', 2, 0), ('V', 2, 13), ('K', 3, 0)]:
        queue.append((e, [f's_mov_b32 s52, {t * 16384}'] + kv_dma(w, t, 's52')))
    flat = [(e, o) for e, ops in queue for o in ops]
    nvm = lambda ops: sum(1 for o in ops if isinstance(o, tuple))

    def take(stage, maxv):
        out = []
        while flat and flat[0][0] <= stage:
            if isinstance(flat[0][1], tuple) and nvm(out) >= maxv:
                break
            if not isinstance(flat[0][1], tuple) and nvm(out) >= maxv:
                break
            out.append(flat.pop(0)[1])
        return out
    P = lambda b: f'v[{b}:{b + 1}]'
    if fln:
        X, Yb, PB, MS, MH, TT = 192, 64, 96, 160, 176, 208
        post = math.log2(math.e) / math.sqrt(128)
        k(f's_mov_b32 s{S_K + 2}, {2048 * 2048}')
        k(f's_mov_b32 s{S_K + 3}, 0x00020000')
        srd(k, S_V, 44, 0, 64 << 20)
        k('s_lshl_b32 s50, s41, 8')
        k('s_lshl_b32 s51, s40, 3')
        k('s_add_u32 s50, s50, s51')
        k(f's_lshl_b32 s51, s{S_W}, 1')
        k('s_add_u32 s51, s51, s50')
        k('s_lshl_b32 s51, s51, 11')
        for r in range(2):
            for h in range(2):
                b = X + 8 * r + 4 * h
                emit_ops([(f'buffer_load_dwordx4 {r4("v", b)}, v{V_HD}, s[{S_K}:{S_K + 3}], s51 offen offset:{r * 2048 + h * 1024}', ('L', 0))])
        k(f'v_lshlrev_b32 v{TT + 8}, 4, v0')
        def part_loads():
            k('s_mov_b32 s52, 65536')
            for p in range(8):
                for h in range(2):
                    b = PB + 8 * p + 4 * h
                    emit_ops([(f'buffer_load_dwordx4 {r4("v", b)}, v{TT + 8}, s[{S_V}:{S_V + 3}], s52 offen {"sc1" if chain_in else ""}', ('L', 1))])
                    k('s_add_u32 s52, s52, 4096')
        if not chain_in:
            part_loads()
        k('s_lshr_b32 s53, s50, 4')
        k('s_lshl_b32 s53, s53, 10')
        k('s_and_b32 s52, s50, 8')
        k('s_lshl_b32 s52, s52, 4')
        k('s_add_u32 s53, s53, s52')
        k(f's_lshl_b32 s52, s{S_W}, 20')
        k('s_add_u32 s53, s53, s52')
        for st in range(early_w):
            emit_ops(wq_dma(st))
    else:
        emit_ops(take(-1, 12))
        setup_rest()
        emit_ops(take(-1, qp0 - 12))
    def wq_prefetch():
        if wqpf == 1:
            k('s_lshr_b32 s50, s2, 3')
            k('s_lshl_b32 s50, s50, 2')
            k(f's_add_u32 s50, s50, s{S_W}')
            k('s_lshl_b32 s50, s50, 16')
            k('s_lshr_b32 s51, s2, 6')
            k('s_lshl_b32 s51, s51, 8')
            k('s_add_u32 s50, s50, 8192')
            k('s_sub_u32 s50, s50, s51')
            k(f'v_lshrrev_b32 v4, 3, v{V_LANE}')
            k('v_lshlrev_b32 v4, 13, v4')
            k(f'v_and_b32 v5, 7, v{V_LANE}')
            k('v_lshl_add_u32 v4, v5, 7, v4')
            emit_ops([(f'buffer_load_dword v{V_PFD}, v4, s[{S_WQ}:{S_WQ + 3}], s50 offen', ('P', 0))])
        elif wqpf == 2:
            k('s_lshr_b32 s37, s2, 3')
            k('s_lshl_b32 s37, s37, 2')
            k(f's_add_u32 s37, s37, s{S_W}')
            k('s_lshl_b32 s37, s37, 14')
            k('s_lshr_b32 s51, s2, 6')
            k('s_lshl_b32 s51, s51, 8')
            k(f's_add_u32 s37, s37, {(wq0 - (0 if wqfirst else 256)) * 8192}')
            k('s_sub_u32 s37, s37, s51')
            k(f'v_lshrrev_b32 v4, 3, v{V_LANE}')
            k('v_lshlrev_b32 v4, 13, v4')
            k(f'v_and_b32 v5, 7, v{V_LANE}')
            k('v_lshl_add_u32 v4, v5, 7, v4')
            k(f'v_cmp_gt_u32 vcc, 16, v{V_LANE}')
            k('v_mov_b32 v5, 0x40000000')
            k('v_cndmask_b32 v7, v5, v4, vcc')
            if wqfirst:
                emit_ops([(f'buffer_load_dword v{V_PFD}, v7, s[{S_WQ}:{S_WQ + 3}], s37 offen', ('P', 0))])
        pass
    if not fln:
        wq_prefetch()
    if fln:
        A0, A1 = TT, TT + 2
        for r in range(2):
            for d in range(8):
                k(f'v_lshlrev_b32 v{Yb + 16 * r + 2 * d}, 16, v{X + 8 * r + d}')
                k(f'v_and_b32 v{Yb + 16 * r + 2 * d + 1}, 0xffff0000, v{X + 8 * r + d}')
        for r in range(2):
            k(f'v_pk_add_f32 {P(TT + 2 * r)}, {P(Yb + 16 * r)}, {P(Yb + 16 * r + 2)}')
        for e in range(4, 16, 2):
            for r in range(2):
                k(f'v_pk_add_f32 {P(TT + 2 * r)}, {P(TT + 2 * r)}, {P(Yb + 16 * r + e)}')
        for r in range(2):
            k(f'v_add_f32 v{TT + 2 * r}, v{TT + 2 * r}, v{TT + 2 * r + 1}')
        wave_allreduce_add(k, [TT, TT + 2], [TT + 1, TT + 3])
        for r in range(2):
            k(f'v_mul_f32 v{TT + 2 * r}, {f32(-1.0 / 1024)}, v{TT + 2 * r}')
        for r in range(2):
            for e in range(0, 16, 2):
                o = Yb + 16 * r + e
                k(f'v_pk_add_f32 {P(o)}, {P(o)}, {P(TT + 2 * r)} op_sel_hi:[1,0]')
        for r in range(2):
            k(f'v_pk_mul_f32 {P(TT + 2 * r)}, {P(Yb + 16 * r)}, {P(Yb + 16 * r)}')
        for e in range(2, 16, 2):
            for r in range(2):
                o = Yb + 16 * r + e
                k(f'v_pk_fma_f32 {P(TT + 2 * r)}, {P(o)}, {P(o)}, {P(TT + 2 * r)}')
        for r in range(2):
            k(f'v_add_f32 v{TT + 2 * r}, v{TT + 2 * r}, v{TT + 2 * r + 1}')
        if chain_in:
            k(f's_mov_b32 s{S_OO + 2}, 256')
            k(f's_mov_b32 s{S_OO + 3}, 0x00020000')
            k(f'v_and_b32 v{TT + 10}, {nsh - 1}, v{V_LANE}')
            k(f'v_lshlrev_b32 v{TT + 10}, {8 - (nsh.bit_length() - 1)}, v{TT + 10}')
            k(f's_cmp_lg_u32 s{S_W}, 0')
            k(f's_cbranch_scc1 {k.L("mgot")}')
            k('s_mov_b32 s52, 0')
            k.label('mpoll')
            k(f'buffer_load_dword v{TT + 11}, v{TT + 10}, s[{S_OO}:{S_OO + 3}], 0 offen sc1')
            k('s_waitcnt vmcnt(0)')
            k(f'v_cmp_ne_u32 vcc, {256 // nsh}, v{TT + 11}')
            k(f's_cbranch_vccz {k.L("mgot")}')
            k('s_sleep 4')
            k('s_add_u32 s52, s52, 1')
            k('s_cmp_lt_u32 s52, 0x40000')
            k(f's_cbranch_scc1 {k.L("mpoll")}')
            k.label('mgot')
            k('s_barrier')
            if dbg: T.stamp()
            part_loads()
        k(f's_mov_b32 s50, {f32(post)}')
        for p in range(1, 8):
            for e in range(0, 8, 2):
                k(f'v_pk_add_f32 {P(PB + e)}, {P(PB + e)}, {P(PB + 8 * p + e)}')
        if midpf:
            k('s_mov_b32 s36, s50')
            wq_prefetch()
            k('s_mov_b32 s50, s36')
        for e in range(0, 8, 2):
            k(f'v_cvt_pk_bf16_f32 v{PB + 8 + e // 2}, v{PB + e}, v{PB + 1 + e}')
        for e in range(0, 8, 2):
            k(f'v_lshlrev_b32 v{PB + e}, 16, v{PB + 8 + e // 2}')
            k(f'v_and_b32 v{PB + 1 + e}, 0xffff0000, v{PB + 8 + e // 2}')
        for e in range(4):
            k(f'v_mul_f32 v{PB + e}, s50, v{PB + e}')
            k(f'v_add_f32 v{PB + 4 + e}, 1.0, v{PB + 4 + e}')
        for e in range(0, 4, 2):
            k(f'v_cvt_pk_bf16_f32 v{PB + 8 + e // 2}, v{PB + 4 + e}, v{PB + 5 + e}')
        for e in range(0, 4, 2):
            k(f'v_lshlrev_b32 v{PB + 4 + e}, 16, v{PB + 8 + e // 2}')
            k(f'v_and_b32 v{PB + 5 + e}, 0xffff0000, v{PB + 8 + e // 2}')
        k(f'ds_write_b128 v{TT + 8}, {r4("v", PB)}')
        k(f'ds_write_b128 v{TT + 8}, {r4("v", PB + 4)} offset:4096')
        k(f'v_lshlrev_b32 v{TT + 9}, 5, v{V_LANE}')
        k('s_waitcnt lgkmcnt(0)')
        k('s_barrier')
        for h in range(2):
            for j in range(2):
                k(f'ds_read_b128 {r4("v", MS + 8 * h + 4 * j)}, v{TT + 9} offset:{4096 + h * 2048 + j * 16}')
                k(f'ds_read_b128 {r4("v", MH + 8 * h + 4 * j)}, v{TT + 9} offset:{h * 2048 + j * 16}')
        wave_allreduce_add(k, [TT, TT + 2], [TT + 1, TT + 3])
        k(f's_mov_b32 s51, {f32(1.0 / 1024)}')
        k(f'v_mov_b32 v{TT + 4}, {f32(1e-5)}')
        for r in range(2):
            k(f'v_fma_f32 v{TT + 2 * r}, v{TT + 2 * r}, s51, v{TT + 4}')
        for r in range(2):
            k(f'v_rsq_f32 v{TT + 2 * r}, v{TT + 2 * r}')
        for r in range(2):
            k(f'v_mul_f32 v{TT + 2 * r}, s50, v{TT + 2 * r}')
        k(f'v_lshlrev_b32 v{TT + 10}, 7, v{V_LANE}')
        k(f'v_and_b32 v{TT + 11}, 7, v{V_LANE}')
        k(f's_lshl_b32 s51, s{S_W}, 1')
        for r in range(2):
            for e in range(0, 16, 2):
                o = Yb + 16 * r + e
                k(f'v_pk_mul_f32 {P(o)}, {P(o)}, {P(TT + 2 * r)} op_sel_hi:[1,0]')
            for e in range(0, 16, 2):
                o = Yb + 16 * r + e
                k(f'v_pk_fma_f32 {P(o)}, {P(o)}, {P(MS + e)}, {P(MH + e)}')
            for d in range(8):
                o = Yb + 16 * r + 2 * d
                k(f'v_cvt_pk_bf16_f32 v{Yb + 16 * r + d}, v{o}, v{o + 1}')
            k(f'v_xor_b32 v{TT + 12}, s51, v{TT + 11}')
            k(f'v_lshl_add_u32 v{TT + 12}, v{TT + 12}, 4, v{TT + 10}')
            k(f'ds_write_b128 v{TT + 12}, {r4("v", Yb + 16 * r)} offset:8192')
            k(f'ds_write_b128 v{TT + 12}, {r4("v", Yb + 16 * r + 4)} offset:16384')
            k('s_add_u32 s51, s51, 1')
        k(f'v_lshrrev_b32 v{TT + 13}, 3, v{V_LANE}')
        k(f'v_xor_b32 v{TT + 12}, v{TT + 13}, v{TT + 11}')
        k(f'v_lshlrev_b32 v{TT + 12}, 4, v{TT + 12}')
        k(f'v_lshl_add_u32 v{TT + 12}, v{TT + 13}, 7, v{TT + 12}')
        k(f'v_add_u32 v{TT + 12}, s{S_M0K}, v{TT + 12}')
        k(f'v_lshrrev_b32 v{TT + 14}, 2, v{TT + 13}')
        k(f'v_lshlrev_b32 v{TT + 14}, 17, v{TT + 14}')
        k(f'v_and_b32 v{TT + 15}, 3, v{TT + 13}')
        k(f'v_lshl_add_u32 v{TT + 14}, v{TT + 15}, 8, v{TT + 14}')
        k(f'v_lshl_add_u32 v{TT + 14}, v{TT + 11}, 4, v{TT + 14}')
        k('s_waitcnt lgkmcnt(0)')
        k('s_barrier')
        for i in range(4):
            k(f'ds_read_b128 {r4("v", PB + 4 * i)}, v{TT + 12} offset:{8192 + i * 1024}')
        for i in range(4):
            emit_ops([(f'buffer_store_dwordx4 {r4("v", PB + 4 * i)}, v{TT + 14}, s[{S_H}:{S_H + 3}], s53 offen sc1', ('S', 0))])
            k(f's_add_u32 s53, s53, {2 * 131072}')
        k('s_lshl_b32 s52, s41, 7')
        k(f's_add_u32 s52, s52, {WS_FLG2}')
        k('s_lshl_b32 s53, s40, 2')
        k('s_add_u32 s53, s53, s52')
        k(f's_mov_b64 s[80:81], s[{S_V}:{S_V + 1}]')
        k(f's_mov_b32 s82, {64 << 20}')
        k(f's_mov_b32 s83, 0x00020000')
        k(f'v_mov_b32 v{TT}, 0')
        k(f'v_mov_b32 v{TT + 1}, 1')
        k(f'v_and_b32 v{TT + 2}, 31, v{V_LANE}')
        k(f'v_lshlrev_b32 v{TT + 2}, 2, v{TT + 2}')
        if dbg: T.stamp()
        k('s_mov_b32 s39, s52')
        k('s_mov_b32 s38, s53')
        setup_rest()
        k('s_waitcnt vmcnt(0)')
        k('s_barrier')
        k(f's_cmp_lg_u32 s{S_W}, 0')
        k(f's_cbranch_scc1 {k.L("noflag")}')
        k(f'buffer_store_dword v{TT + 1}, v{TT}, s[80:83], s38 offen sc1')
        k.label('noflag')
        if dbg: T.stamp()
        for st in range(early_w, late_w):
            emit_ops(wq_dma(st))
        if midpf:
            k(f's_add_u32 s37, s37, {256 * 8192}')
            k(f'buffer_load_dword v{V_PFD}, v7, s[{S_WQ}:{S_WQ + 3}], s37 offen')
        else:
            wq_prefetch()
        k(f's_cmp_lg_u32 s{S_W}, 0')
        k(f's_cbranch_scc1 {k.L("hgot")}')
        k('s_mov_b32 s53, 0')
        k.label('hpoll')
        k(f'buffer_load_dword v{TT + 3}, v{TT + 2}, s[80:83], s39 offen sc1')
        k('s_waitcnt vmcnt(0)')
        k(f'v_cmp_ne_u32 vcc, 1, v{TT + 3}')
        k(f's_cbranch_vccz {k.L("hgot")}')
        k('s_sleep 1')
        k('s_add_u32 s53, s53, 1')
        k('s_cmp_lt_u32 s53, 0x40000')
        k(f's_cbranch_scc1 {k.L("hpoll")}')
        k.label('hgot')
        k('s_waitcnt vmcnt(0)')
        k('s_barrier')
        if dbg: T.stamp()
        del vm[:]
        vm.extend([('W', i) for i in range(late_w)])
        emit_ops(take(-1, 8))
    else:
        k(f's_waitcnt vmcnt({vwait(("W", 0))})')
        k('s_barrier')
    T.stamp()
    PD = 3
    for dt in range(PD):
        for s in range(2):
            for h in range(2):
                k(wread(dt, s, h, 0))

    def qcvt(sp):
        ops = []
        for qt in range(4):
            q = Qreg(qt, sp)
            t0, t1 = qacc(2 * sp, qt), qacc(2 * sp + 1, qt)
            ops += [f'v_cvt_pk_bf16_f32 v{q}, v{t0}, v{t0 + 1}', f'v_cvt_pk_bf16_f32 v{q + 1}, v{t0 + 2}, v{t0 + 3}',
                    f'v_cvt_pk_bf16_f32 v{q + 2}, v{t1}, v{t1 + 1}', f'v_cvt_pk_bf16_f32 v{q + 3}, v{t1 + 2}, v{t1 + 3}']
        for qt in range(4):
            q = Qreg(qt, sp)
            ops += [f'v_permlane16_swap_b32 v{q}, v{q + 2}', f'v_permlane16_swap_b32 v{q + 1}, v{q + 3}']
        return ops
    for st in range(NST):
        gaps = {}

        def put(g, op):
            gaps.setdefault(g, []).append(op)
        M = []
        busy = set()
        BG = 6
        for dt in range(8):
            tgt = dt + PD
            rd = []
            if tgt < 8:
                rd = [wread(tgt, s, h, st) for s in range(2) for h in range(2)]
                pos = [0, 2, 4, 6]
            elif st + 1 < NST:
                if dt == 6:
                    rd = [wread(x, s, h, st + 1) for x in (0, 1) for s in range(2) for h in range(2)][:7]
                    pos = [1, 2, 3, 4, 5, 6, 7]
                elif dt == 7:
                    rd = [wread(1, 1, 1, st + 1)] + [wread(2, s, h, st + 1) for s in range(2) for h in range(2)]
                    pos = [0, 1, 2, 4, 6]
            else:
                if dt == 6:
                    rd = [kread(0, s, 0) for s in range(4)]
                    pos = [1, 3, 5, 7]
                elif dt == 7:
                    rd = [kread(1, s, 0) for s in range(4)]
                    pos = [0, 2, 4, 6]
            for r, p in zip(rd, pos):
                put(dt * 8 + p, r)
                busy.add(dt * 8 + p)
            for qt in range(4):
                for s in range(2):
                    d = r4('v', qacc(dt, qt))
                    a = r4('a', A_X2 + (dt & 3) * 8 + s * 4)
                    b = r4('a', (st & 3) * 32 + (qt * 2 + s) * 4)
                    M.append(mf(d, a, b, '0' if (st == 0 and s == 0) else d))
        side = take(st, qpn)
        if wqpf == 2 and st in wqst:
            side = [f's_add_u32 s37, s37, {256 * 8192}',
                    (f'buffer_load_dword v{V_PFD}, v7, s[{S_WQ}:{S_WQ + 3}], s37 offen', ('P', 0))] + side
        if kvpf and st == kvpf:
            side = [f's_lshl_b32 s53, s46, 11',
                    (f'buffer_load_dword v{V_PFD}, v{V_PF}, s[{S_K}:{S_K + 3}], s53 offen', ('P', 1)),
                    (f'buffer_load_dword v{V_PFD}, v{V_PF}, s[{S_V}:{S_V + 3}], s53 offen', ('P', 1))] + side
        free = [g for g in range(1, 63) if g not in busy and g not in (47, 48)]
        n = nvm(side)
        pos = [free[(i * len(free)) // n] for i in range(n)] if n else []
        vi = 0
        pend_s = []
        for o in side:
            if isinstance(o, tuple):
                put(pos[vi], ('V', pend_s, o))
                pend_s = []
                vi += 1
            else:
                pend_s.append(o)
        assert not pend_s
        if st >= 13:
            z = [f'v_accvgpr_write_b32 a{((st - 13) & 3) * 32 + i}, 0' for i in range(32)]
            for i, o in enumerate(z):
                put(2 * i + (1 if st < 15 else 0) if st < 15 else i // 2, o)
        if st == 15:
            for sp in range(3):
                for i, o in enumerate(qcvt(sp)):
                    put(16 * (sp + 1) + 3 + i // 2, o)
        for i, m in enumerate(M):
            k(m)
            ops = gaps.get(i, [])
            if i == 47:
                if st + 1 < NST:
                    k(f's_waitcnt vmcnt({vwait(("W", st + 1))}) lgkmcnt(0)')
                else:
                    k(f's_waitcnt vmcnt({vwait(("K", 0))})')
            if i == 48:
                k('s_barrier')
            nxt = [o for o in gaps.get(i + 1, []) if isinstance(o, tuple)]
            cur = [o for o in ops if isinstance(o, tuple)]
            if not cur:
                for o in nxt:
                    for sc in o[1]:
                        k(sc)
            for o in cur:
                emit_ops([o[2]])
            if cur:
                for o in nxt:
                    for sc in o[1]:
                        k(sc)
            for o in sorted([o for o in ops if not isinstance(o, tuple)], key=_cls):
                k(o)
        if dbg == 3: T.stamp()
    assert not flat, flat
    T.stamp()
    for o in qcvt(3):
        k(o)
    extras = [f'v_accvgpr_write_b32 a{96 + i}, 0' for i in range(32)]
    extras += [f'v_sub_u32 v{V_VA + dt}, v{V_VA + dt}, v{V_CK}' for dt in range(8)]
    gaps = {}
    for i, o in enumerate(extras):
        gaps.setdefault(i // 2, []).append(o)
    M = []
    for kt in range(4):
        for qt in range(4):
            for s in range(4):
                d = r4('v', Sreg(0, kt, qt))
                M.append(mf(d, r4('a', A_KF + (kt & 1) * 16 + s * 4), r4('v', Qreg(qt, s)), '0' if s == 0 else d))
            if kt < 3:
                b = Sreg(0, kt, qt)
                g = 16 * kt + 4 * qt + 12
                if kt == 0:
                    gaps.setdefault(g + 8, []).append(f'v_max3_f32 v{V_TM + qt}, v{b}, v{b + 1}, v{b + 2}')
                    gaps.setdefault(g + 9, []).append(f'v_max_f32 v{V_TM + qt}, v{V_TM + qt}, v{b + 3}')
                else:
                    gaps.setdefault(g, []).append(f'v_max3_f32 v{V_TM + qt}, v{V_TM + qt}, v{b}, v{b + 1}')
                    gaps.setdefault(g + 1, []).append(f'v_max3_f32 v{V_TM + qt}, v{V_TM + qt}, v{b + 2}, v{b + 3}')
        if kt + 2 < 4:
            for s in range(4):
                gaps.setdefault(16 * (kt + 1) + 2 * s, []).append(kread(kt + 2, s, 0))
    gaps.setdefault(55, []).append(f's_waitcnt vmcnt({min(vwait(("V", 0)), vwait(("K", 1)))}) lgkmcnt(0)')
    gaps.setdefault(56, []).append('s_barrier')
    for s in range(4):
        gaps.setdefault(57 + s, []).append(kread(0, s, 1))
    emit_phase(k, M, gaps)
    for qt in range(4):
        b = Sreg(0, 3, qt)
        k(f'v_max3_f32 v{V_TM + qt}, v{V_TM + qt}, v{b}, v{b + 1}')
        k(f'v_max3_f32 v{V_TM + qt}, v{V_TM + qt}, v{b + 2}, v{b + 3}')

    def rowmax(st, dst, local=True):
        for qt in range(4 if local else 0):
            regs = [Sreg(st, kt, qt) + r for kt in range(4) for r in range(4)]
            d = dst + qt
            k(f'v_max3_f32 v{d}, v{regs[0]}, v{regs[1]}, v{regs[2]}')
            for i in range(3, 15, 2):
                k(f'v_max3_f32 v{d}, v{d}, v{regs[i]}, v{regs[i + 1]}')
            k(f'v_max_f32 v{d}, v{d}, v{regs[15]}')
        for sw in ('v_permlane16_swap_b32', 'v_permlane32_swap_b32'):
            for qt in range(4):
                k(f'v_mov_b32 v{V_T0 + qt}, v{dst + qt}')
            for qt in range(4):
                k(f'{sw} v{V_T0 + qt}, v{dst + qt}')
            for qt in range(4):
                k(f'v_max_f32 v{dst + qt}, v{dst + qt}, v{V_T0 + qt}')

    rowmax(0, V_TM, local=False)
    k(f's_mov_b32 s53, {f32(BIAS)}')
    for qt in range(4):
        k(f'v_add_f32 v{V_TM + qt}, s53, v{V_TM + qt}')
        for r in range(4):
            k(f'v_sub_f32 v{V_CI + qt * 4 + r}, 0, v{V_TM + qt}')
    for kt in range(4):
        for qt in range(4):
            for r in range(4):
                x = Sreg(0, kt, qt) + r
                k(f'v_sub_f32 v{x}, v{x}, v{V_TM + qt}')
    k(f's_mov_b32 s{S_KOFF}, {4 * 16384}')
    k(f's_mov_b32 s{S_VOFF}, {3 * 16384}')
    k(f's_mov_b32 s{S_TOFF}, 0')
    k(f's_mov_b32 s{S_CNT}, 0')
    if tailpf:
        k('s_getpc_b64 s[80:81]')
        k.label('tpc')
        k(f's_add_u32 s80, s80, {k.L("tail")}-{k.L("tpc")}')
        k('s_addc_u32 s81, s81, 0')
        k(f's_mov_b32 s82, {k.L("end")}-{k.L("tail")}')
        k(f's_and_b32 s37, s{S_W}, 1')
        k('s_lshl_b32 s37, s37, 13')
    tramps = []

    def epi_ops(j):
        ops = [f's_add_u32 s49, s48, {j * 131072}']
        for qt in range(4):
            gi = j * 4 + qt
            t = (64 + gi * 8) if gi < 8 else (192 + (gi - 8) * 8)
            for h in range(2):
                for r in range(4):
                    ops.append(f'v_accvgpr_read_b32 v{t + h * 4 + r}, a{Oreg(2 * j + h, qt) + r}')
            for e in range(8):
                ops.append(f'v_mul_f32 v{t + e}, v{t + e}, v{V_L + qt}')
            for e in range(4):
                ops.append(f'v_cvt_pk_bf16_f32 v{t + e}, v{t + 2 * e}, v{t + 2 * e + 1}')
            ops.append(f'buffer_store_dwordx4 {r4("v", t)}, v{V_HD}, s[{S_OO}:{S_OO + 3}], s49 offen offset:{qt * 1024} {stflag}')
        return ops

    def tile(t4, last=False, tag='', pf=False, peel=False):
        st, sn = t4 & 1, (t4 + 1) & 1
        M = []
        gaps = {}

        def put(g, op):
            gaps.setdefault(g, []).append(op)
        for pos, _, op in softmax_stream(st):
            if pos >= 128:
                put(pos - 128, op)
        put(58, f'v_max3_f32 v{V_CK}, v{V_LT}, v{V_LT + 1}, v{V_LT + 2}')
        put(58, f'v_max_f32 v{V_CK}, v{V_CK}, v{V_LT + 3}')
        put(59, f'v_cmp_nge_f32 vcc, s{S_THR}, v{V_CK}')
        lab = k.newlabel('tr')
        put(60, f's_cbranch_vccnz {k.L(lab)}')
        put(60, k.L(lab + 'r') + ':')
        tramps.append((lab, st))
        if not last:
            for pos, _, op in softmax_stream(sn):
                if pos < 128:
                    put(pos, op)
        else:
            lops = [f'v_add_f32 v{V_L + qt}, v{V_L + qt}, v{V_LT + qt}' for qt in range(4)]
            for sw in ('v_permlane16_swap_b32', 'v_permlane32_swap_b32'):
                lops += [f'v_mov_b32 v{V_T0 + qt}, v{V_L + qt}' for qt in range(4)]
                lops += [f'{sw} v{V_T0 + qt}, v{V_L + qt}' for qt in range(4)]
                lops += [f'v_add_f32 v{V_L + qt}, v{V_L + qt}, v{V_T0 + qt}' for qt in range(4)]
            lops += [f'v_rcp_f32 v{V_L + qt}, v{V_L + qt}' for qt in range(4)]
            for i, o in enumerate(lops):
                put(64 + i // 2, o)
            put(61, f's_add_u32 s{S_H}, s44, {WS_MOD}')
            put(61, f's_addc_u32 s{S_H + 1}, s45, 0')
            put(61, f's_mov_b32 s{S_H + 2}, 65536')
            put(62, f's_lshl_b32 s50, s{S_W}, 9')
            put(62, f's_add_u32 s50, s50, 32768')
            put(62, f'v_and_b32 v{V_KG}, 0x30, v{V_LANE}')
            put(63, f's_waitcnt vmcnt(0)')
            put(63, f'v_lshlrev_b32 v{V_CK}, 4, v{V_KG}')
            put(63, f'v_and_b32 v{V_MD}, 15, v{V_LANE}')
            put(63, f'v_lshl_add_u32 v{V_CK}, v{V_MD}, 3, v{V_CK}')
            put(63, f's_lshl_b32 s51, s{S_M0K}, 1')
            put(63, f's_add_u32 s51, s51, {LDS_M}')
            put(63, ('raw', f'v_add_u32 v{V_CK}, s51, v{V_CK}'))
            for s8 in range(8):
                put(64 + 2 * s8, f'buffer_load_dwordx4 {r4("a", A_X2 + 4 * s8)}, v{V_KG}, s[{S_H}:{S_H + 3}], s50 offen offset:{s8 * 64}')
                for h in range(2):
                    b = A_X2 + 32 + 4 * s8 + 2 * h
                    put(106 + 2 * s8 + h, f'ds_read_b64_tr_b16 a[{b}:{b + 1}], v{V_CK} offset:{s8 * 1024 + h * 128}')
            for j in range(3):
                eo = epi_ops(j)
                g0 = 64 + 16 * (j + 1) + 2
                span = min(16, 128 - g0)
                for i, o in enumerate(eo):
                    put(g0 + (i * span) // len(eo), ('raw', o))
        kslot = (t4 + 1) & 3
        if not last:
            for kt in range(4):
                for qt in range(4):
                    for s in range(4):
                        d = r4('v', Sreg(sn, kt, qt))
                        c = r4('v', V_CI + qt * 4) if s == 0 else d
                        M.append(mf(d, r4('a', A_KF + (kt & 1) * 16 + s * 4), r4('v', Qreg(qt, s)), c))
                if kt + 1 < 4:
                    for s, g in enumerate([1, 3, 5, 9]):
                        put(16 * kt + g, kread(kt + 1, s, kslot))
            ops = kv_dma('V', t4 + 3, f's{S_VOFF}') + [f's_add_u32 s{S_VOFF}, s{S_VOFF}, 16384'] \
                + kv_dma('K', t4, f's{S_KOFF}') + [f's_add_u32 s{S_KOFF}, s{S_KOFF}, 16384']
            ops = [o[0] if isinstance(o, tuple) else o for o in ops]
            slots = [10, 11, 13, 27, 29, 30, 42, 43, 45, 47, 49, 50]
            if peel:
                def wm(half):
                    o = [f's_lshl_b32 m0, s{S_M0K}, 1', f's_add_u32 m0, m0, {LDS_M + half * 4096}']
                    sl = [40, 42]
                    for j, g in enumerate([43, 45, 47, 49]):
                        o += [f'buffer_load_dwordx4 v{V_MD}, s[{S_WM}:{S_WM + 3}], s29 offen offset:{j * 1024} lds',
                              f's_add_u32 s29, s29, {32 * 12288 - 1024 + (4096 if j == 3 else 0)}']
                        sl += [g, g + 1]
                    return o, sl
                ops, slots = (ops[:6], slots[:6]) if t4 == 0 else ([], [])
                if t4 < 2:
                    o, sl = wm(t4)
                    ops, slots = ops + o, slots + sl
            for o, g in zip(ops, slots):
                put(g, o)
        else:
            M = [None] * 64
        vr = [vread(dt, ks, h, t4) for dt in range(3) for ks in range(2) for h in range(2)]
        for i, g in enumerate([7, 15, 23, 31, 39, 51, 53, 55, 57, 59, 61, 63]):
            put(g, vr[i])
        for dt in range(8):
            for qt in range(4):
                for ks in range(2):
                    d = r4('a', Oreg(dt, qt))
                    M.append(mf(d, r4('a', A_VF + (dt & 3) * 8 + ks * 4), r4('v', Preg(st, qt, ks)), d))
            if dt + 3 < 8:
                vr = [vread(dt + 3, ks, h, t4) for ks in range(2) for h in range(2)]
                for i, g in enumerate([1, 3, 5, 7]):
                    put(64 + 8 * dt + g, vr[i])
        put(66, f's_add_u32 s{S_TOFF}, s{S_TOFF}, 16384')
        if pf:
            put(105, f'buffer_load_dword v{V_PFD}, v{V_PF}, s[{S_PF}:{S_PF + 3}], s{S_PFO} offen offset:{(t4 & 1) * 2048}')
            if t4 == 1:
                put(106, f's_add_u32 s{S_PFO}, s{S_PFO}, 4096')
            if t4 == 3:
                rot = [f's_sub_u32 s{S_PFO}, s{S_PFO}, 4096',
                       f's_mov_b64 s[{S_PF}:{S_PF + 1}], s[{S_PT}:{S_PT + 1}]',
                       f's_mov_b64 s[{S_PT}:{S_PT + 1}], s[{S_PT + 2}:{S_PT + 3}]',
                       f's_mov_b64 s[{S_PT + 2}:{S_PT + 3}], s[{S_PT + 4}:{S_PT + 5}]',
                       f's_mov_b64 s[{S_PT + 4}:{S_PT + 5}], s[{S_PT + 6}:{S_PT + 7}]',
                       f's_mov_b64 s[{S_PT + 6}:{S_PT + 7}], s[44:45]',
                       f's_cmp_lt_u32 s{S_CNT}, 3',
                       f's_cselect_b32 s{S_PF + 2}, {1024 * 7168}, 0',
                       f's_cmp_eq_u32 s{S_CNT}, 3',
                       f's_cselect_b32 s{S_PF + 2}, {1024 * 12288}, s{S_PF + 2}',
                       f's_cselect_b32 s{S_PFO}, s{S_PFN}, s{S_PFO}']
                if xpf:
                    rot += [f's_cmp_eq_u32 s{S_CNT}, 4',
                            f's_cselect_b32 s{S_PF + 2}, {64 << 20}, s{S_PF + 2}',
                            f's_cselect_b32 s{S_PFO}, s37, s{S_PFO}']
                for o, g in zip(rot, [106, 107, 108, 109, 110, 114, 116, 118, 119, 120, 122, 123, 124, 126]):
                    put(g, o)
        if not last:
            put(111, f's_waitcnt vmcnt({[16, 12, 4][t4] if peel else 17 if pf else 16}) lgkmcnt(0)')
            put(112, 's_barrier')
            for s, g in enumerate([113, 115, 117, 121]):
                put(g, kread(0, s, (t4 + 2) & 3))
        emit_phase(k, M, gaps)

    SCH = sched_attn.best(**(skw or {})) if v2 else None
    V_ONE = V_WD

    def sop(o, ss):
        if o[0] == 'E':
            r = Preg(ss, o[1], o[2]) + o[3]
            return f'v_exp_f32 v{r}, v{r}'
        if o[0] == 'C':
            b = Preg(ss, o[1], o[2])
            return f'v_cvt_pk_bf16_f32 v{b + o[3]}, v{b + 2 * o[3]}, v{b + 2 * o[3] + 1}'
        if o[0] == 'L':
            return f'v_add_f32 v{V_L + o[1]}, v{V_L + o[1]}, v{V_LT + o[1]}'
        if o[0] == 'A':
            b = Preg(ss, o[1], 1)
            lt = V_LT + o[1]
            if o[2] == 1:
                return f'v_add_f32 v{lt}, v{b}, v{b + 1}'
            if o[2] == 8:
                return f'v_add_f32 v{lt}, v{lt}, v{Preg(ss, o[1], 0) + 4}'
            return f'v_add_f32 v{lt}, v{lt}, v{b + o[2]}'
        if o[0] == 'X':
            return [f'v_max3_f32 v{V_CK}, v{V_LT}, v{V_LT + 1}, v{V_LT + 2}', f'v_max_f32 v{V_CK}, v{V_CK}, v{V_LT + 3}',
                    f'v_cmp_nge_f32 vcc, s{S_THR}, v{V_CK}'][o[1]]

    def summ(q, ss):
        b = Preg(ss, q, 0)
        return mf(r4('v', b + 4), r4('v', V_ONE), r4('v', b), '0')

    def tile2(t4, last=False, pf=False, peel=False):
        NG, G0, BAR = sched_attn.NG, 63, 68
        _, MS, SG, _ = SCH
        st, sn = t4 & 1, (t4 + 1) & 1
        gaps = {}

        def put(g, op):
            gaps.setdefault(g, []).append(op)
        M = []
        for i, m in enumerate(MS):
            if m[0] == 'QK':
                _, kt, qt, s = m
                d = r4('v', Sreg(sn, kt, qt))
                M.append(None if last else mf(d, r4('a', A_KF + (kt & 1) * 16 + s * 4), r4('v', Qreg(qt, s)), r4('v', V_CI + qt * 4) if s == 0 else d))
            elif m[0] == 'PV':
                _, dt, qt, ks = m
                d = r4('a', Oreg(dt, qt))
                M.append(mf(d, r4('a', A_VF + (dt & 3) * 8 + ks * 4), r4('v', Preg(st, qt, ks)), d))
            else:
                M.append(summ(m[1], st) if i < G0 else (None if last else summ(m[1], sn)))
        seen = set()
        wg = {BAR - 1, BAR, G0}
        for i, m in enumerate(MS):
            key = (m[0], m[1], m[3]) if m[0] != 'SUM' else None
            if key and key not in seen:
                seen.add(key)
                wg.add((i - 1) % NG)
        used_s = set(wg)

        def put_s(lo, hi, op):
            for g in range(lo, hi + 1):
                if g not in used_s:
                    used_s.add(g)
                    put(g, op)
                    return g
            put(hi, op)
            return hi
        vd = [o[0] if isinstance(o, tuple) else o for o in kv_dma('V', t4 + 3, f's{S_VOFF}')]
        kd = [o[0] if isinstance(o, tuple) else o for o in kv_dma('K', t4, f's{S_KOFF}')]
        dpos = {}
        for u, ops in SG.items():
            g = u % NG
            for o in ops:
                if o[0] in 'ECLAX':
                    if u >= NG:
                        put(g, sop(o, st))
                    elif not last:
                        put(g, sop(o, sn))
                elif o[0] == 'K':
                    if not last:
                        put(g, kread(o[1], o[2], (t4 + (1 if u >= NG else 2)) & 3))
                elif o[0] == 'V':
                    put(g, vread(o[1], o[2], o[3], t4))
                elif o[0] == 'D':
                    dpos[o[1]] = g
        lab = k.newlabel('tr')
        put(G0, f's_cbranch_vccnz {k.L(lab)}')
        put(G0, k.L(lab + 'r') + ':')
        tramps.append((lab, st))
        put_s(G0 + 1, G0 + 12, f's_add_u32 s{S_TOFF}, s{S_TOFF}, 16384')
        if not last:
            if not peel or t4 == 0:
                put_s(BAR + 1, dpos[0] - 1, vd[0])
                for j in range(4):
                    put(dpos[j], vd[1 + j])
                put(dpos[3] + 1, f's_add_u32 s{S_VOFF}, s{S_VOFF}, 16384')
                used_s.add(dpos[3] + 1)
            if not peel:
                put_s(4, dpos[4] - 1, kd[0])
                for j in range(4):
                    put(dpos[4 + j], kd[1 + j])
                put_s(dpos[7] + 1, G0 - 1, f's_add_u32 s{S_KOFF}, s{S_KOFF}, 16384')
            elif t4 < 2:
                g = put_s(4, dpos[4] - 3, f's_lshl_b32 m0, s{S_M0K}, 1')
                put_s(g + 1, dpos[4] - 1, f's_add_u32 m0, m0, {LDS_M + t4 * 4096}')
                for j in range(4):
                    put(dpos[4 + j], f'buffer_load_dwordx4 v{V_MD}, s[{S_WM}:{S_WM + 3}], s29 offen offset:{j * 1024} lds')
                    put_s(dpos[4 + j] + 1, dpos[5 + j] - 1, f's_add_u32 s29, s29, {32 * 12288 - 1024 + (4096 if j == 3 else 0)}')
            put(BAR - 1, f's_waitcnt vmcnt({4 if (peel and t4 == 2) else 12})')
            put(BAR, 's_barrier')
        if pf:
            put(dpos[8], f'buffer_load_dword v{V_PFD}, v{V_PF}, s[{S_PF}:{S_PF + 3}], s{S_PFO} offen offset:{(t4 & 1) * 2048}')
            if t4 == 1:
                put_s(80, 100, f's_add_u32 s{S_PFO}, s{S_PFO}, 4096')
            if t4 == 3:
                rot = [f's_sub_u32 s{S_PFO}, s{S_PFO}, 4096',
                       f's_mov_b64 s[{S_PF}:{S_PF + 1}], s[{S_PT}:{S_PT + 1}]',
                       f's_mov_b64 s[{S_PT}:{S_PT + 1}], s[{S_PT + 2}:{S_PT + 3}]',
                       f's_mov_b64 s[{S_PT + 2}:{S_PT + 3}], s[{S_PT + 4}:{S_PT + 5}]',
                       f's_mov_b64 s[{S_PT + 4}:{S_PT + 5}], s[{S_PT + 6}:{S_PT + 7}]',
                       f's_cmp_lt_u32 s{S_CNT}, 3',
                       f's_cselect_b32 s{S_PF + 2}, {1024 * 7168}, 0',
                       f's_cmp_eq_u32 s{S_CNT}, 3',
                       f's_cselect_b32 s{S_PF + 2}, {1024 * 12288}, s{S_PF + 2}',
                       f's_cselect_b32 s{S_PFO}, s{S_PFN}, s{S_PFO}']
                if tailpf:
                    rot += [f's_cmp_eq_u32 s{S_CNT}, 5',
                            f's_cselect_b64 s[{S_PF}:{S_PF + 1}], s[80:81], s[{S_PF}:{S_PF + 1}]',
                            f's_cselect_b32 s{S_PF + 2}, s82, s{S_PF + 2}',
                            f's_cselect_b32 s{S_PFO}, s37, s{S_PFO}']
                rot += [f's_add_u32 s{S_CNT}, s{S_CNT}, 1']
                g = 80
                for o in rot:
                    g = put_s(g + 1, 120, o)
        if last:
            B0 = 66
            lops = [f'v_add_f32 v{V_L + qt}, v{V_L + qt}, v{V_LT + qt}' for qt in range(4)]
            for sw in ('v_permlane16_swap_b32', 'v_permlane32_swap_b32'):
                lops += [f'v_mov_b32 v{V_T0 + qt}, v{V_L + qt}' for qt in range(4)]
                lops += [f'{sw} v{V_T0 + qt}, v{V_L + qt}' for qt in range(4)]
                lops += [f'v_add_f32 v{V_L + qt}, v{V_L + qt}, v{V_T0 + qt}' for qt in range(4)]
            lops += [f'v_rcp_f32 v{V_L + qt}, v{V_L + qt}' for qt in range(4)]
            for i, o in enumerate(lops):
                put(B0 + i // 2, o)
            for o in [f's_add_u32 s{S_H}, s44, {WS_MOD}', f's_addc_u32 s{S_H + 1}, s45, 0', f's_mov_b32 s{S_H + 2}, 65536',
                      f's_lshl_b32 s50, s{S_W}, 9', f's_add_u32 s50, s50, 32768', f'v_and_b32 v{V_KG}, 0x30, v{V_LANE}',
                      's_waitcnt vmcnt(0)', f'v_lshlrev_b32 v{V_CK}, 4, v{V_KG}', f'v_and_b32 v{V_MD}, 15, v{V_LANE}',
                      f'v_lshl_add_u32 v{V_CK}, v{V_MD}, 3, v{V_CK}', f's_lshl_b32 s51, s{S_M0K}, 1', f's_add_u32 s51, s51, {LDS_M}',
                      f'v_add_u32 v{V_CK}, s51, v{V_CK}']:
                put(65, ('raw', o))
            for s8 in range(8):
                put(B0 + 2 * s8, f'buffer_load_dwordx4 {r4("a", A_X2 + 4 * s8)}, v{V_KG}, s[{S_H}:{S_H + 3}], s50 offen offset:{s8 * 64} {"sc1" if chain_in else ""}')
                for h in range(2):
                    b = A_X2 + 32 + 4 * s8 + 2 * h
                    put(114 + 2 * s8 + h, f'ds_read_b64_tr_b16 a[{b}:{b + 1}], v{V_CK} offset:{s8 * 1024 + h * 128}')
            for j in range(3):
                eo = epi_ops(j)
                g0 = max(i for i, m in enumerate(MS) if m[0] == 'PV' and m[1] == 2 * j + 1) + 3
                span = min(16, NG - g0)
                for i, o in enumerate(eo):
                    put(g0 + (i * span) // len(eo), ('raw', o))
        emit_phase(k, M, gaps)

    if not v2:
        pre = [(pos + (0 if kind == 0 else 3), op) for pos, kind, op in softmax_stream(0) if pos < 128]
        pre.sort(key=lambda x: x[0])
        for pos, op in pre:
            k(op)
    else:
        for r in range(4):
            k(f'v_mov_b32 v{V_ONE + r}, 0x3e803e80')
        for u in sorted(SCH[2]):
            if u >= sched_attn.NG:
                break
            if SCH[1][u][0] == 'SUM':
                k(summ(SCH[1][u][1], 0))
            for o in SCH[2][u]:
                if o[0] in 'ECLA':
                    k(sop(o, 0))
                elif o[0] == 'K' and o[1] == 1:
                    k(kread(1, o[2], 1))
    T.stamp()
    k('.p2align 6')
    k.label('loop')
    for t4 in range(4):
        (tile2 if v2 else tile)(t4, pf=mallpf)
    if not (v2 and mallpf):
        k(f's_add_u32 s{S_CNT}, s{S_CNT}, 1')
    k(f's_cmp_lt_u32 s{S_CNT}, 7')
    k(f's_cbranch_scc1 {k.L("loop")}')
    k.label('tail')
    T.stamp()
    for t4 in range(4):
        (tile2 if v2 else tile)(t4, last=(t4 == 3), peel=True)
    T.stamp()

    for s8 in range(8):
        k(mf(r4('v', V_TM), r4('a', A_X2 + 32 + 4 * s8), r4('a', A_X2 + 4 * s8), '0' if s8 == 0 else r4('v', V_TM)))
    for o in epi_ops(3):
        k(o)
    k(f'v_lshlrev_b32 v2, 6, v{V_LANE}')
    k(f's_lshl_b32 s51, s{S_W}, 6')
    k(f'v_add_u32 v3, s51, v{V_KG}')
    k(f'ds_write_b128 v3, {r4("v", V_TM)}')
    k('s_waitcnt lgkmcnt(0)')
    k('s_barrier')
    k(f's_cmp_lg_u32 s{S_W}, 0')
    k(f's_cbranch_scc1 {k.L("fin")}')
    k(f'v_lshlrev_b32 v2, 2, v{V_MD}')
    for w in range(4):
        k(f'ds_read_b32 v{4 + w}, v2 offset:{w * 64}')
    k('v_add_f32 v4, v4, v5')
    k('v_add_f32 v6, v6, v7')
    k('v_add_f32 v4, v4, v6')
    k('v_cvt_pk_bf16_f32 v4, v4, v4')
    k('v_and_b32 v4, 0xffff0000, v4')
    k('s_lshr_b32 s29, s28, 6')
    k('s_cmp_eq_u32 s29, 2')
    k('s_cselect_b32 s29, 1.0, 0')
    k('v_add_f32 v4, s29, v4')
    k('v_cvt_pk_bf16_f32 v4, v4, v4')
    k('v_and_b32 v4, 0xffff0000, v4')
    k('s_lshl_b32 s29, s28, 6')
    k('s_add_u32 s29, s29, 8192')
    k(f'buffer_store_dword v4, v2, s[{S_H}:{S_H + 3}], s29 offen {"sc1" if chain_out else ""}')
    k.label('fin')
    k('s_waitcnt vmcnt(0)') if dbg else None
    T.stamp()
    T.dump(44, S_W, 0)
    if chain_out:
        k('s_lshl_b32 s3, s41, 5')
        k('s_add_u32 s3, s3, s40')
        k('s_lshl_b32 s3, s3, 2')
        k(f's_add_u32 s3, s3, {WS_FLG3}')
        k('s_lshl_b32 s79, s28, 2')
        k(f's_add_u32 s79, s79, {WS_FLG3 + 3072}')
        k(f's_branch {chain_out}')
    k.label('end')
    k('s_endpgm')

    for lab, st in tramps:
        k.label(lab)
        k(f's_call_b64 s[{S_RET}:{S_RET + 1}], {k.L("slow%d" % st)}')
        k(f's_branch {k.L(lab + "r")}')
    for st in range(2):
        sn = st ^ 1
        k.label(f'slow{st}')
        for kt in range(4):
            k(f's_add_u32 s52, s{S_TOFF}, {kt * 4096}')
            for s in range(4):
                k(f'buffer_load_dwordx4 {r4("a", A_X2 + (kt * 4 + s) * 4)}, v{V_KG}, s[{S_K}:{S_K + 3}], s52 offen offset:{s * 64}')
        k('s_waitcnt vmcnt(0)')
        for kt in range(4):
            for qt in range(4):
                for s in range(4):
                    d = r4('v', Sreg(st, kt, qt))
                    c = r4('v', V_CI + qt * 4) if s == 0 else d
                    k(mf(d, r4('a', A_X2 + (kt * 4 + s) * 4), r4('v', Qreg(qt, s)), c))
        rowmax(st, V_TM)
        k(f's_mov_b32 s53, {f32(BIAS)}')
        for qt in range(4):
            k(f'v_add_f32 v{V_TM + qt}, s53, v{V_TM + qt}')
            k(f'v_max_f32 v{V_TM + qt}, 0, v{V_TM + qt}')
            k(f'v_sub_f32 v{V_T0 + qt}, 0, v{V_TM + qt}')
            k(f'v_exp_f32 v{V_T0 + qt}, v{V_T0 + qt}')
            for r in range(4):
                k(f'v_sub_f32 v{V_CI + qt * 4 + r}, v{V_CI + qt * 4 + r}, v{V_TM + qt}')
            k(f'v_mul_f32 v{V_L + qt}, v{V_L + qt}, v{V_T0 + qt}')
        for ss in (st, sn):
            for kt in range(4):
                for qt in range(4):
                    for r in range(4):
                        x = Sreg(ss, kt, qt) + r
                        k(f'v_sub_f32 v{x}, v{x}, v{V_TM + qt}')
        for dt in range(8):
            for qt in range(4):
                for r in range(4):
                    a = Oreg(dt, qt) + r
                    k(f'v_accvgpr_read_b32 v6, a{a}')
                    k(f'v_mul_f32 v6, v6, v{V_T0 + qt}')
                    k(f'v_accvgpr_write_b32 a{a}, v6')
        for qt in range(4):
            k(f'v_mov_b32 v{V_LT + qt}, 0')
        for ks in range(2):
            ex, ad, cv = softmax_half_ops(st, ks, False)
            g0 = {}
            place_softmax(g0, ex, ad, cv)
            emit_phase(k, [None] * 64, g0)
        k(f's_setpc_b64 s[{S_RET}:{S_RET + 1}]')
    return k
```

```python
from common import *
import math

WS_SC = 32768
WS_PART = 65536
P = lambda b: f'v[{b}:{b + 1}]'


def gen_modp(dbg=False, allcode=None, pfx=True, cpf=True, chain_out=None, nsh=16):
    SC = 'sc1' if chain_out else ''
    k = Kernel('modp_kernel', vgprs=64, sgprs=96 if dbg else 64, grid=256, block=256, lds=1024)
    T = Stamper(k, dbg)
    k('s_cmp_ge_u32 s2, 256')
    k(f's_cbranch_scc1 {k.L("end")}')
    T.start()
    k(f's_load_dwordx4 s[4:7], s[0:1], {C_IN}')
    k(f's_load_dwordx2 s[12:13], s[0:1], {A_X}')
    k(f's_load_dwordx4 s[8:11], s[0:1], {D_DBG}')
    if cpf:
        code_prefetch(k, 44, 16, 17, 0, 256, 4096)
    k('v_lshrrev_b32 v1, 6, v0')
    k('v_and_b32 v2, 63, v0')
    k('v_readfirstlane_b32 s20, v1')
    k('s_and_b32 s26, s2, 31')
    k('s_lshr_b32 s27, s2, 5')
    k(f's_mul_i32 s32, s27, {128 * 12288}')
    k('s_lshl_b32 s33, s26, 7')
    k('s_add_u32 s32, s32, s33')
    k('s_lshl_b32 s33, s27, 8')
    k('v_lshrrev_b32 v6, 3, v0')
    k('v_and_b32 v7, 7, v0')
    k('s_movk_i32 s34, 12288')
    k('v_mul_lo_u32 v8, v6, s34')
    k('v_lshl_add_u32 v8, v7, 4, v8')
    k('v_lshlrev_b32 v9, 1, v6')
    k('s_waitcnt lgkmcnt(0)')
    srd(k, 52, 6, 0, 1024 * 12288)
    srd(k, 48, 4, 0, 2048)
    for i in range(4):
        k(f'buffer_load_ushort v{24 + i}, v9, s[48:51], s33 offen offset:{i * 64}')
    for i in range(4):
        k(f'buffer_load_dwordx4 v[{32 + 4 * i}:{35 + 4 * i}], v8, s[52:55], s32 offen')
        if i < 3:
            k(f's_add_u32 s32, s32, {32 * 12288}')
    if pfx:
        k('s_mov_b32 s14, %d' % (2048 * 2048))
        k('s_mov_b32 s15, 0x00020000')
        if chain_out:
            k('s_and_b32 s23, s2, 7')
            k('s_lshl_b32 s23, s23, 2')
            k('s_lshr_b32 s24, s2, 6')
            k('s_add_u32 s23, s23, s24')
            k('s_bfe_u32 s24, s2, 0x30003')
            k('s_lshl_b32 s24, s24, 5')
            k('s_add_u32 s23, s23, s24')
            k('s_lshl_b32 s23, s23, 14')
        else:
            k('s_lshl_b32 s23, s2, 14')
        k('v_lshlrev_b32 v10, 7, v0')
        k('s_cmp_ge_u32 s20, 2')
        k(f's_cbranch_scc1 {k.L("nox")}')
        k('buffer_load_dword v11, v10, s[12:15], s23 offen')
        k.label('nox')
        if allcode:
            k('s_cmp_lg_u32 s20, 3')
            k(f's_cbranch_scc1 {k.L("noc")}')
            k('s_cmp_ge_u32 s2, 24')
            k(f's_cbranch_scc1 {k.L("noc")}')
            k('s_getpc_b64 s[40:41]')
            k.label('pc2')
            k(f's_mov_b32 s42, {allcode}-{k.L("pc2")}')
            k('s_mov_b32 s43, 0x00020000')
            k('s_lshl_b32 s37, s2, 13')
            k('v_lshlrev_b32 v10, 7, v2')
            k('buffer_load_dword v11, v10, s[40:43], s37 offen')
            k.label('noc')
    srd(k, 16, 10, 0, 64 << 20)
    k('s_lshl_b32 s36, s2, 2')
    k('s_add_u32 s36, s36, s20')
    k('s_lshl_b32 s36, s36, 6')
    k(f's_add_u32 s36, s36, {60 << 20}')
    k('v_and_b32 v14, 3, v2')
    k('v_lshlrev_b32 v14, 16, v14')
    k('v_lshrrev_b32 v15, 2, v2')
    k('v_lshl_add_u32 v14, v15, 2, v14')
    k('v_mov_b32 v15, 0')
    k(f'buffer_store_dword v15, v14, s[16:19], s36 offen {SC}')
    k('s_lshl_b32 s36, s2, 10')
    k(f's_add_u32 s36, s36, {61 << 20}')
    k('v_lshlrev_b32 v14, 2, v0')
    k('v_mov_b32 v18, -1.0')
    k(f'buffer_store_dword v18, v14, s[16:19], s36 offen {SC}')
    k(f's_mov_b32 s35, {f32(-math.log2(math.e))}')
    for i in range(4):
        k(f'v_lshlrev_b32 v{24 + i}, 16, v{24 + i}')
    for i in range(4):
        k(f'v_mul_f32 v{28 + i}, s35, v{24 + i}')
    for i in range(4):
        k(f'v_exp_f32 v{28 + i}, v{28 + i}')
    for i in range(4):
        k(f'v_add_f32 v{28 + i}, 1.0, v{28 + i}')
    for i in range(4):
        k(f'v_rcp_f32 v{28 + i}, v{28 + i}')
    for i in range(4):
        k(f'v_mul_f32 v{24 + i}, v{24 + i}, v{28 + i}')
    for i in range(4):
        k(f'v_cvt_pk_bf16_f32 v{24 + i}, v{24 + i}, v{24 + i}')
    for i in range(4):
        k(f'v_and_b32 v{28 + i}, 0xffff0000, v{24 + i}')
    for i in range(4):
        for d in range(4):
            r = 32 + 4 * i + d
            k(f'v_lshlrev_b32 v12, 16, v{r}')
            k(f'v_and_b32 v13, 0xffff0000, v{r}')
            if i == 0:
                k(f'v_pk_mul_f32 {P(48 + 2 * d)}, v[12:13], {P(28)} op_sel_hi:[1,0]')
            else:
                b = 28 + (i & ~1)
                sel = 'op_sel:[0,1,0] op_sel_hi:[1,1,1]' if i & 1 else 'op_sel_hi:[1,0,1]'
                k(f'v_pk_fma_f32 {P(48 + 2 * d)}, v[12:13], {P(b)}, {P(48 + 2 * d)} {sel}')
    regs = list(range(48, 56)); tmps = list(range(56, 64))
    for r in regs:
        k(f'v_add_f32_dpp v{r}, v{r}, v{r} row_ror:8 row_mask:0xf bank_mask:0xf')
    for sw in ('v_permlane16_swap_b32', 'v_permlane32_swap_b32'):
        for r, t in zip(regs, tmps):
            k(f'v_mov_b32 v{t}, v{r}')
        for r, t in zip(regs, tmps):
            k(f'{sw} v{t}, v{r}')
        for r, t in list(zip(regs, tmps))[::2]:
            k(f'v_pk_add_f32 {P(r)}, {P(r)}, {P(t)}')
    k('v_lshlrev_b32 v12, 8, v1')
    k('v_lshl_add_u32 v12, v7, 5, v12')
    k('ds_write_b128 v12, v[48:51]')
    k('ds_write_b128 v12, v[52:55] offset:16')
    k('v_lshlrev_b32 v13, 2, v2')
    k('s_cmp_lg_u32 s26, 0')
    k(f's_cbranch_scc1 {k.L("nosc")}')
    k(f's_add_u32 s34, s33, {WS_SC}')
    for i in range(4):
        k(f'buffer_store_short v{24 + i}, v9, s[16:19], s34 offen offset:{i * 64} {SC}')
    k.label('nosc')
    k('s_waitcnt vmcnt(0) lgkmcnt(0)' if chain_out else 's_waitcnt lgkmcnt(0)')
    k('s_barrier')
    k('s_cmp_lg_u32 s20, 0')
    k(f's_cbranch_scc1 {k.L("fin")}')
    for w in range(4):
        k(f'ds_read_b32 v{56 + w}, v13 offset:{w * 256}')
    k('s_lshl_b32 s34, s27, 13')
    k('s_lshl_b32 s35, s26, 8')
    k('s_add_u32 s34, s34, s35')
    k(f's_add_u32 s34, s34, {WS_PART}')
    k('v_add_f32 v56, v56, v57')
    k('v_add_f32 v58, v58, v59')
    k('v_add_f32 v56, v56, v58')
    k(f'buffer_store_dword v56, v13, s[16:19], s34 offen {SC}')
    if chain_out:
        srd(k, 56, 8, 0, 256)
        k(f's_and_b32 s34, s2, {nsh - 1}')
        k(f's_lshl_b32 s34, s34, {8 - (nsh.bit_length() - 1)}')
        k('v_mov_b32 v57, 1')
        k('v_cmp_eq_u32 vcc, 0, v2')
        k('v_mov_b32 v58, 0x40000000')
        k('v_cndmask_b32 v58, v58, v2, vcc')
        k('s_waitcnt vmcnt(0)')
        k('buffer_atomic_add v57, v58, s[56:59], s34 offen sc1')
    k.label('fin')
    if dbg:
        if not chain_out: k('s_waitcnt vmcnt(0)')
        T.stamp()
        T.dump(10, 20, 4)
    if chain_out:
        k(f's_branch {chain_out}')
    k.label('end')
    k('s_endpgm')
    return k


def gen_ln(name, src_arg, src_off, dst_off, parts, seg_shift=0, seg_scale=0, post=None, dbg=False, slot=5, pfq=0, cpf=True, latepf=0):
    k = Kernel(name, vgprs=160 if parts else 96, sgprs=96 if dbg else 48, grid=256, block=320 if pfq else 256, lds=8192 if parts else 0)
    T = Stamper(k, dbg)
    k('s_cmp_ge_u32 s2, 256')
    k(f's_cbranch_scc1 {k.L("end")}')
    T.start()
    k(f's_load_dwordx2 s[4:5], s[0:1], {src_arg}')
    k(f's_load_dwordx2 s[10:11], s[0:1], {D_WS}')
    if latepf:
        k(f's_load_dwordx2 s[40:41], s[0:1], {A_WQ}')
    if pfq:
        k(f's_load_dwordx2 s[40:41], s[0:1], {A_WQ}')
        k(f's_load_dwordx4 s[44:47], s[0:1], {A_K}')
    if cpf:
        code_prefetch(k, 36, 94, 95, 0, 256, 4096)
    k('v_lshrrev_b32 v1, 6, v0')
    k('v_and_b32 v2, 63, v0')
    k('v_readfirstlane_b32 s20, v1')
    if pfq:
        k('s_cmp_eq_u32 s20, 4')
        k(f's_cbranch_scc1 {k.L("pfw")}')
    k('v_lshlrev_b32 v3, 4, v2')
    k('v_lshlrev_b32 v4, 5, v2')
    k('v_lshlrev_b32 v7, 4, v0')
    k('s_lshl_b32 s21, s2, 3')
    k('s_lshl_b32 s22, s20, 1')
    k('s_add_u32 s21, s21, s22')
    k('s_lshl_b32 s23, s21, 11')
    k('s_waitcnt lgkmcnt(0)')
    srd(k, 12, 4, src_off, 2048 * 2048)
    for r in range(2):
        for h in range(2):
            b = 8 + 8 * r + 4 * h
            k(f'buffer_load_dwordx4 v[{b}:{b + 3}], v3, s[12:15], s23 offen offset:{r * 2048 + h * 1024}')
    srd(k, 16, 10, 0, WS_PART + 65536)
    if parts:
        k(f's_mov_b32 s26, {WS_PART}')
        for p in range(8):
            for h in range(2):
                b = 96 + 8 * p + 4 * h
                k(f'buffer_load_dwordx4 v[{b}:{b + 3}], v7, s[16:19], s26 offen')
                k('s_add_u32 s26, s26, 4096')
    else:
        k(f's_movk_i32 s26, {seg_scale * 4096}')
        k(f's_movk_i32 s27, {seg_shift * 4096}')
        for h in range(2):
            for j in range(2):
                b = 24 + 8 * h + 4 * j
                k(f'buffer_load_dwordx4 v[{b}:{b + 3}], v4, s[16:19], s26 offen offset:{h * 2048 + j * 16}')
                k(f'buffer_load_dwordx4 v[{b + 16}:{b + 19}], v4, s[16:19], s27 offen offset:{h * 2048 + j * 16}')
    srd(k, 28, 10, dst_off, 2048 * 2048)
    k('v_lshrrev_b32 v5, 2, v2')
    k('v_lshlrev_b32 v5, 17, v5')
    k('v_and_b32 v6, 3, v2')
    k('v_lshl_add_u32 v5, v6, 8, v5')
    k('s_lshr_b32 s24, s21, 4')
    k('s_lshl_b32 s24, s24, 10')
    k('s_and_b32 s25, s21, 15')
    k('s_lshl_b32 s25, s25, 4')
    k('s_add_u32 s24, s24, s25')
    for r in range(2):
        for d in range(8):
            s = 8 + 8 * r + d
            o = 56 + 16 * r + 2 * d
            k(f'v_lshlrev_b32 v{o}, 16, v{s}')
            k(f'v_and_b32 v{o + 1}, 0xffff0000, v{s}')
    for r in range(2):
        o = 56 + 16 * r
        k(f'v_pk_add_f32 {P(8 + 2 * r)}, {P(o)}, {P(o + 2)}')
    for e in range(4, 16, 2):
        for r in range(2):
            o = 56 + 16 * r
            k(f'v_pk_add_f32 {P(8 + 2 * r)}, {P(8 + 2 * r)}, {P(o + e)}')
    for r in range(2):
        k(f'v_add_f32 v{8 + 2 * r}, v{8 + 2 * r}, v{9 + 2 * r}')
    wave_allreduce_add(k, [8, 10], [9, 11])
    k(f's_mov_b32 s34, {f32(-1.0 / 1024)}')
    for r in range(2):
        k(f'v_mul_f32 v{8 + 2 * r}, s34, v{8 + 2 * r}')
    for r in range(2):
        for e in range(0, 16, 2):
            o = 56 + 16 * r + e
            k(f'v_pk_add_f32 {P(o)}, {P(o)}, {P(8 + 2 * r)} op_sel_hi:[1,0]')
    for r in range(2):
        o = 56 + 16 * r
        k(f'v_pk_mul_f32 {P(8 + 2 * r)}, {P(o)}, {P(o)}')
    for e in range(2, 16, 2):
        for r in range(2):
            o = 56 + 16 * r
            k(f'v_pk_fma_f32 {P(8 + 2 * r)}, {P(o + e)}, {P(o + e)}, {P(8 + 2 * r)}')
    for r in range(2):
        k(f'v_add_f32 v{8 + 2 * r}, v{8 + 2 * r}, v{9 + 2 * r}')
    if parts:
        k(f's_mov_b32 s33, {f32(post)}')
        for p in range(1, 8):
            for e in range(0, 8, 2):
                k(f'v_pk_add_f32 {P(96 + e)}, {P(96 + e)}, {P(96 + 8 * p + e)}')
        if latepf:
            k(f's_mov_b32 s42, {latepf * 8192}')
            k('s_mov_b32 s43, 0x00020000')
            per = latepf * 8192 // 256
            k(f's_mul_i32 s37, s2, {per}')
            k('v_lshlrev_b32 v94, 7, v0')
            k(f'v_cmp_gt_u32 vcc, {per}, v94')
            k('v_mov_b32 v93, 0x40000000')
            k('v_cndmask_b32 v94, v93, v94, vcc')
            k('buffer_load_dword v92, v94, s[40:43], s37 offen')
        for e in range(0, 8, 2):
            k(f'v_cvt_pk_bf16_f32 v{104 + e // 2}, v{96 + e}, v{97 + e}')
        for e in range(0, 8, 2):
            k(f'v_lshlrev_b32 v{96 + e}, 16, v{104 + e // 2}')
            k(f'v_and_b32 v{97 + e}, 0xffff0000, v{104 + e // 2}')
        for e in range(4):
            k(f'v_mul_f32 v{96 + e}, s33, v{96 + e}')
            k(f'v_add_f32 v{100 + e}, 1.0, v{100 + e}')
        for e in range(0, 4, 2):
            k(f'v_cvt_pk_bf16_f32 v{104 + e // 2}, v{100 + e}, v{101 + e}')
        for e in range(0, 4, 2):
            k(f'v_lshlrev_b32 v{100 + e}, 16, v{104 + e // 2}')
            k(f'v_and_b32 v{101 + e}, 0xffff0000, v{104 + e // 2}')
        k('ds_write_b128 v7, v[96:99]')
        k('ds_write_b128 v7, v[100:103] offset:4096')
        k('s_waitcnt lgkmcnt(0)')
        k('s_barrier')
        for h in range(2):
            for j in range(2):
                k(f'ds_read_b128 v[{24 + 8 * h + 4 * j}:{27 + 8 * h + 4 * j}], v4 offset:{4096 + h * 2048 + j * 16}')
                k(f'ds_read_b128 v[{40 + 8 * h + 4 * j}:{43 + 8 * h + 4 * j}], v4 offset:{h * 2048 + j * 16}')
    wave_allreduce_add(k, [8, 10], [9, 11])
    k(f's_mov_b32 s34, {f32(1.0 / 1024)}')
    k(f'v_mov_b32 v12, {f32(1e-5)}')
    for r in range(2):
        k(f'v_fma_f32 v{8 + 2 * r}, v{8 + 2 * r}, s34, v12')
    for r in range(2):
        k(f'v_rsq_f32 v{8 + 2 * r}, v{8 + 2 * r}')
    if post is not None:
        for r in range(2):
            k(f'v_mul_f32 v{8 + 2 * r}, s33, v{8 + 2 * r}')
    for r in range(2):
        for e in range(0, 16, 2):
            o = 56 + 16 * r + e
            k(f'v_pk_mul_f32 {P(o)}, {P(o)}, {P(8 + 2 * r)} op_sel_hi:[1,0]')
        for e in range(0, 16, 2):
            o = 56 + 16 * r + e
            k(f'v_pk_fma_f32 {P(o)}, {P(o)}, {P(24 + e)}, {P(40 + e)}')
        for d in range(8):
            o = 56 + 16 * r + 2 * d
            k(f'v_cvt_pk_bf16_f32 v{56 + 16 * r + d}, v{o}, v{o + 1}')
        k(f's_add_u32 s35, s24, {16 * r}')
        k(f's_add_u32 s36, s24, {16 * r + 16 * 131072}')
        o = 56 + 16 * r
        k(f'buffer_store_dwordx4 v[{o}:{o + 3}], v5, s[28:31], s35 offen')
        k(f'buffer_store_dwordx4 v[{o + 4}:{o + 7}], v5, s[28:31], s36 offen')
    if dbg:
        if not latepf: k('s_waitcnt vmcnt(0)')
        T.stamp()
        T.dump(10, 20, slot)
    k.label('end')
    k('s_endpgm')
    if pfq:
        k.label('pfw')
        k('s_mov_b32 s42, %d' % (1024 * 8192))
        k('s_mov_b32 s43, 0x00020000')
        k('s_lshl_b32 s37, s2, 13')
        k('v_lshlrev_b32 v7, 7, v2')
        k('s_waitcnt lgkmcnt(0)')
        for i in range(4):
            k(f'buffer_load_dword v8, v7, s[40:43], s37 offen')
            k(f's_add_u32 s37, s37, {256 * 8192}')
        if pfq > 1:
            k('s_bitcmp1_b32 s2, 2')
            k('s_cselect_b32 s40, s46, s44')
            k('s_cselect_b32 s41, s47, s45')
            k('s_mov_b32 s42, %d' % (32 * 524288))
            k('s_lshr_b32 s37, s2, 3')
            k('s_lshl_b32 s37, s37, 19')
            k('s_and_b32 s38, s2, 3')
            k('s_lshl_b32 s38, s38, 13')
            k('s_add_u32 s37, s37, s38')
            k('buffer_load_dword v8, v7, s[40:43], s37 offen')
        k('s_barrier')
        k('s_endpgm')
    return k
```

```python
from common import *
import math


def r4(f, b):
    return f'{f}[{b}:{b + 3}]'


def mf(d, a, b, c):
    return f'v_mfma_f32_16x16x32_bf16 {d}, {a}, {b}, {c}'


def _cls(t):
    if t.startswith('s_'):
        return 0
    if t.startswith(('ds_', 'buffer_', 'global_')):
        return 1
    return 2


def lane_decomp(k):
    k('v_lshrrev_b32 v2, 6, v0')
    k('v_and_b32 v1, 63, v0')
    k('v_readfirstlane_b32 s30, v2')
    k('v_and_b32 v2, 15, v1')
    k('v_lshrrev_b32 v3, 4, v1')


def mainloop(k, NST, R, D, NT, MT, KS, WB, PD, acc, wfrag, afrag, wread, dma_ops, act_ops, adv_ops, T=None, need_lgkm=True, pf=None, fill=None, chain=None):
    assert NST % R == 0
    nv = lambda ops: sum(1 for o in ops if o.startswith('buffer_'))
    per_stage = dma_ops(0) + act_ops(0) + adv_ops
    ndma, nact = nv(dma_ops(0)), nv(act_ops(0))
    npf = lambda st: (nv(pf[2]) if (pf and st % pf[0] == 0) else 0)
    if pf:
        for _ in range(pf[1]):
            for o in pf[2]:
                k(o)
    fill = list(fill or [])
    if chain:
        nf = chain[2]
        for _ in range(min(nf, len(fill))):
            k(fill.pop(0))
        chain[0]()
        nper = -(-len(fill) // (D * ndma))
        for st in range(D):
            for o in dma_ops(st % R) + adv_ops:
                k(o)
                if o.startswith('buffer_'):
                    for _ in range(nper):
                        if fill:
                            k(fill.pop(0))
        for o in fill:
            k(o)
        chain[1]()
        for g in range(PD):
            for s in range(KS):
                for h in range(2):
                    k(wread(g, s, h, 0, g % WB))
        for st in range(D):
            for o in act_ops(st % R):
                k(o)
            if st == 0 and pf and D >= 2:
                for _ in range(ndma):
                    k(pf[2][0])
        yield 'after_issue'
    else:
        nper = -(-len(fill) // max(1, D * (ndma + nact) - 4))
        cnt = 0
        for st in range(D):
            for o in dma_ops(st % R) + act_ops(st % R) + adv_ops:
                k(o)
                if o.startswith('buffer_'):
                    cnt += 1
                    if cnt > 4:
                        for _ in range(nper):
                            if fill:
                                k(fill.pop(0))
        for o in fill:
            k(o)
        yield 'after_issue'
        k(f's_waitcnt vmcnt({min(63, nact + (D - 1) * (ndma + nact))})')
        k('s_barrier')
    if T: T.stamp()
    for g in range(0 if chain else PD):
        for s in range(KS):
            for h in range(2):
                k(wread(g, s, h, 0, g % WB))
    k('s_mov_b32 s34, 0')
    k('.p2align 6')
    k.label('loop')
    GL = MT * KS
    BG = NT - PD + (1 if need_lgkm else 0)
    assert (NT * R) % WB == 0
    for st in range(R):
        gaps = {}

        def put(g, op):
            gaps.setdefault(g, []).append(op)
        M = []
        pend = []
        busy = set()
        for nt in range(NT):
            G = st * NT + nt
            tgt = nt + PD
            rd = [wread(tgt % NT, s, h, (st + tgt // NT) % R, (G + PD) % WB) for s in range(KS) for h in range(2)]
            if tgt >= NT and nt < BG:
                pend += rd
                rd = []
            elif tgt >= NT:
                rd = pend + rd
                pend = []
            first = 1 if nt == BG else 0
            step = 1 if len(rd) * 2 > GL - first else 2
            for i, r in enumerate(rd):
                g = nt * GL + min(first + i * step, GL - 1)
                put(g, r)
                busy.add(g)
            for mt in range(MT):
                for s in range(KS):
                    d = acc(nt, mt)
                    M.append(mf(d, wfrag(G % WB, s), afrag(st, mt, s), d))
        assert not pend
        side = dma_ops((st + D) % R) + act_ops((st + D) % R) + adv_ops
        if pf and st % pf[0] == 0:
            side = pf[2] + side
        limit = NT * GL - 4 if D >= 2 else (NT * GL * 3) // 4
        free = [g for g in range(limit) if g not in busy and g not in (BG * GL - 1, BG * GL)]
        nvm = nv(side)
        if len(free) < 2 * nvm:
            free = [g for g in range(limit) if g not in (BG * GL - 1, BG * GL)]
        pos = [free[1 + (i * (len(free) - 1)) // nvm] for i in range(nvm)]
        vi = 0
        for i, o in enumerate(side):
            if o.startswith('buffer_'):
                put(pos[vi], o)
                vi += 1
            else:
                g = pos[vi] - 1 if vi < nvm else pos[-1] + 1
                if vi > 0:
                    g = max(g, pos[vi - 1] + (1 if vi >= nvm else 0))
                    if g == pos[vi - 1]:
                        put(g, ('late', o))
                        continue
                put(g, o)
        nbefore = sum(1 for p in pos if p < BG * GL - 1) - npf(st)
        assert nbefore >= 0 and (D >= 2 or nbefore >= ndma)
        w = f's_waitcnt vmcnt({min(63, nact + (D - 2) * (ndma + nact) + nbefore)})' + (' lgkmcnt(0)' if need_lgkm else '')
        put(BG * GL - 1, w)
        put(BG * GL, 's_barrier')
        if st == R - 1:
            put(NT * GL - 3, 's_add_u32 s34, s34, 1')
            put(NT * GL - 2, f's_cmp_lt_u32 s34, {NST // R}')
        for i, m in enumerate(M):
            k(m)
            ops = gaps.get(i, [])
            early = sorted([o for o in ops if not isinstance(o, tuple)], key=_cls)
            for o in early:
                k(o)
            for o in ops:
                if isinstance(o, tuple):
                    k(o[1])
    k(f's_cbranch_scc1 {k.L("loop")}')
    if T: T.stamp()


def gen_gateup(dbg=False, cpf=True, stflag='sc1', D=2):
    k = Kernel('gateup_kernel', vgprs=256, agprs=256, sgprs=96, grid=224, block=256, lds=128 * 1024)
    T = Stamper(k, dbg)
    k('s_cmp_ge_u32 s2, 224')
    k(f's_cbranch_scc1 {k.L("end")}')
    T.start()
    k(f's_load_dwordx4 s[4:7], s[0:1], {B_WG}')
    k(f's_load_dwordx2 s[44:45], s[0:1], {D_WS}')
    if cpf:
        code_prefetch(k, 88, 60, 61, 0, 256, 32768)
    lane_decomp(k)
    k('s_and_b32 s40, s2, 7')
    k('s_lshr_b32 s41, s2, 3')
    k('s_and_b32 s42, s40, 1')
    k('s_lshl_b32 s42, s42, 2')
    k('s_and_b32 s43, s41, 3')
    k('s_add_u32 s42, s42, s43')
    k('s_lshr_b32 s43, s40, 1')
    k('s_mul_i32 s43, s43, 7')
    k('s_lshr_b32 s46, s41, 2')
    k('s_add_u32 s43, s43, s46')
    k('s_lshl_b32 s46, s43, 8')
    k('s_lshl_b32 s33, s30, 12')
    V_WD, V_HD, V_WA = 8, 12, 16
    k('s_mul_i32 s47, s30, %d' % (16 * 7168))
    k('s_movk_i32 s48, 7168')
    k('v_mul_lo_u32 v4, v3, s48')
    k('v_add_u32 v4, s47, v4')
    for j in range(4):
        k(f'v_add_u32 v5, {4 * (j >> 1)}, v3')
        k('v_lshlrev_b32 v5, 1, v5')
        k('v_xor_b32 v5, v5, v2')
        k('v_lshl_add_u32 v5, v5, 4, v4')
        k(f'v_add_u32 v{V_WD + j}, {4 * j * 7168 - 1024 * j}, v5')
    k(f'v_lshlrev_b32 v{V_HD}, 4, v1')
    k('s_waitcnt lgkmcnt(0)')
    srd(k, 8, 4, 's46', 1024 * 7168 - 27 * 256)
    srd(k, 12, 6, 's46', 1024 * 7168 - 27 * 256)
    srd(k, 16, 44, WS_H2, 2048 * 2048)
    srd(k, 20, 44, WS_ACT, 2048 * 7168)
    k('s_lshl_b32 s47, s42, 2')
    k('s_add_u32 s47, s47, s30')
    k('s_lshl_b32 s47, s47, 12')
    k('s_mov_b32 s31, 0')
    k('s_mov_b32 s32, s47')

    def dma_ops(slot):
        ops = []
        for mat in range(2):
            ops.append(f's_add_u32 m0, s33, {mat * 65536 + slot * 16384}')
            for j in range(4):
                ops.append(f'buffer_load_dwordx4 v{V_WD + j}, s[{8 + 4 * mat}:{11 + 4 * mat}], s31 offen offset:{j * 1024} lds')
        return ops

    def afrag(slot, mt, s):
        return r4('a', 128 + slot * 32 + (mt * 2 + s) * 4)

    def act_ops(slot):
        ops = []
        for s in range(2):
            for mt in range(4):
                ops.append(f'buffer_load_dwordx4 {afrag(slot, mt, s)}, v{V_HD}, s[16:19], s32 offen offset:{mt * 1024}')
            ops.append('s_add_u32 s32, s32, 131072')
        return ops
    adv = [f's_add_u32 s31, s31, {64 * 7168}']

    def acc(nt, mt):
        return r4('v', 128 + (nt * 4 + mt) * 4) if nt < 8 else r4('a', ((nt - 8) * 4 + mt) * 4)

    def wfrag(buf, s):
        return r4('v', 64 + buf * 8 + s * 4)

    def wread(nt, s, h, slot, buf):
        b = 64 + buf * 8 + s * 4 + h * 2
        return f'ds_read_b64_tr_b16 v[{b}:{b + 1}], v{V_WA + nt} offset:{slot * 16384 + s * 8192 + h * 1024}'

    fill = []
    f = fill.append
    f('v_lshrrev_b32 v4, 2, v2')
    f('v_and_b32 v5, 1, v3')
    f('v_lshl_or_b32 v5, v5, 2, v4')
    f('v_lshlrev_b32 v5, 1, v5')
    f('v_bfe_u32 v6, v2, 1, 1')
    f('v_xor_b32 v5, v5, v6')
    f('v_lshl_add_u32 v4, v3, 3, v4')
    f('v_lshlrev_b32 v4, 8, v4')
    f('v_and_b32 v6, 1, v2')
    f('v_lshl_add_u32 v4, v6, 3, v4')
    for nt in range(8):
        f(f'v_xor_b32 v6, {2 * nt}, v5')
        f(f'v_lshl_add_u32 v{V_WA + nt}, v6, 4, v4')
        f(f'v_add_u32 v{V_WA + 8 + nt}, 0x10000, v{V_WA + nt}')
    for i in range(0, 128, 2):
        f(f'v_mov_b64 v[{128 + i}:{129 + i}], 0')
    for i in range(128):
        f(f'v_accvgpr_write_b32 a{i}, 0')
    gen = mainloop(k, 16, 4, D, 16, 4, 2, 4, 3, acc, wfrag, afrag, wread, dma_ops, act_ops, adv, T, need_lgkm=(D == 3), fill=fill)
    for _ in gen:
        pass
    c0 = -2.0 * math.sqrt(2.0 / math.pi) * math.log2(math.e)
    c1 = c0 * 0.044715
    k(f'v_mov_b32 v8, {f32(c0)}')
    k(f'v_mov_b32 v9, {f32(c0)}')
    k(f'v_mov_b32 v10, {f32(c1)}')
    k(f'v_mov_b32 v11, {f32(c1)}')
    k('v_mov_b32 v14, 1.0')
    k('v_mov_b32 v15, 1.0')
    k('s_lshl_b32 s48, s43, 19')
    k('s_add_u32 s48, s48, s47')
    for j in range(4):
        k(f's_add_u32 s49, s48, {j * 131072}')
        for mt in range(4):
            tb = 32 + ((j * 4 + mt) & 1) * 24
            G = [128 + ((2 * j + h) * 4 + mt) * 4 + r for h in range(2) for r in range(4)]
            U = [((2 * j + h) * 4 + mt) * 4 + r for h in range(2) for r in range(4)]
            P = lambda b: f'v[{b}:{b + 1}]'
            for e in range(8):
                k(f'v_accvgpr_read_b32 v{tb + e}, a{U[e]}')
            for e in range(0, 8, 2):
                k(f'v_pk_mul_f32 {P(tb + 8 + e)}, {P(G[e])}, {P(G[e])}')
            for e in range(0, 8, 2):
                k(f'v_pk_fma_f32 {P(tb + 8 + e)}, {P(tb + 8 + e)}, v[10:11], v[8:9]')
            for e in range(0, 8, 2):
                k(f'v_pk_mul_f32 {P(tb + 8 + e)}, {P(tb + 8 + e)}, {P(G[e])}')
            for e in range(8):
                k(f'v_exp_f32 v{tb + 8 + e}, v{tb + 8 + e}')
            for e in range(0, 8, 2):
                k(f'v_pk_mul_f32 {P(tb + e)}, {P(tb + e)}, {P(G[e])}')
            for e in range(0, 8, 2):
                k(f'v_pk_add_f32 {P(tb + 8 + e)}, {P(tb + 8 + e)}, v[14:15]')
            for e in range(8):
                k(f'v_rcp_f32 v{tb + 8 + e}, v{tb + 8 + e}')
            for e in range(0, 8, 2):
                k(f'v_pk_mul_f32 {P(tb + e)}, {P(tb + e)}, {P(tb + 8 + e)}')
            for e in range(4):
                k(f'v_cvt_pk_bf16_f32 v{tb + 16 + e}, v{tb + 2 * e}, v{tb + 2 * e + 1}')
            k(f'buffer_store_dwordx4 {r4("v", tb + 16)}, v{V_HD}, s[20:23], s49 offen offset:{mt * 1024} {stflag}')
    if dbg:
        k('s_waitcnt vmcnt(0)')
    T.stamp()
    T.dump(44, 30, 2)
    k.label('end')
    k('s_endpgm')
    return k


def gen_gateup7(dbg=False, cpf=2, stflag='sc1', D=2, sflag2='', recpf=True, chain_in=False, chain_out=None, nf=0, wsleep=3, a3=True, KS=2):
    RR = 4 if KS == 2 else 2
    if KS == 4: D = 1
    SS = KS * 8192
    k = Kernel('gateup_kernel', vgprs=256, agprs=256, sgprs=96, grid=256, block=256, lds=128 * 1024)
    T = Stamper(k, dbg)
    if not chain_in:
        k('s_cmp_ge_u32 s2, 256')
        k(f's_cbranch_scc1 {k.L("end")}')
    SC = 'sc1' if chain_in else ''
    if chain_out:
        sflag2 = 'sc1'
    T.start()
    k(f's_load_dwordx4 s[4:7], s[0:1], {B_WG}')
    k(f's_load_dwordx2 s[44:45], s[0:1], {D_WS}')
    if cpf == 1:
        code_prefetch(k, 88, 60, 61, 0, 256, 32768)
    lane_decomp(k)
    if cpf == 2:
        code_prefetch_light(k, 88, 59, 60, 6, 61, 1, 30, 32)
    k('s_and_b32 s40, s2, 7')
    k('s_lshr_b32 s41, s2, 3')
    k('s_and_b32 s42, s40, 1')
    k('s_lshl_b32 s42, s42, 2')
    k('s_and_b32 s43, s41, 3')
    k('s_add_u32 s42, s42, s43')
    k('s_lshr_b32 s43, s40, 1')
    k('s_lshl_b32 s43, s43, 3')
    k('s_lshr_b32 s46, s41, 2')
    k('s_add_u32 s43, s43, s46')
    k('s_mul_i32 s46, s43, 224')
    k('s_and_b32 s39, s43, 1')
    k('s_lshl_b32 s33, s30, 12')
    V_WD, V_HD, V_WA = 8, 12, 16
    k('s_mul_i32 s47, s30, %d' % (16 * 7168))
    k('s_movk_i32 s48, 7168')
    k('v_mul_lo_u32 v4, v3, s48')
    k('v_mov_b32 v7, 0x40000000')
    k('v_add_u32 v4, s47, v4')
    for j in range(4):
        k(f'v_add_u32 v5, {4 * (j >> 1)}, v3')
        k('v_lshlrev_b32 v5, 1, v5')
        k('v_xor_b32 v5, v5, v2')
        k('v_cmp_gt_u32 vcc, 14, v5')
        k('v_lshl_add_u32 v5, v5, 4, v4')
        k(f'v_add_u32 v5, {4 * j * 7168 - 1024 * j}, v5')
        k(f'v_cndmask_b32 v{V_WD + j}, v7, v5, vcc')
    k(f'v_lshlrev_b32 v{V_HD}, 4, v1')
    k('s_waitcnt lgkmcnt(0)')
    srd(k, 8, 4, 's46', 1023 * 7168 + 224)
    srd(k, 12, 6, 's46', 1023 * 7168 + 224)
    srd(k, 16, 44, WS_H2, 2048 * 2048)
    srd(k, 20, 44, WS_ACT, 2048 * 7168)
    k('s_lshl_b32 s47, s42, 2')
    k('s_add_u32 s47, s47, s30')
    k('s_lshl_b32 s47, s47, 12')
    k('s_mov_b32 s31, 0')
    k('s_mov_b32 s32, s47')

    def dma_ops(slot):
        ops = []
        for hh in range(KS // 2):
            for mat in range(2):
                ops.append(f's_add_u32 m0, s33, {mat * 65536 + slot * SS + hh * 16384}')
                for j in range(4):
                    ops.append(f'buffer_load_dwordx4 v{V_WD + j}, s[{8 + 4 * mat}:{11 + 4 * mat}], s31 offen offset:{j * 1024} lds')
            if hh + 1 < KS // 2:
                ops.append(f's_add_u32 s31, s31, {64 * 7168}')
        return ops

    def afrag(slot, mt, s):
        return r4('a', 128 + slot * 16 * KS + (mt * KS + s) * 4)

    def act_ops(slot):
        ops = []
        for s in range(KS):
            for mt in range(4):
                ops.append(f'buffer_load_dwordx4 {afrag(slot, mt, s)}, v{V_HD}, s[16:19], s32 offen offset:{mt * 1024} {SC}')
            ops.append('s_add_u32 s32, s32, 131072')
        return ops
    adv = [f's_add_u32 s31, s31, {64 * 7168}']

    def acc(nt, mt):
        return r4('v', 128 + (nt * 4 + mt) * 4) if nt < 7 else r4('a', ((nt - 7) * 4 + mt) * 4)

    def wfrag(buf, s):
        return r4('v', 64 + buf * 4 * KS + s * 4)

    def wread(nt, s, h, slot, buf):
        b = 64 + buf * 4 * KS + s * 4 + h * 2
        return f'ds_read_b64_tr_b16 v[{b}:{b + 1}], v{V_WA + nt} offset:{slot * SS + s * 8192 + h * 1024}'

    fill = []
    f = fill.append
    f('v_lshrrev_b32 v4, 2, v2')
    f('v_and_b32 v5, 1, v3')
    f('v_lshl_or_b32 v5, v5, 2, v4')
    f('v_lshlrev_b32 v5, 1, v5')
    f('v_bfe_u32 v6, v2, 1, 1')
    f('v_xor_b32 v5, v5, v6')
    f('v_lshl_add_u32 v4, v3, 3, v4')
    f('v_lshlrev_b32 v4, 8, v4')
    f('v_and_b32 v6, 1, v2')
    f('v_lshl_add_u32 v4, v6, 3, v4')
    for nt in range(7):
        f(f's_mul_i32 s50, s39, {2 if nt < 6 else -12}')
        f(f's_add_u32 s50, s50, {2 * nt}')
        f('v_xor_b32 v6, s50, v5')
        f(f'v_lshl_add_u32 v{V_WA + nt}, v6, 4, v4')
        f(f'v_add_u32 v{V_WA + 7 + nt}, 0x10000, v{V_WA + nt}')
    for i in range(0, 112, 2):
        f(f'v_mov_b64 v[{128 + i}:{129 + i}], 0')
    for i in range(112):
        f(f'v_accvgpr_write_b32 a{i}, 0')
    pf = None
    if recpf and cpf:
        for o in ['s_lshl_b32 s59, s41, 2', 's_add_u32 s59, s59, s30', 's_and_b32 s59, s59, 31', 's_lshl_b32 s59, s59, 9',
                  'v_lshlrev_b32 v60, 7, v1', 'v_cmp_gt_u32 vcc, 4, v1', 'v_cndmask_b32 v60, v7, v60, vcc']:
            f(o)
        pf = (RR, 0, ['buffer_load_dword v61, v60, s[88:91], s59 offen'])
    chain = None
    if chain_in:
        srd(k, 24, 44, 0, 64 << 20)

        def c1():
            k('s_lshl_b32 s52, s42, 7')
            k(f's_add_u32 s52, s52, {WS_FLG3 + 1024}')
            k('v_and_b32 v41, 31, v1')
            k('v_lshlrev_b32 v41, 2, v41')
            phase_wait(k, 24, 30, 41, 40, 52, 53, sleep=wsleep)
            if dbg: T.stamp()
        chain = (lambda: phase_publish(k, 24, 30, 36, 37), c1, nf)
    gen = mainloop(k, 32 // KS, RR, D, 14, 4, KS, 4, 3 if KS == 2 else 2, acc, wfrag, afrag, wread, dma_ops, act_ops, adv, T, need_lgkm=(RR < D + 2), fill=fill, pf=pf, chain=chain)
    for _ in gen:
        pass
    k('s_waitcnt vmcnt(0)')
    c0 = -2.0 * math.sqrt(2.0 / math.pi) * math.log2(math.e)
    c1 = c0 * 0.044715
    k(f'v_mov_b32 v8, {f32(c0)}')
    k(f'v_mov_b32 v9, {f32(c0)}')
    k(f'v_mov_b32 v10, {f32(c1)}')
    k(f'v_mov_b32 v11, {f32(c1)}')
    k('v_mov_b32 v14, 1.0')
    k('v_mov_b32 v15, 1.0')
    if not a3:
        k('s_mul_i32 s48, s43, 7')
        k('s_cmp_eq_u32 s39, 0')
        k('s_cselect_b32 s51, 6, 0')
        k('s_add_u32 s51, s51, s48')
        k('s_lshr_b32 s51, s51, 1')
        k('s_lshl_b32 s51, s51, 17')
        k('s_add_u32 s51, s51, s47')
        k('s_lshl_b32 s52, s39, 3')
        k('s_add_u32 s51, s51, s52')
        k('s_add_u32 s48, s48, s39')
        k('s_lshr_b32 s48, s48, 1')
        k('s_lshl_b32 s48, s48, 17')
        k('s_add_u32 s48, s48, s47')
    else:
        k('s_lshr_b32 s48, s43, 4')
        k('s_mul_i32 s48, s48, 56')
        k('s_and_b32 s52, s43, 15')
        k('s_lshr_b32 s51, s52, 1')
        k('s_add_u32 s51, s51, s48')
        k('s_add_u32 s51, s51, 48')
        k('s_lshl_b32 s51, s51, 17')
        k('s_add_u32 s51, s51, s47')
        k('s_lshl_b32 s53, s39, 10')
        k('s_add_u32 s51, s51, s53')
        k('s_mul_i32 s52, s52, 3')
        k('s_add_u32 s48, s48, s52')
        k('s_lshl_b32 s48, s48, 17')
        k('s_add_u32 s48, s48, s47')
    P = lambda b: f'v[{b}:{b + 1}]'
    cnt = 0
    for j in (3, 0, 1, 2):
        nh = 2 if j < 3 else 1
        if j < 3:
            k(f's_add_u32 s49, s48, {j * 131072}')
        for mt in range(4) if j < 3 else range(0, 4, 2):
            tb = 32 + (cnt & 1) * 24
            cnt += 1
            if j < 3:
                G = [128 + ((2 * j + h) * 4 + mt) * 4 + r for h in range(2) for r in range(4)]
                U = [((2 * j + h) * 4 + mt) * 4 + r for h in range(2) for r in range(4)]
            else:
                G = [128 + (6 * 4 + mt + h) * 4 + r for h in range(2) for r in range(4)]
                U = [(6 * 4 + mt + h) * 4 + r for h in range(2) for r in range(4)]
            for e in range(8):
                k(f'v_accvgpr_read_b32 v{tb + e}, a{U[e]}')
            for e in range(0, 8, 2):
                k(f'v_pk_mul_f32 {P(tb + 8 + e)}, {P(G[e])}, {P(G[e])}')
            for e in range(0, 8, 2):
                k(f'v_pk_fma_f32 {P(tb + 8 + e)}, {P(tb + 8 + e)}, v[10:11], v[8:9]')
            for e in range(0, 8, 2):
                k(f'v_pk_mul_f32 {P(tb + 8 + e)}, {P(tb + 8 + e)}, {P(G[e])}')
            for e in range(8):
                k(f'v_exp_f32 v{tb + 8 + e}, v{tb + 8 + e}')
            for e in range(0, 8, 2):
                k(f'v_pk_mul_f32 {P(tb + e)}, {P(tb + e)}, {P(G[e])}')
            for e in range(0, 8, 2):
                k(f'v_pk_add_f32 {P(tb + 8 + e)}, {P(tb + 8 + e)}, v[14:15]')
            for e in range(8):
                k(f'v_rcp_f32 v{tb + 8 + e}, v{tb + 8 + e}')
            for e in range(0, 8, 2):
                k(f'v_pk_mul_f32 {P(tb + e)}, {P(tb + e)}, {P(tb + 8 + e)}')
            for e in range(4):
                k(f'v_cvt_pk_bf16_f32 v{tb + 16 + e}, v{tb + 2 * e}, v{tb + 2 * e + 1}')
            if j < 3:
                k(f'buffer_store_dwordx4 {r4("v", tb + 16)}, v{V_HD}, s[20:23], s49 offen offset:{mt * 1024} {stflag}')
            elif a3:
                k(f'buffer_store_dwordx4 {r4("v", tb + 16)}, v{V_HD}, s[20:23], s51 offen offset:{mt * 1024} {stflag}')
            else:
                for h in range(2):
                    k(f'buffer_store_dwordx2 {P(tb + 16 + 2 * h)}, v{V_HD}, s[20:23], s51 offen offset:{(mt + h) * 1024} {sflag2}')
    if dbg:
        k('s_waitcnt vmcnt(0)')
    T.stamp()
    T.dump(44, 30, 2)
    if chain_out:
        k('s_lshl_b32 s3, s42, 5')
        k('s_add_u32 s3, s3, s43')
        k('s_lshl_b32 s3, s3, 2')
        k(f's_add_u32 s3, s3, {WS_FLG3 + 2048}')
        k(f's_branch {chain_out}')
    k.label('end')
    k('s_endpgm')
    return k


def gen_small(name, K, w_arg, act_off, res_arg, res_off, out_arg, out_off, gate_seg, R, D, slot_dbg, dbg=False, pfd=0, same=False):
    NST = K // 128
    EPI = R * 16384
    k = Kernel(name, vgprs=160, agprs=256, sgprs=96, grid=256, block=256, lds=R * 16384 + 4 * 8704 if R * 16384 + 4 * 8704 <= 163840 else R * 16384)
    alias_epi = R * 16384 + 4 * 8704 > 163840
    if alias_epi:
        EPI = 0
    T = Stamper(k, dbg)
    k('s_cmp_ge_u32 s2, 256')
    k(f's_cbranch_scc1 {k.L("end")}')
    T.start()
    k(f's_load_dwordx2 s[4:5], s[0:1], {w_arg}')
    k(f's_load_dwordx2 s[6:7], s[0:1], {res_arg}')
    k(f's_load_dwordx2 s[28:29], s[0:1], {out_arg}')
    k(f's_load_dwordx2 s[44:45], s[0:1], {D_WS}')
    lane_decomp(k)
    k('s_and_b32 s40, s2, 7')
    k('s_lshr_b32 s41, s2, 3')
    k('s_lshr_b32 s42, s40, 1')
    k('s_lshl_b32 s42, s42, 2')
    k('s_and_b32 s43, s41, 3')
    k('s_add_u32 s42, s42, s43')
    k('s_and_b32 s43, s40, 1')
    k('s_lshl_b32 s43, s43, 3')
    k('s_lshr_b32 s46, s41, 2')
    k('s_add_u32 s43, s43, s46')
    if same:
        k('s_mov_b32 s42, 0')
        k('s_mov_b32 s43, 0')
    k('s_lshl_b32 s46, s43, 7')
    k('s_lshl_b32 s33, s30, 12')
    V_WD, V_HD, V_WA = 8, 12, 16
    k('v_lshrrev_b32 v4, 3, v1')
    k('v_lshlrev_b32 v4, 11, v4')
    k('s_lshl_b32 s47, s30, 16')
    k('v_add_u32 v4, s47, v4')
    k('v_and_b32 v5, 7, v1')
    k('v_lshlrev_b32 v6, 1, v3')
    k('v_xor_b32 v5, v5, v6')
    k('v_lshl_add_u32 v4, v5, 4, v4')
    for j in range(4):
        k(f'v_add_u32 v{V_WD + j}, {j * (16384 - 1024)}, v4')
    k(f'v_lshlrev_b32 v{V_HD}, 4, v1')
    k('s_waitcnt lgkmcnt(0)')
    if dbg == 2: T.stamp()
    srd(k, 8, 4, 's46', K * 2048 - 15 * 128)
    srd(k, 16, 44, act_off, 2048 * K * 2)
    srd(k, 12, 6, res_off, 2048 * 2048)
    srd(k, 20, 28, out_off, 2048 * 2048)
    srd(k, 24, 44, WS_MOD, 6144 * 4)
    k('s_lshl_b32 s47, s42, 2')
    k('s_add_u32 s47, s47, s30')
    k('s_lshl_b32 s32, s47, 11')
    k('s_mov_b32 s31, 0')

    def dma_ops(slot):
        ops = [f's_add_u32 m0, s33, {slot * 16384}']
        for j in range(4):
            ops.append(f'buffer_load_dwordx4 v{V_WD + j}, s[8:11], s31 offen offset:{j * 1024} lds')
        return ops

    def afrag(slot, mt, s):
        return r4('a', slot * 32 + (mt * 4 + s) * 4)

    def act_ops(slot):
        ops = []
        for s in range(4):
            for mt in range(2):
                ops.append(f'buffer_load_dwordx4 {afrag(slot, mt, s)}, v{V_HD}, s[16:19], s32 offen offset:{mt * 1024}')
            ops.append('s_add_u32 s32, s32, 131072')
        return ops
    adv = [f's_add_u32 s31, s31, {128 * 2048}']

    def acc(nt, mt):
        return r4('v', 128 + (nt * 2 + mt) * 4)

    def wfrag(buf, s):
        return r4('v', 64 + buf * 16 + s * 4)

    def wread(nt, s, h, slot, buf):
        b = 64 + buf * 16 + s * 4 + h * 2
        return f'ds_read_b64_tr_b16 v[{b}:{b + 1}], v{V_WA + nt + 4 * (slot // 4)} offset:{(slot % 4) * 16384 + s * 4096 + h * 2048}'

    pf = None
    if pfd:
        k('s_cmp_lt_u32 s41, 16')
        k('s_cselect_b32 s52, s16, s4')
        k('s_cselect_b32 s53, s17, s5')
        k(f's_mov_b32 s54, {K * 2048}')
        k(f's_cselect_b32 s54, {2048 * K * 2}, s54')
        k('s_mov_b32 s55, 0x00020000')
        k(f's_mov_b32 s57, {128 * 2048}')
        k(f's_cselect_b32 s57, {4 * 131072}, s57')
        k('s_lshr_b32 s58, s41, 2')
        k('s_lshl_b32 s58, s58, 17')
        k('s_lshr_b32 s59, s40, 1')
        k('s_lshl_b32 s59, s59, 15')
        k('s_add_u32 s58, s58, s59')
        k('s_and_b32 s59, s41, 3')
        k('s_lshl_b32 s59, s59, 13')
        k('s_add_u32 s58, s58, s59')
        k('s_and_b32 s59, s41, 15')
        k('s_lshl_b32 s59, s59, 14')
        k('s_and_b32 s60, s40, 1')
        k('s_lshl_b32 s60, s60, 10')
        k('s_add_u32 s59, s59, s60')
        k('s_cmp_lt_u32 s41, 16')
        k('s_cselect_b32 s56, s58, s59')
        k('s_mul_i32 s58, s57, s30')
        k('s_add_u32 s56, s56, s58')
        k('s_lshl_b32 s57, s57, 2')
        k('v_lshlrev_b32 v28, 7, v1')
        k('v_lshrrev_b32 v4, 3, v1')
        k('v_lshlrev_b32 v4, 11, v4')
        k('v_and_b32 v5, 7, v1')
        k('v_lshl_add_u32 v4, v5, 7, v4')
        k('s_cmp_lt_u32 s41, 16')
        k('s_cselect_b64 vcc, -1, 0')
        k('v_cndmask_b32 v28, v4, v28, vcc')
        one = ['buffer_load_dword v29, v28, s[52:55], s56 offen', 's_add_u32 s56, s56, s57']
        if R % 4 == 0:
            pf = (4, pfd // 4, one)
        else:
            pf = (R, (pfd + 7) // 8, one + one)
    gen = mainloop(k, NST, R, D, 4, 2, 4, 4, 2, acc, wfrag, afrag, wread, dma_ops, act_ops, adv, T, need_lgkm=(R < D + 2), pf=pf)
    next(gen)
    if dbg == 2: T.stamp()
    k('v_lshrrev_b32 v4, 2, v2')
    k('v_lshl_add_u32 v4, v3, 2, v4')
    k('v_and_b32 v5, 6, v4')
    k('v_bfe_u32 v6, v2, 1, 1')
    k('v_xor_b32 v5, v5, v6')
    k('v_lshlrev_b32 v4, 7, v4')
    k('v_and_b32 v6, 1, v2')
    k('v_lshl_add_u32 v4, v6, 3, v4')
    for nt in range(4):
        k(f'v_xor_b32 v6, {2 * nt}, v5')
        k(f'v_lshl_add_u32 v{V_WA + nt}, v6, 4, v4')
        k(f'v_add_u32 v{V_WA + 4 + nt}, 0x10000, v{V_WA + nt}')
    for i in range(32):
        k(f'v_mov_b32 v{128 + i}, 0')
    k(f's_mul_i32 s48, s30, 8704')
    k(f's_add_u32 s48, s48, {EPI}')
    k('s_movk_i32 s49, 272')
    k('v_mul_lo_u32 v24, v2, s49')
    k('v_lshl_add_u32 v24, v3, 4, v24')
    k('v_add_u32 v24, s48, v24')
    k('v_lshrrev_b32 v4, 3, v1')
    k('v_and_b32 v5, 7, v1')
    k('v_mul_lo_u32 v25, v4, s49')
    k('v_lshl_add_u32 v25, v5, 5, v25')
    k('v_add_u32 v25, s48, v25')
    k('v_lshlrev_b32 v26, 11, v4')
    k('v_lshl_add_u32 v26, v5, 4, v26')
    k('v_lshlrev_b32 v27, 5, v5')
    k('s_lshl_b32 s50, s47, 16')
    k('s_add_u32 s50, s50, s46')
    k('s_lshl_b32 s51, s43, 8')
    k(f's_add_u32 s51, s51, {gate_seg * 4096}')
    if dbg == 2: T.stamp()
    for _ in gen:
        pass
    for j in range(4):
        k(f's_add_u32 s52, s50, {j * 16384}')
        k(f'buffer_load_dwordx4 {r4("v", 32 + 4 * j)}, v26, s[12:15], s52 offen')
    k('buffer_load_dwordx4 v[48:51], v27, s[24:27], s51 offen')
    k('buffer_load_dwordx4 v[52:55], v27, s[24:27], s51 offen offset:16')
    if alias_epi:
        k('s_waitcnt vmcnt(6) lgkmcnt(0)')
        k('s_barrier')
    for nt in range(4):
        for mt in range(2):
            k(f'ds_write_b128 v24, {acc(nt, mt)} offset:{mt * 16 * 272 + nt * 64}')
    k('s_waitcnt lgkmcnt(0)')
    for j in range(4):
        k(f'ds_read_b128 {r4("v", 64 + 8 * j)}, v25 offset:{j * 8 * 272}')
        k(f'ds_read_b128 {r4("v", 68 + 8 * j)}, v25 offset:{j * 8 * 272 + 16}')
    for j in range(4):
        for d in range(4):
            x = 32 + 4 * j + d
            a = 64 + 8 * j + 2 * d
            k(f'v_lshlrev_b32 v4, 16, v{x}')
            k(f'v_and_b32 v5, 0xffff0000, v{x}')
            k(f'v_fma_f32 v4, v{a}, v{48 + 2 * d}, v4')
            k(f'v_fma_f32 v5, v{a + 1}, v{49 + 2 * d}, v5')
            k(f'v_cvt_pk_bf16_f32 v{x}, v4, v5')
        k(f's_add_u32 s52, s50, {j * 16384}')
        k(f'buffer_store_dwordx4 {r4("v", 32 + 4 * j)}, v26, s[20:23], s52 offen')
    if dbg:
        k('s_waitcnt vmcnt(0)')
    T.stamp()
    T.dump(44, 30, slot_dbg)
    k.label('end')
    k('s_endpgm')
    return k
```

```python
from common import *
from k_gemm import r4, mf, _cls, lane_decomp
import math

WS_XCH = 48 << 20
WS_FLG = 60 << 20
WS_STAT = 61 << 20


class Unrolled:
    def __init__(self, k, groups, R, MT, KS, WB, PD, acc, wfrag, afrag, wread, dma_ops, act_ops, first_zero=True):
        self.__dict__.update(locals())
        self.GL = MT * KS
        self.vm = []
        self.gaps = {}

    def put(self, g, op):
        self.gaps.setdefault(g, []).append(op)

    def vwait(self, tag):
        last = max(i for i, t in enumerate(self.vm) if t == tag)
        return min(63, len(self.vm) - 1 - last)

    def emit_ops(self, ops, tag):
        for o in ops:
            self.k(o)
            if o.startswith('buffer_'):
                self.vm.append(tag)

    def plan(self, pro_stages=1, spacing=4, fast=2, NL=0):
        groups, PD, GL, R = self.groups, self.PD, self.GL, self.R
        NG = len(groups)
        stages = sorted({s for s, _ in groups})
        first = {s: min(i for i, (a, _) in enumerate(groups) if a == s) for s in stages}
        last = {s: max(i for i, (a, _) in enumerate(groups) if a == s) for s in stages}
        self.bar = {s: max(first[s] - PD, 0) for s in stages}
        bar_groups = sorted(self.bar[s] for s in stages if s > 0)
        busy = set()
        for i in range(NG):
            t = i + PD
            if t >= NG:
                continue
            s, nt = groups[t]
            rd = [self.wread(nt, q, h, s % R, t % self.WB) for q in range(self.KS) for h in range(2)]
            f = 1 if i in bar_groups else 0
            step = 1 if len(rd) * 2 > GL - f else 2
            for j, r in enumerate(rd):
                g = i * GL + min(f + j * step, GL - 1)
                self.put(g, r)
                busy.add(g)
        self.busy = busy
        q = []
        for s in stages:
            if s < R:
                e_w = e_a = -1
            else:
                e_w = min(b for b in bar_groups if b >= last[s - R] + 1) * GL + 1
                e_a = (last[s - R] + 1) * GL
            two = [(s, 'W', e_w, self.dma_ops(s)), (s, 'A', e_a, self.act_ops(s))]
            q += two if (s < R or NL) else two[::-1]
        self.pro = [x for x in q if x[0] < pro_stages]
        pos = 0
        for s, kind, e, ops in q:
            if s < pro_stages:
                continue
            pend = []
            for o in ops:
                if not o.startswith('buffer_'):
                    pend.append(o)
                    continue
                ahead = (first[s] * GL - pos) / (GL * (last[0] + 1))
                sp = fast if (ahead < 1.3 or s < R) else spacing
                if NL and s - 2 < NL:
                    SL = GL * (last[0] + 1)
                    base = (s - 2) * SL
                    cnt = self.__dict__.setdefault('_cnt', {})
                    cnt[s] = cnt.get(s, -1) + 1
                    pos = base + [1, 5, 9, 13, 17, 21, 25, 29, 33, 37, 41, 45, 50, 54, 58, 62][cnt[s]]
                    assert pos >= e
                else:
                    pos = max(pos + sp, e, 1)
                while (pos % GL == GL - 1 and (pos // GL + 1) in bar_groups) or (pos % GL == 0 and pos // GL in bar_groups):
                    pos += 1
                self.put(pos, ('V', pend, o, (kind, s)))
                pend = []
            assert not pend
            if kind == 'W':
                assert pos < self.bar[s] * GL - 1, (s, pos, self.bar[s] * GL)
            else:
                assert pos < first[s] * GL - 1, (s, pos)
            self.slack = getattr(self, 'slack', []) + [(kind, s, (self.bar[s] if kind == 'W' else first[s]) * GL - pos)]

    def prologue_issue(self, kinds='WA'):
        for s, kind, e, ops in self.pro:
            if kind in kinds:
                self.emit_ops(ops, (kind, s))

    def start(self, sync=True):
        k = self.k
        if sync:
            k(f's_waitcnt vmcnt({self.vwait(("W", 0))})')
            k('s_barrier')
        for t in range(self.PD):
            s, nt = self.groups[t]
            for q in range(self.KS):
                for h in range(2):
                    k(self.wread(nt, q, h, s % self.R, t % self.WB))

    def emit(self, g0, g1):
        k, GL = self.k, self.GL
        barat = {v: s for s, v in self.bar.items() if s > 0}
        for i in range(g0, g1):
            s, nt = self.groups[i]
            j = 0
            for mt in range(self.MT):
                for q in range(self.KS):
                    d = self.acc(nt, mt)
                    c = '0' if (self.first_zero and s == 0 and q == 0) else d
                    k(mf(d, self.wfrag(i % self.WB, q), self.afrag(s % self.R, mt, q), c))
                    g = i * GL + j
                    ops = self.gaps.get(g, [])
                    if j == GL - 1 and (i + 1) in barat:
                        k(f's_waitcnt vmcnt({self.vwait(("W", barat[i + 1]))})')
                    if j == 0 and i in barat:
                        k('s_barrier')
                    cur = [o for o in ops if isinstance(o, tuple) and o[0] == 'V']
                    nxt = [o for o in self.gaps.get(g + 1, []) if isinstance(o, tuple) and o[0] == 'V']
                    plain = sorted([o for o in ops if not isinstance(o, tuple)], key=_cls)
                    for o in plain:
                        if _cls(o) == 0:
                            k(o)
                    if not cur:
                        for o in nxt:
                            for sc in o[1]:
                                k(sc)
                    for o in plain:
                        if _cls(o) == 1:
                            k(o)
                    for o in cur:
                        self.emit_ops([o[2]], o[3])
                    if cur:
                        for o in nxt:
                            for sc in o[1]:
                                k(sc)
                    for o in plain:
                        if _cls(o) == 2:
                            k(o)
                    for o in ops:
                        if isinstance(o, tuple) and o[0] == 'raw':
                            self.emit_ops([o[1]], ('X', 0))
                    j += 1


def gen_small2(name, K, w_arg, act_off, res_arg, res_off, out_arg, out_off, gate_seg, slot_dbg, flag_idx, dbg=False,
               TS=3, spacing=4, fast=3, pro=2, stflag='sc1', cpf=2, lateflag=True, ln=False, psleep=8, hflag='', nbx=0, map8=True, split=False, recpf=True, roll=True, wflag='', rowpf=4, xl=1, xbf=True, hx=True, chain_in=False, chain_out=None, early=False, narrow=True, wsleep=3, latepub=False, a3=False, dummy=True):
    if roll and K == 3584: TS = min(TS, 2)
    KH = K // 2
    NST = KH // 128
    R = 4
    k = Kernel(name, vgprs=256, agprs=136, sgprs=96, grid=256, block=256, lds=R * 32768)
    T = Stamper(k, dbg)
    if not chain_in:
        k('s_cmp_ge_u32 s2, 256')
        k(f's_cbranch_scc1 {k.L("end")}')
    SC = 'sc1' if chain_in else ''
    T.start()
    k(f's_load_dwordx2 s[4:5], s[0:1], {w_arg}')
    k(f's_load_dwordx2 s[44:45], s[0:1], {D_WS}')
    k(f's_load_dwordx2 s[6:7], s[0:1], {res_arg}')
    k(f's_load_dwordx2 s[28:29], s[0:1], {out_arg}')
    if cpf == 1:
        code_prefetch(k, 92, 39, 38, 0, 256, 32768)
    lane_decomp(k)
    if cpf == 2:
        code_prefetch_light(k, 92, 59, 39, 6, 38, 1, 30, 32)
    k('s_and_b32 s39, s2, 1')
    if map8:
        k('s_bfe_u32 s42, s2, 0x10002')
        k('s_lshl_b32 s42, s42, 3')
        k('s_bfe_u32 s43, s2, 0x30003')
        k('s_add_u32 s42, s42, s43')
        k('s_bfe_u32 s43, s2, 0x10001')
        k('s_lshl_b32 s43, s43, 2')
        k('s_lshr_b32 s46, s2, 6')
        k('s_add_u32 s43, s43, s46')
    else:
        k('s_bfe_u32 s42, s2, 0x20001')
        k('s_lshl_b32 s42, s42, 2')
        k('s_bfe_u32 s43, s2, 0x20003')
        k('s_add_u32 s42, s42, s43')
        k('s_lshr_b32 s43, s2, 5')
    if nbx: k(f's_xor_b32 s43, s43, {nbx}')
    PS = 2 if split else 1
    if split:
        k('s_lshr_b32 s46, s43, 1')
        k('s_lshl_b32 s46, s46, 2')
        k('s_and_b32 s43, s43, 1')
        k('s_add_u32 s43, s43, s46')
    else:
        k('s_lshl_b32 s43, s43, 1')
    k('s_lshl_b32 s46, s43, 7')
    k(f's_mul_i32 s40, s39, {PS}')
    k('s_add_u32 s43, s43, s40')
    k(f's_mul_i32 s40, s39, {KH * 2048}')
    k('s_add_u32 s40, s40, s46')
    k('s_lshl_b32 s33, s30, 13')
    V_WD, V_HD, V_WA = 8, 12, 16
    k('s_lshl_b32 s47, s30, 16')
    k('v_lshlrev_b32 v4, 11, v3')
    if not a3:
        k('v_add_u32 v4, s47, v4')
    else:
        k('s_mov_b32 s36, s30')
        k('s_cmp_eq_u32 s30, 3')
        k('s_cselect_b32 s37, 4, s30')
    for j in range(4):
        k(f'v_add_u32 v5, {4 * (j & 1)}, v3')
        k('v_lshlrev_b32 v5, 1, v5')
        k('v_xor_b32 v5, v5, v2')
        if split:
            k('v_and_b32 v6, 8, v5')
            k('v_add_u32 v5, v5, v6')
        k('v_lshl_add_u32 v5, v5, 4, v4')
        k(f'v_add_u32 v{V_WD + j}, {j * (8192 - 1024)}, v5')
    k(f'v_lshlrev_b32 v{V_HD}, 4, v1')
    k('s_lshl_b32 s47, s42, 2')
    k('s_add_u32 s47, s47, s30')
    k('s_lshl_b32 s32, s47, 11')
    k(f's_mul_i32 s41, s39, {(KH // 32) * 131072}')
    k('s_add_u32 s32, s32, s41')
    k('s_sub_u32 s35, s32, 131072')
    k(f's_mov_b32 s31, {(-112 * 2048) & 0xffffffff}')
    k('s_waitcnt lgkmcnt(0)')
    srd(k, 8, 4, 's40', (KH - 1) * 2048 + (384 if split else 256))
    srd(k, 16, 44, act_off, 2048 * K * 2)

    def dma_ops(s):
        ops = []
        nxt = [[], ['s_add_u32 s36, s36, 4', 's_add_u32 s37, s36, 3'], ['s_mul_hi_u32 s37, s37, 0x2aaaaaab'], ['s_add_u32 s37, s37, s36'],
               [], ['s_mul_i32 s38, s36, 7'], [f's_sub_u32 s38, s38, {7 * 48 - 3}'], ['s_cmp_lt_u32 s36, 48', 's_cselect_b32 s37, s37, s38']]
        for half in range(2):
            ops.append(f's_add_u32 m0, s33, {(s % R) * 32768 + half * 4096}')
            if a3 and half == 0:
                ops.append('s_lshl_b32 s31, s37, 16')
            else:
                ops.append(f's_add_u32 s31, s31, {(16 if half else 112) * 2048}')
            for j in range(4):
                if a3:
                    ops += nxt[half * 4 + j]
                ops.append(f'buffer_load_dwordx4 v{V_WD + j}, s[8:11], s31 offen offset:{j * 1024} {wflag} lds')
        return ops

    def afrag(slot, mt, q):
        return r4('a', slot * 32 + (mt * 4 + q) * 4)

    def act_ops(s):
        ops = []
        for q in range(4):
            ops.append('s_add_u32 s35, s35, 131072')
            for mt in range(2):
                ops.append(f'buffer_load_dwordx4 {afrag(s % R, mt, q)}, v{V_HD}, s[16:19], s35 offen offset:{mt * 1024} {SC}')
        return ops

    def acc(nt, mt):
        return r4('v', 128 + (nt * 2 + mt) * 4)

    def wfrag(buf, q):
        return r4('v', 64 + buf * 16 + q * 4)

    def wread(nt, q, h, slot, buf):
        b = 64 + buf * 16 + q * 4 + h * 2
        return f'ds_read_b64_tr_b16 v[{b}:{b + 1}], v{V_WA + nt + 8 * (slot // 2)} offset:{(slot % 2) * 32768 + q * 8192 + h * 4096}'

    groups = [(s, nt) for s in range(NST - TS) for nt in (4, 5, 6, 7, 0, 1, 2, 3)]
    groups += [(s, nt) for s in range(NST - TS, NST) for nt in range(4, 8)]
    gsend = len(groups)
    groups += [(s, nt) for s in range(NST - TS, NST) for nt in range(4)]
    NL = 12 if roll else 0
    assert NST - TS >= NL
    U = Unrolled(k, groups, R, 2, 4, 4, 2, acc, wfrag, afrag, wread, dma_ops, act_ops, first_zero=not roll)
    U.plan(pro_stages=pro, spacing=spacing, fast=fast, NL=NL)
    if dbg: print(name, 'slack', U.slack)
    srd(k, 24, 44, 0, 64 << 20)
    if chain_in and early:
        k('s_barrier')
        U.prologue_issue('W')
    elif chain_in and latepub:
        pass
    elif chain_in:
        phase_publish(k, 24, 30, 36, 37, second=79 if (ln and narrow) else None)
        U.prologue_issue('W')
    else:
        U.prologue_issue()
    srd(k, 12, 6, res_off, 2048 * 2048)
    srd(k, 20, 28, out_off, 2048 * 2048)
    k('v_lshrrev_b32 v4, 2, v2')
    k('v_lshl_add_u32 v4, v3, 2, v4')
    k('v_and_b32 v5, 7, v4')
    k('v_lshlrev_b32 v5, 1, v5')
    k('v_bfe_u32 v6, v2, 1, 1')
    k('v_xor_b32 v5, v5, v6')
    k('s_lshl_b32 s48, s39, 3')
    k('v_xor_b32 v5, s48, v5')
    k('v_lshlrev_b32 v4, 8, v4')
    k('v_and_b32 v6, 1, v2')
    k('v_lshl_add_u32 v4, v6, 3, v4')
    for nt in range(8):
        k(f'v_xor_b32 v6, {2 * nt}, v5')
        k(f'v_lshl_add_u32 v{V_WA + nt}, v6, 4, v4')
        k(f'v_add_u32 v{V_WA + 8 + nt}, 0x10000, v{V_WA + nt}')
    k('s_mul_i32 s48, s30, 8704')
    k('s_movk_i32 s49, 272')
    k('v_mul_lo_u32 v32, v2, s49')
    k('v_lshl_add_u32 v32, v3, 4, v32')
    k('v_add_u32 v32, s48, v32')
    k('v_lshrrev_b32 v4, 3, v1')
    k('v_and_b32 v5, 7, v1')
    k('v_mul_lo_u32 v33, v4, s49')
    k('v_lshl_add_u32 v33, v5, 5, v33')
    k('v_add_u32 v33, s48, v33')
    k('v_lshlrev_b32 v34, 11, v4')
    k('v_lshl_add_u32 v34, v5, 4, v34')
    k('v_lshlrev_b32 v35, 5, v5')
    k('s_lshl_b32 s50, s47, 16')
    k('s_lshl_b32 s51, s43, 7')
    k('s_add_u32 s50, s50, s51')
    k('s_lshl_b32 s51, s43, 8')
    k(f's_add_u32 s51, s51, {gate_seg * 4096}')
    k('s_lshl_b32 s53, s2, 2')
    k('s_add_u32 s53, s53, s30')
    k('s_xor_b32 s54, s53, 4')
    k(f's_lshl_b32 s55, s53, {10 if xl else 13}')
    k(f's_add_u32 s55, s55, {WS_XCH + flag_idx * (4 << 20)}')
    k(f's_lshl_b32 s56, s54, {10 if xl else 13}')
    k(f's_add_u32 s56, s56, {WS_XCH + flag_idx * (4 << 20)}')
    k('s_lshl_b32 s57, s53, 6')
    k(f's_add_u32 s57, s57, {WS_FLG + flag_idx * 65536}')
    k('s_lshl_b32 s58, s54, 6')
    k(f's_add_u32 s58, s58, {WS_FLG + flag_idx * 65536}')
    k('v_mov_b32 v36, 0')
    k('v_mov_b32 v37, 1')
    if ln:
        k('v_lshl_add_u32 v240, v5, 3, v4')
        k('v_lshlrev_b32 v240, 3, v240')
        k('v_cmp_gt_u32 vcc, 4, v5')
        k('v_mov_b32 v6, 0x40000000')
        k('v_cndmask_b32 v240, v6, v240, vcc')
        k('v_cmp_eq_u32 s[86:87], 1, v5')
        k('v_cmp_eq_u32 s[88:89], 2, v5')
        k('v_cmp_eq_u32 s[90:91], 3, v5')
        k('v_lshlrev_b32 v241, 4, v2')
        k('v_add_u32 v241, s48, v241')
        k('v_lshlrev_b32 v243, 3, v4')
        k('v_add_u32 v243, s48, v243')
        cc, rr = ('v4', 'v5') if hx else ('v5', 'v4')
        k(f'v_lshrrev_b32 v6, 2, {cc}')
        k('v_lshlrev_b32 v242, 17, v6')
        k(f'v_and_b32 v6, 3, {cc}')
        k('v_lshl_add_u32 v242, v6, 8, v242')
        k(f'v_lshl_add_u32 v242, {rr}, 4, v242')
        if hx:
            k('v_xor_b32 v6, v4, v5')
            k('v_lshl_add_u32 v244, v5, 3, v6')
            k('v_lshlrev_b32 v244, 4, v244')
            k('v_add_u32 v244, s48, v244')
            k('v_lshl_add_u32 v245, v4, 3, v6')
            k('v_lshlrev_b32 v245, 4, v245')
            k('v_add_u32 v245, s48, v245')
        k('s_lshl_b32 s36, s47, 12')
        k(f's_add_u32 s36, s36, {WS_STAT}')
        k('s_mov_b32 s37, s43')
        k('s_lshl_b32 s38, s37, 18')
        k('s_lshl_b32 s37, s37, 8')
        k('s_add_u32 s37, s37, s36')
        k('s_lshl_b32 s34, s47, 11')
        k('s_add_u32 s38, s38, s34')
        k(f's_add_u32 s38, s38, {WS_H2}')
    if roll:
        for i in range(0, 64, 2):
            k(f'v_mov_b64 v[{128 + i}:{129 + i}], 0')
        k('s_mov_b32 s34, 0')
        if cpf != 2:
            k('s_lshr_b32 s59, s2, 3')
            k('s_lshl_b32 s59, s59, 2')
            k('s_add_u32 s59, s59, s30')
            k('s_and_b32 s59, s59, 31')
            k('s_lshl_b32 s59, s59, 9')
            k('v_lshlrev_b32 v39, 7, v1')
            k('v_cmp_gt_u32 vcc, 4, v1')
            k('v_mov_b32 v6, 0x40000000')
            k('v_cndmask_b32 v39, v6, v39, vcc')
    if chain_in and early:
        phase_publish(k, 24, 30, 36, 37, younger=8 * pro)
    if chain_in and latepub:
        phase_publish(k, 24, 30, 36, 37, second=79 if (ln and narrow) else None)
        U.prologue_issue('W')
    if rowpf:
        assert map8 and roll and not split
        srd(k, 80, 4, 0, K * 2048)
        k('s_lshr_b32 s84, s2, 3')
        k('s_lshl_b32 s84, s84, 2')
        k('s_add_u32 s84, s84, s30')
        k('s_lshl_b32 s84, s84, 11')
        k(f's_mul_i32 s85, s39, {KH * 2048}')
        k('s_add_u32 s84, s84, s85')
        k('s_bfe_u32 s85, s2, 0x10001')
        k('s_lshl_b32 s85, s85, 10')
        k('s_add_u32 s84, s84, s85')
        k(f's_add_u32 s84, s84, {2 * 128 * 2048}')
        k('v_lshlrev_b32 v7, 7, v1')
        k('v_cmp_gt_u32 vcc, 8, v1')
        k('v_mov_b32 v6, 0x40000000')
        k('v_cndmask_b32 v7, v6, v7, vcc')
        for _ in range(2, rowpf):
            k('buffer_load_dword v38, v7, s[80:83], s84 offen')
            k(f's_add_u32 s84, s84, {128 * 2048}')
        for st_ in range(4, 8):
            U.put(st_ * 64 + 3, ('raw', 'buffer_load_dword v38, v7, s[80:83], s84 offen'))
            U.put(st_ * 64 + 6, f's_add_u32 s84, s84, {128 * 2048}')
    if chain_in:
        if ln and narrow:
            k('s_lshr_b32 s52, s42, 1')
            k('s_lshl_b32 s52, s52, 7')
            k('s_lshl_b32 s49, s39, 6')
            k('s_add_u32 s52, s52, s49')
            k('v_lshlrev_b32 v41, 2, v2')
            k('v_add_u32 v41, s52, v41')
            k('v_lshrrev_b32 v42, 2, v2')
            k('v_lshlrev_b32 v42, 6, v42')
            k('v_and_b32 v43, 3, v2')
            k('v_add_u32 v42, v42, v43')
            k('s_lshl_b32 s49, s43, 2')
            k('v_add_u32 v42, s49, v42')
            k('v_lshlrev_b32 v42, 2, v42')
            k('v_add_u32 v42, 3072, v42')
            k('v_and_b32 v43, 1, v3')
            k('v_cmp_eq_u32 vcc, 0, v43')
            k('v_cndmask_b32 v41, v42, v41, vcc')
            k(f's_mov_b32 s52, {WS_FLG3}')
            phase_wait(k, 24, 30, 41, 40, 52, 49, sleep=wsleep)
        elif ln:
            k(f's_mov_b32 s52, {WS_FLG3}')
            phase_wait(k, 24, 30, V_HD, 40, 52, 49, wide=True, sleep=wsleep)
        else:
            k('s_lshr_b32 s52, s42, 1')
            k('s_lshl_b32 s52, s52, 7')
            k('s_lshl_b32 s49, s39, 6')
            k('s_add_u32 s52, s52, s49')
            k(f's_add_u32 s52, s52, {WS_FLG3 + 2048}')
            k('v_lshlrev_b32 v41, 2, v2')
            phase_wait(k, 24, 30, 41, 40, 52, 49, sleep=wsleep)
        if dbg: T.stamp()
        U.start(sync=False)
        for s_, kind, e, ops in U.pro:
            if kind == 'A':
                U.emit_ops(ops, (kind, s_))
                if s_ == 0 and dummy:
                    for _ in range(8):
                        k('buffer_load_dword v38, v39, s[92:95], s59 offen')
        U.vm = [t for st_ in range(pro) for kind in 'WA' for t in [(kind, st_)] * 8]
    else:
        U.start()
    T.stamp()
    GL = 8
    st_ops = []
    for j in range(4):
        for mt in range(2):
            i = j * 2 + mt
            if xl:
                if i:
                    st_ops.append(f's_add_u32 s55, s55, {1 << 20}')
                st_ops.append(f'buffer_store_dwordx4 {acc(4 + j, mt)}, v{V_HD}, s[24:27], s55 offen sc1')
                continue
            if i == 4:
                st_ops.append('s_add_u32 s55, s55, 4096')
            st_ops.append(f'buffer_store_dwordx4 {acc(4 + j, mt)}, v{V_HD}, s[24:27], s55 offen offset:{(i % 4) * 1024} sc1')
    if xbf:
        st_ops = []
        for j in range(4):
            b = 128 + (4 + j) * 8
            for e in range(4):
                st_ops.append(f'v_cvt_pk_bf16_f32 v{b + e}, v{b + 2 * e}, v{b + 2 * e + 1}')
            if j:
                st_ops.append(f's_add_u32 s55, s55, {1 << 20}')
            st_ops.append(f'buffer_store_dwordx4 {r4("v", b)}, v{V_HD}, s[24:27], s55 offen sc1')
    for i, o in enumerate(st_ops):
        U.put(gsend * GL + 2 + i, ('raw', o))
    gflag = min(gsend + 5, len(groups) - 2)
    if not lateflag:
        U.put(gflag * GL, 's_waitcnt vmcnt(0)')
        U.put(gflag * GL + 1, ('raw', 'buffer_store_dword v37, v36, s[24:27], s57 offen sc1'))
    else:
        gflag = gsend - 3
    rl = []
    for j in range(4):
        rl.append(f's_add_u32 s52, s50, {j * 16384}')
        rl.append(f'buffer_load_dwordx4 {r4("v", 40 + 4 * j)}, v34, s[12:15], s52 offen {SC}')
    rl.append('buffer_load_dwordx4 v[56:59], v35, s[24:27], s51 offen '+SC)
    rl.append('buffer_load_dwordx4 v[60:63], v35, s[24:27], s51 offen offset:16 '+SC)
    if ln:
        rl.append('s_add_u32 s52, s51, 4096')
        rl.append('buffer_load_dwordx4 v[224:227], v35, s[24:27], s52 offen '+SC)
        rl.append('buffer_load_dwordx4 v[228:231], v35, s[24:27], s52 offen offset:16 '+SC)
        rl.append('s_add_u32 s52, s51, 8192')
        rl.append('buffer_load_dwordx4 v[232:235], v35, s[24:27], s52 offen '+SC)
        rl.append('buffer_load_dwordx4 v[236:239], v35, s[24:27], s52 offen offset:16 '+SC)
    for i, o in enumerate(rl):
        U.put(gflag * GL + 2 + i, ('raw', o))
    if roll:
        sink = Kernel('sink')
        U.k = sink
        U.emit(0, 32)
        U.k = k
        U.put(7 * 64 + 59, 's_add_u32 s34, s34, 1')
        U.put(7 * 64 + 63, ('raw', 's_cmp_lt_u32 s34, 3'))
        if recpf:
            U.put(6 * 64 + 32, ('raw', 'buffer_load_dword v38, v39, s[92:95], s59 offen'))
        k('.p2align 6')
        k.label('loop')
        n0 = len(U.vm)
        U.emit(32, 64)
        k(f's_cbranch_scc1 {k.L("loop")}')
        U.vm = [t for t in U.vm if t != ('X', 0)]
        U.k = sink
        U.emit(64, 96)
        U.k = k
        if dbg == 2: T.stamp()
        if a3:
            def swaps(st_):
                o = []
                for q in range(4):
                    x = (st_ % R) * 32 + q * 4
                    y = x + 16
                    for e in range(2):
                        o += [f'v_accvgpr_mov_b32 a{128 + e}, a{x + 2 + e}']
                    for e in range(2):
                        o += [f'v_accvgpr_mov_b32 a{x + 2 + e}, a{y + e}']
                    for e in range(2):
                        o += [f'v_accvgpr_mov_b32 a{y + e}, a{128 + e}']
                return o
            for o in swaps(12):
                k(o)
            for i, o in enumerate(swaps(13)):
                U.put(96 * 8 + 6 + i, o)
        for g in range(96, len(groups), 8):
            U.emit(g, min(g + 8, len(groups)))
            if dbg == 2 and g + 8 < len(groups): T.stamp()
    elif dbg == 2:
        for g in range(0, len(groups), 8):
            U.emit(g, min(g + 8, len(groups)))
            if g + 8 < len(groups): T.stamp()
    else:
        U.emit(0, len(groups))
    T.stamp()
    if lateflag:
        k('s_waitcnt vmcnt(0)')
        k('buffer_store_dword v37, v36, s[24:27], s57 offen sc1')
    k('s_barrier')
    k('s_mov_b32 s59, 0')
    k.label('poll')
    k('buffer_load_dword v38, v36, s[24:27], s58 offen sc1')
    k('s_waitcnt vmcnt(0)')
    k('v_cmp_ne_u32 vcc, 1, v38')
    k(f's_cbranch_vccz {k.L("got")}')
    k('s_sleep 2')
    k('s_add_u32 s59, s59, 1')
    k('s_cmp_lt_u32 s59, 0x40000')
    k(f's_cbranch_scc1 {k.L("poll")}')
    k.label('got')
    if dbg: T.stamp()
    for i in range(4 if xbf else 8):
        if xl:
            if i:
                k(f's_add_u32 s56, s56, {1 << 20}')
            k(f'buffer_load_dwordx4 {r4("v", 192 + 4 * i)}, v{V_HD}, s[24:27], s56 offen sc1')
            continue
        if i == 4:
            k('s_add_u32 s56, s56, 4096')
        k(f'buffer_load_dwordx4 {r4("v", 192 + 4 * i)}, v{V_HD}, s[24:27], s56 offen offset:{(i % 4) * 1024} sc1')
    P = lambda b: f'v[{b}:{b + 1}]'
    for i in range(8):
        a = 128 + 4 * i
        for e in (0, 2):
            if xbf:
                src = 192 + 2 * i + e // 2
                t = 208 + 4 * (i % 4) + e
                k(f'v_lshlrev_b32 v{t}, 16, v{src}')
                k(f'v_and_b32 v{t + 1}, 0xffff0000, v{src}')
                k(f'v_pk_add_f32 {P(a + e)}, {P(a + e)}, {P(t)}')
            else:
                k(f'v_pk_add_f32 {P(a + e)}, {P(a + e)}, {P(192 + 4 * i + e)}')
        nt, mt = i // 2, i % 2
        k(f'ds_write_b128 v32, {r4("v", a)} offset:{mt * 16 * 272 + nt * 64}')
    k('s_waitcnt lgkmcnt(0)')
    for j in range(4):
        k(f'ds_read_b128 {r4("v", 64 + 8 * j)}, v33 offset:{j * 8 * 272}')
        k(f'ds_read_b128 {r4("v", 68 + 8 * j)}, v33 offset:{j * 8 * 272 + 16}')
    for j in range(4):
        for d in range(4):
            x = 40 + 4 * j + d
            a = 64 + 8 * j + 2 * d
            k(f'v_lshlrev_b32 v4, 16, v{x}')
            k(f'v_and_b32 v5, 0xffff0000, v{x}')
            k(f'v_pk_fma_f32 v[4:5], {P(a)}, {P(56 + 2 * d)}, v[4:5]')
            k(f'v_cvt_pk_bf16_f32 v{x}, v4, v5')
        k(f's_add_u32 s52, s50, {j * 16384}')
        k(f'buffer_store_dwordx4 {r4("v", 40 + 4 * j)}, v34, s[20:23], s52 offen {stflag}')
    if ln:
        def red8(regs):
            for m in ('quad_perm:[1,0,3,2]', 'quad_perm:[2,3,0,1]', 'row_half_mirror'):
                for r in regs:
                    k(f'v_add_f32_dpp v{r}, v{r}, v{r} {m} row_mask:0xf bank_mask:0xf')
        Y = lambda j: 64 + 8 * j
        D_ = lambda j: 96 + 8 * j
        S = lambda j: 128 + 2 * j
        for j in range(4):
            for d in range(4):
                k(f'v_lshlrev_b32 v{Y(j) + 2 * d}, 16, v{40 + 4 * j + d}')
                k(f'v_and_b32 v{Y(j) + 2 * d + 1}, 0xffff0000, v{40 + 4 * j + d}')
        for j in range(4):
            k(f'v_pk_add_f32 {P(S(j))}, {P(Y(j))}, {P(Y(j) + 2)}')
        for e in (4, 6):
            for j in range(4):
                k(f'v_pk_add_f32 {P(S(j))}, {P(S(j))}, {P(Y(j) + e)}')
        for j in range(4):
            k(f'v_add_f32 v{S(j)}, v{S(j)}, v{S(j) + 1}')
        red8([S(j) for j in range(4)])
        for j in range(4):
            k(f'v_mul_f32 v{S(j)}, {f32(1.0 / 64)}, v{S(j)}')
        for j in range(4):
            for e in range(0, 8, 2):
                k(f'v_pk_add_f32 {P(D_(j) + e)}, {P(Y(j) + e)}, {P(S(j))} op_sel_hi:[1,0] neg_lo:[0,1] neg_hi:[0,1]')
        for j in range(4):
            k(f'v_pk_mul_f32 {P(136 + 2 * j)}, {P(D_(j))}, {P(D_(j))}')
        for e in (2, 4, 6):
            for j in range(4):
                k(f'v_pk_fma_f32 {P(136 + 2 * j)}, {P(D_(j) + e)}, {P(D_(j) + e)}, {P(136 + 2 * j)}')
        for j in range(4):
            k(f'v_add_f32 v{S(j) + 1}, v{136 + 2 * j}, v{137 + 2 * j}')
        red8([S(j) + 1 for j in range(4)])
        for j in range(1, 4):
            for e in range(2):
                k(f'v_cndmask_b32 v{S(0) + e}, v{S(0) + e}, v{S(j) + e}, s[{84 + 2 * j}:{85 + 2 * j}]')
        k(f'buffer_store_dwordx2 {P(S(0))}, v240, s[24:27], s37 offen sc1')
        if dbg: T.stamp()
        k('s_mov_b32 s59, 0')
        k.label('poll2')
        k(f's_sleep {psleep}')
        for i in range(4):
            k(f'buffer_load_dwordx4 {r4("v", 144 + 4 * i)}, v{V_HD}, s[24:27], s36 offen offset:{i * 1024} sc1')
        k('s_waitcnt vmcnt(0)')
        k('v_min3_f32 v6, v145, v147, v149')
        k('v_min3_f32 v6, v6, v151, v153')
        k('v_min3_f32 v6, v6, v155, v157')
        k('v_min_f32 v6, v6, v159')
        k('v_cmp_eq_f32 vcc, -1.0, v6')
        k(f's_cbranch_vccz {k.L("got2")}')
        k('s_add_u32 s59, s59, 1')
        k('s_cmp_lt_u32 s59, 0x40000')
        k(f's_cbranch_scc1 {k.L("poll2")}')
        k.label('got2')
        if dbg: T.stamp()

        def red4g(regs, tmps):
            for sw in ('v_permlane16_swap_b32', 'v_permlane32_swap_b32'):
                for r, t in zip(regs, tmps):
                    k(f'v_mov_b32 v{t}, v{r}')
                for r, t in zip(regs, tmps):
                    k(f'{sw} v{t}, v{r}')
                for r, t in zip(regs, tmps):
                    k(f'v_add_f32 v{r}, v{r}, v{t}')
        for h in (0, 2):
            k(f'v_add_f32 v{160 + h}, v{144 + h}, v{148 + h}')
            k(f'v_add_f32 v{164 + h}, v{152 + h}, v{156 + h}')
            k(f'v_add_f32 v{161 + h}, v{145 + h}, v{149 + h}')
            k(f'v_add_f32 v{165 + h}, v{153 + h}, v{157 + h}')
        for e in range(4):
            k(f'v_add_f32 v{160 + e}, v{160 + e}, v{164 + e}')
        red4g([160, 162], [164, 165])
        for h in (0, 2):
            k(f'v_mul_f32 v{160 + h}, {f32(1.0 / 16)}, v{160 + h}')
        k(f's_mov_b32 s34, {f32(64.0)}')
        for h in (0, 2):
            for i in range(4):
                k(f'v_sub_f32 v{144 + 4 * i + h}, v{144 + 4 * i + h}, v{160 + h}')
            k(f'v_mul_f32 v{164 + h}, v{144 + h}, v{144 + h}')
            for i in range(1, 4):
                k(f'v_fmac_f32 v{164 + h}, v{144 + 4 * i + h}, v{144 + 4 * i + h}')
            k(f'v_fmac_f32 v{161 + h}, s34, v{164 + h}')
        red4g([161, 163], [164, 165])
        k(f's_mov_b32 s34, {f32(1.0 / 1024)}')
        k(f'v_mov_b32 v6, {f32(1e-5)}')
        for h in (0, 2):
            k(f'v_fma_f32 v{161 + h}, v{161 + h}, s34, v6')
        for h in (0, 2):
            k(f'v_rsq_f32 v{161 + h}, v{161 + h}')
        k('ds_write_b128 v241, v[160:163]')
        k('s_waitcnt lgkmcnt(0)')
        for j in range(4):
            k(f'ds_read_b64 {P(S(j))}, v243 offset:{64 * j}')
        for j in range(4):
            for e in range(0, 8, 2):
                k(f'v_pk_add_f32 {P(Y(j) + e)}, {P(Y(j) + e)}, {P(S(j))} op_sel_hi:[1,0] neg_lo:[0,1] neg_hi:[0,1]')
            for e in range(0, 8, 2):
                k(f'v_pk_mul_f32 {P(Y(j) + e)}, {P(Y(j) + e)}, {P(S(j))} op_sel:[0,1] op_sel_hi:[1,1]')
            for e in range(0, 8, 2):
                k(f'v_pk_fma_f32 {P(Y(j) + e)}, {P(Y(j) + e)}, {P(232 + e)}, {P(224 + e)}')
            for d in range(4):
                k(f'v_cvt_pk_bf16_f32 v{D_(j) + d}, v{Y(j) + 2 * d}, v{Y(j) + 2 * d + 1}')
            if hx:
                k(f'ds_write_b128 v244, {r4("v", D_(j))} offset:{1024 + j * 1024}')
                k(f'ds_read_b128 {r4("v", D_(j) + 4)}, v245 offset:{1024 + j * 1024}')
            else:
                k(f'buffer_store_dwordx4 {r4("v", D_(j))}, v242, s[24:27], s38 offen offset:{(j // 2) * 1024 + (j % 2) * 128} {hflag}')
        if hx:
            for j in range(4):
                k(f'buffer_store_dwordx4 {r4("v", D_(j) + 4)}, v242, s[24:27], s38 offen offset:{(j // 2) * 1024 + (j % 2) * 128} sc1')
    if dbg:
        k('s_waitcnt vmcnt(0)')
    T.stamp()
    T.dump(44, 30, slot_dbg)
    if chain_out:
        k('s_lshl_b32 s3, s42, 4')
        k('s_add_u32 s3, s3, s43')
        k('s_lshl_b32 s3, s3, 2')
        k(f's_add_u32 s3, s3, {WS_FLG3 + 1024}')
        k(f's_branch {chain_out}')
    k.label('end')
    k('s_endpgm')
    return k
```

```python
import sys
sys.path.insert(0, 'dev')
from asmlib import *

A_X, A_K, A_V, A_WQ, A_WO, B_X, B_WG, B_WU, B_WD, C_IN, W_MOD, D_OUT, D_DBG, D_WS = [8 * i for i in range(14)]

WS_MOD = 0
WS_H1 = 1 << 20
WS_O = 8 << 20
WS_X1 = 24 << 20
WS_H2 = 28 << 20
WS_ACT = 32 << 20

def srd(k, d, base_pair, off, nbytes):
    if off == 0:
        k(f's_mov_b32 s{d}, s{base_pair}')
        k(f's_mov_b32 s{d+1}, s{base_pair+1}')
    else:
        k(f's_add_u32 s{d}, s{base_pair}, {off}')
        k(f's_addc_u32 s{d+1}, s{base_pair+1}, 0')
    k(f's_mov_b32 s{d+2}, {nbytes}')
    k(f's_mov_b32 s{d+3}, 0x00020000')

def wave_allreduce_add(k, regs, tmps):
    for ror in (1, 2, 4, 8):
        for r in regs:
            k(f'v_add_f32_dpp v{r}, v{r}, v{r} row_ror:{ror} row_mask:0xf bank_mask:0xf')
    for sw in ('v_permlane16_swap_b32', 'v_permlane32_swap_b32'):
        for r, t in zip(regs, tmps):
            k(f'v_mov_b32 v{t}, v{r}')
        for r, t in zip(regs, tmps):
            k(f'{sw} v{t}, v{r}')
        for r, t in zip(regs, tmps):
            k(f'v_add_f32 v{r}, v{r}, v{t}')

def f32(x):
    import struct
    return '0x%08x' % struct.unpack('<I', struct.pack('<f', x))[0]


WS_STAMP = 64 << 20
class Stamper:
    def __init__(self, k, on, base=62, tmp=60):
        self.k, self.on, self.base, self.n, self.tmp = k, on, base, 0, tmp
    def stamp(self):
        if not self.on: return
        k = self.k
        k(f's_memtime s[{self.tmp}:{self.tmp+1}]')
        k('s_waitcnt lgkmcnt(0)')
        k(f's_mov_b32 s{self.base + self.n}, s{self.tmp}')
        self.n += 1
    def dump(self, ws_pair, wave_sgpr, slot, srd_base=92):
        if not self.on: return
        k = self.k
        k(f's_memrealtime s[{self.tmp}:{self.tmp+1}]')
        k('s_waitcnt lgkmcnt(0)')
        k(f's_mov_b32 s{self.base + self.n}, s{self.tmp}')
        self.n += 1
        srd(k, srd_base, ws_pair, WS_STAMP + slot * (1 << 20), 1 << 20)
        k(f's_lshl_b32 s{self.tmp}, s2, 3')
        k(f's_add_u32 s{self.tmp}, s{self.tmp}, s{wave_sgpr}')
        k(f's_lshl_b32 s{self.tmp}, s{self.tmp}, 7')
        k('v_mov_b32 v2, 0')
        for i in range(self.n):
            k(f'v_mov_b32 v3, s{self.base + i}')
            k(f'buffer_store_dword v3, v2, s[{srd_base}:{srd_base+3}], s{self.tmp} offen offset:{4*i}')
    def start(self):
        if not self.on: return
        k = self.k
        k(f's_memrealtime s[{self.tmp}:{self.tmp+1}]')
        k('s_waitcnt lgkmcnt(0)')
        k(f's_mov_b32 s{self.base + self.n}, s{self.tmp}')
        self.n += 1
        self.stamp()


def code_prefetch(k, sbase, vtmp, vdst, tid_reg, nthreads, nbytes_max):
    k(f's_getpc_b64 s[{sbase}:{sbase+1}]')
    lab = k.newlabel('pc')
    k(k.L(lab) + ':')
    k(f's_mov_b32 s{sbase+2}, {k.L("codeend")}-{k.L(lab)}')
    k(f's_mov_b32 s{sbase+3}, 0x00020000')
    k(f'v_lshlrev_b32 v{vtmp}, 7, v{tid_reg}')
    per = nthreads * 128
    n = (nbytes_max + per - 1) // per
    for i in range(n):
        if i:
            k(f'v_add_u32 v{vtmp}, {per}, v{vtmp}')
        k(f'buffer_load_dword v{vdst}, v{vtmp}, s[{sbase}:{sbase+3}], 0 offen')
    return n


def code_prefetch_light(k, sbase, soff, vtmp, vtmp2, vdst, lane_reg, wave_sgpr, nslots=128):
    k(f's_getpc_b64 s[{sbase}:{sbase+1}]')
    lab = k.newlabel('pc')
    k(k.L(lab) + ':')
    k(f's_mov_b32 s{sbase+2}, {k.L("codeend")}-{k.L(lab)}')
    k(f's_mov_b32 s{sbase+3}, 0x00020000')
    k(f's_lshr_b32 s{soff}, s2, 3')
    k(f's_lshl_b32 s{soff}, s{soff}, 2')
    k(f's_add_u32 s{soff}, s{soff}, s{wave_sgpr}')
    k(f's_and_b32 s{soff}, s{soff}, {nslots - 1}')
    k(f's_lshl_b32 s{soff}, s{soff}, 9')
    k(f'v_lshlrev_b32 v{vtmp}, 7, v{lane_reg}')
    k(f'v_cmp_gt_u32 vcc, 4, v{lane_reg}')
    k(f'v_mov_b32 v{vtmp2}, 0x40000000')
    k(f'v_cndmask_b32 v{vtmp}, v{vtmp2}, v{vtmp}, vcc')
    k(f'buffer_load_dword v{vdst}, v{vtmp}, s[{sbase}:{sbase+3}], s{soff} offen')


WS_FLG3 = (60 << 20) + 3 * 65536


def phase_publish(k, srd_ws, wave_sgpr, v0r, v1r, younger=0, second=None):
    lab = k.newlabel('pub')
    k(f'v_mov_b32 v{v0r}, 0')
    k(f'v_mov_b32 v{v1r}, 1')
    k(f's_waitcnt vmcnt({younger}) lgkmcnt(0)')
    k('s_barrier')
    k(f's_cmp_lg_u32 s{wave_sgpr}, 0')
    k(f's_cbranch_scc1 {k.L(lab)}')
    k(f'buffer_store_dword v{v1r}, v{v0r}, s[{srd_ws}:{srd_ws+3}], s3 offen sc1')
    if second is not None:
        k(f'buffer_store_dword v{v1r}, v{v0r}, s[{srd_ws}:{srd_ws+3}], s{second} offen sc1')
    k(k.L(lab) + ':')


def phase_wait(k, srd_ws, wave_sgpr, voff, vdst, soff, scnt, wide=False, sleep=1):
    lp, ld = k.newlabel('pw'), k.newlabel('pd')
    k(f's_cmp_lg_u32 s{wave_sgpr}, 0')
    k(f's_cbranch_scc1 {k.L(ld)}')
    k(f's_mov_b32 s{scnt}, 0')
    k(k.L(lp) + ':')
    if wide:
        k(f'buffer_load_dwordx4 v[{vdst}:{vdst+3}], v{voff}, s[{srd_ws}:{srd_ws+3}], s{soff} offen sc1')
        k('s_waitcnt vmcnt(0)')
        k(f'v_and_b32 v{vdst}, v{vdst}, v{vdst+1}')
        k(f'v_and_b32 v{vdst+2}, v{vdst+2}, v{vdst+3}')
        k(f'v_and_b32 v{vdst}, v{vdst}, v{vdst+2}')
    else:
        k(f'buffer_load_dword v{vdst}, v{voff}, s[{srd_ws}:{srd_ws+3}], s{soff} offen sc1')
        k('s_waitcnt vmcnt(0)')
    k(f'v_cmp_ne_u32 vcc, 1, v{vdst}')
    k(f's_cbranch_vccz {k.L(ld)}')
    k(f's_sleep {sleep}')
    k(f's_add_u32 s{scnt}, s{scnt}, 1')
    k(f's_cmp_lt_u32 s{scnt}, 0x40000')
    k(f's_cbranch_scc1 {k.L(lp)}')
    k(k.L(ld) + ':')
    k('s_waitcnt vmcnt(0)')
    k('s_barrier')


def merge(name, ks, lds):
    m = Kernel(name, vgprs=256, agprs=256, sgprs=102, grid=256, block=256, lds=lds)
    for x in ks:
        m.ins.append(Ins(f'L_{x.name}_entry:'))
        m.ins += x.ins
        m.ins.append(Ins(f'L_{x.name}_codeend:'))
    return m


def stub_small(K, a3, R, vo, vt, lane, t):
    KH = K // 2
    t0, t1, t2 = t
    su = [f's_bfe_u32 s{t0}, s2, 0x10001', f's_lshl_b32 s{t0}, s{t0}, 2', f's_lshr_b32 s{t1}, s2, 6', f's_add_u32 s{t0}, s{t0}, s{t1}',
          f's_lshl_b32 s{t0}, s{t0}, 8', f's_and_b32 s{t1}, s2, 1', f's_mul_i32 s{t1}, s{t1}, {KH * 2048}', f's_add_u32 s{t0}, s{t0}, s{t1}',
          f's_add_u32 s{R}, s96, s{t0}', f's_addc_u32 s{R + 1}, s97, 0', f's_mov_b32 s{R + 2}, {(KH - 1) * 2048 + 256}', f's_mov_b32 s{R + 3}, 0x00020000',
          f'v_and_b32 v{vt}, 15, v{lane}', f'v_lshrrev_b32 v{vt + 1}, 4, v{lane}', f's_lshl_b32 s{t2}, s30, 13']
    for j in range(4):
        su += [f'v_add_u32 v{vo + j}, {4 * (j & 1)}, v{vt + 1}', f'v_lshlrev_b32 v{vo + j}, 1, v{vo + j}', f'v_xor_b32 v{vo + j}, v{vo + j}, v{vt}',
               f'v_lshlrev_b32 v{vo + j}, 4, v{vo + j}', f'v_lshl_add_u32 v{vo + j}, v{vt + 1}, 11, v{vo + j}', f'v_add_u32 v{vo + j}, {j * 7168}, v{vo + j}']
    if a3:
        su += ['s_cmp_eq_u32 s30, 3', f's_cselect_b32 s{t0}, 4, s30', f's_lshl_b32 s{t0}, s{t0}, 16']
    else:
        su += [f's_lshl_b32 s{t0}, s30, 16']
    dm = []
    for s in range(2):
        for half in range(2):
            dm.append(f's_add_u32 m0, s{t2}, {s * 32768 + half * 4096}')
            if s == 0:
                dm.append(f's_add_u32 s{t1}, s{t0}, {half * 32768}')
            else:
                dm.append(f's_lshl_b32 s{t1}, s30, 16')
                dm.append(f's_add_u32 s{t1}, s{t1}, {(5 if a3 else 4) * 65536 + half * 32768}')
            for j in range(4):
                dm.append(f'buffer_load_dwordx4 v{vo + j}, s[{R}:{R + 3}], s{t1} offen offset:{j * 1024} lds')
    return su, dm


def stub_gateup(R0, R1, vo, vt, lane, t):
    t0, t1, t2 = t
    su = [f's_bfe_u32 s{t0}, s2, 0x20001', f's_lshl_b32 s{t0}, s{t0}, 3', f's_lshr_b32 s{t1}, s2, 5', f's_add_u32 s{t0}, s{t0}, s{t1}',
          f's_mul_i32 s{t0}, s{t0}, 224']
    for R, p in ((R0, 96), (R1, 98)):
        su += [f's_add_u32 s{R}, s{p}, s{t0}', f's_addc_u32 s{R + 1}, s{p + 1}, 0', f's_mov_b32 s{R + 2}, {1023 * 7168 + 224}', f's_mov_b32 s{R + 3}, 0x00020000']
    su += [f'v_and_b32 v{vt}, 15, v{lane}', f'v_lshrrev_b32 v{vt + 1}, 4, v{lane}', f's_lshl_b32 s{t2}, s30, 12',
           f's_mul_i32 s{t0}, s30, {16 * 7168}', f's_movk_i32 s{t1}, 7168', f'v_mul_lo_u32 v{vt + 2}, v{vt + 1}, s{t1}',
           f'v_add_u32 v{vt + 2}, s{t0}, v{vt + 2}', f'v_mov_b32 v{vt + 3}, 0x40000000']
    for j in range(4):
        su += [f'v_add_u32 v{vo + j}, {4 * (j >> 1)}, v{vt + 1}', f'v_lshlrev_b32 v{vo + j}, 1, v{vo + j}', f'v_xor_b32 v{vo + j}, v{vo + j}, v{vt}',
               f'v_cmp_gt_u32 vcc, 14, v{vo + j}', f'v_lshl_add_u32 v{vo + j}, v{vo + j}, 4, v{vt + 2}',
               f'v_add_u32 v{vo + j}, {4 * j * 7168 - 1024 * j}, v{vo + j}', f'v_cndmask_b32 v{vo + j}, v{vt + 3}, v{vo + j}, vcc']
    dm = []
    for s in range(2):
        dm.append(f's_mov_b32 s{t1}, {s * 64 * 7168}')
        for mat, R in enumerate((R0, R1)):
            dm.append(f's_add_u32 m0, s{t2}, {mat * 65536 + s * 16384}')
            for j in range(4):
                dm.append(f'buffer_load_dwordx4 v{vo + j}, s[{R}:{R + 3}], s{t1} offen offset:{j * 1024} lds')
    return su, dm
```

```python
from common import *
import math
import sched_attn

V_LANE = 1
V_T0 = 2
V_KA = 8
V_VA = 12
V_KD = 20
V_VD = 24
V_WD = 26
V_HD = 30
V_PF = 31
V_PFD = 32
V_MD = 33
V_LT = 34
V_L = 38
V_KG = 42
V_CK = 43
V_TM = 44
V_CI = 48
V_S = (64, 128)
V_Q = 192
A_O = 0
A_KF = 128
A_VF = 160
A_X2 = 192

S_K, S_V, S_WQ, S_H, S_OO = 8, 12, 16, 20, 24
S_W = 30
S_KOFF = 31
S_VOFF = 32
S_M0K = 33
S_CNT = 34
S_TOFF = 35
S_THR = 36
S_RET = 38
S_T = 40
S_PF = 56
S_PT = 96 - 8 - 4
S_WM = 4
LDS_M = 131072
WS_FLG2 = (60 << 20) + 131072
S_PFO = 54
S_PFN = 55

LDS_K = 0
LDS_V = 65536
LDS_W = 98304
BIAS = 48.0

PI = [0, 2, 1, 3]


def Sreg(st, kt, qt):
    return V_S[st] + ((kt >> 1) * 4 + qt) * 8 + (kt & 1) * 4


def Preg(st, qt, ks):
    return V_S[st] + (ks * 4 + qt) * 8


def Qreg(qt, s):
    return V_Q + (qt * 4 + s) * 4


def Oreg(dt, qt):
    return A_O + (dt * 4 + qt) * 4


def r4(f, b):
    return f'{f}[{b}:{b + 3}]'


def mf(d, a, b, c):
    return f'v_mfma_f32_16x16x32_bf16 {d}, {a}, {b}, {c}'


def kread(kt, s, slot):
    b = A_KF + (kt & 1) * 16 + s * 4
    return f'ds_read_b128 {r4("a", b)}, v{V_KA + s} offset:{slot * 16384 + kt * 4096}'


def vread(dt, ks, half, slot):
    b = A_VF + (dt & 3) * 8 + ks * 4 + half * 2
    return f'ds_read_b64_tr_b16 a[{b}:{b + 1}], v{V_VA + dt} offset:{slot * 16384 + ks * 8192 + half * 4096}'


def softmax_half_ops(st, ks, first):
    ex, ad, cv = [], [], []
    for qt in range(4):
        b = Preg(st, qt, ks)
        for e in range(8):
            ex.append(f'v_exp_f32 v{b + e}, v{b + e}')
            if first and e == 0:
                ad.append(f'v_add_f32 v{V_L + qt}, v{V_L + qt}, v{V_LT + qt}')
            elif first and e == 1:
                ad.append(f'v_add_f32 v{V_LT + qt}, v{b}, v{b + 1}')
            else:
                ad.append(f'v_add_f32 v{V_LT + qt}, v{V_LT + qt}, v{b + e}')
        for j in range(4):
            cv.append(f'v_cvt_pk_bf16_f32 v{b + j}, v{b + 2 * j}, v{b + 2 * j + 1}')
    return ex, ad, cv


def _cls(t):
    if t.endswith(':'):
        return 0
    if t.startswith('s_'):
        return 0
    if t.startswith(('ds_', 'buffer_', 'global_')):
        return 1
    return 2


def emit_phase(k, mfmas, gaps):
    for i, m in enumerate(mfmas):
        if m:
            k(m)
        ops = gaps.get(i, [])
        for f in sorted([o for o in ops if not isinstance(o, tuple)], key=_cls):
            k(f)
        for f in ops:
            if isinstance(f, tuple):
                k(f[1])


def place_softmax(gaps, ex, ad, cv):
    for i in range(32):
        gaps.setdefault(2 * i, []).append(ex[i])
        gaps.setdefault(2 * i + 1, []).append(ad[i])
    for j in range(16):
        gaps.setdefault(4 * j + 3, []).append(cv[j])


SM0 = 60


def softmax_stream(st):
    e0, a0, c0 = softmax_half_ops(st, 0, True)
    e1, a1, c1 = softmax_half_ops(st, 1, False)
    ex, ad, cv = e0 + e1, a0 + a1, c0 + c1
    out = []
    E = [SM0 + 2 * i for i in range(62)] + [SM0 + 123, SM0 + 124]
    A = [e + 1 for e in E]
    for i in range(64):
        out.append((E[i], 0, ex[i]))
        out.append((A[i], 1, ad[i]))
    for j in range(32):
        out.append((A[2 * j + 1], 2, cv[j]))
    out.sort(key=lambda x: (x[0], (1, 0, 2)[x[1]]))
    return out


def gen_attn(dbg=False, mallpf=True, bias=None, stflag='sc1', qp0=16, qpn=16, wqpf=2, kvpf=0, cpf=2, wqst=(2, 6), xpf=False, fln=True, hflag='sc1', early_w=0, thr=None, v2=True, skw=None, wq0=1, wqfirst=True, tailpf=True, late_w=4, midpf=True, chain_out=None, chain_in=False, nsh=16, kv0=False, sent=False, wol2=False, hoist=False):
    global BIAS
    BIAS = 48.0 if bias is None else bias
    k = Kernel('attn_kernel', vgprs=256, agprs=256, sgprs=96, grid=256, block=256, lds=160 * 1024)
    if not chain_in:
        k('s_cmp_ge_u32 s2, 256')
        k(f's_cbranch_scc1 {k.L("end")}')
    T = Stamper(k, dbg)
    T.start()
    k(f's_load_dwordx2 s[28:29], s[0:1], {A_WQ}')
    k(f's_load_dwordx2 s[{S_K}:{S_K + 1}], s[0:1], {A_X}')
    k(f's_load_dwordx2 s[{S_OO}:{S_OO + 1}], s[0:1], {D_DBG}')
    k(f's_load_dwordx2 s[44:45], s[0:1], {D_WS}')
    k(f's_load_dwordx4 s[4:7], s[0:1], {A_K}')
    k(f's_load_dwordx2 s[{S_PF}:{S_PF + 1}], s[0:1], {A_WO}')
    if hoist:
        k(f's_load_dwordx2 s[96:97], s[0:1], {A_WO}')
    k(f's_load_dwordx4 s[{S_PT}:{S_PT + 3}], s[0:1], {B_WG}')
    k(f's_load_dwordx2 s[{S_PT + 4}:{S_PT + 5}], s[0:1], {B_WD}')
    k(f's_load_dwordx2 s[{S_PT + 6}:{S_PT + 7}], s[0:1], {W_MOD}')
    if cpf == 1:
        code_prefetch(k, 80, 4, V_PFD, 0, 256, 49152)
    k(f'v_lshrrev_b32 v2, 6, v0')
    k(f'v_and_b32 v{V_LANE}, 63, v0')
    k(f'v_readfirstlane_b32 s{S_W}, v2')
    if cpf == 2:
        code_prefetch_light(k, 80, 53, 4, 5, V_PFD, V_LANE, S_W, 64)
    k('s_and_b32 s40, s2, 7')
    k('s_lshl_b32 s40, s40, 2')
    k('s_lshr_b32 s41, s2, 6')
    k('s_add_u32 s40, s40, s41')
    k('s_bfe_u32 s41, s2, 0x30003')
    k('s_lshl_b32 s42, s40, 19')
    k('s_lshl_b32 s43, s40, 8')
    k(f'v_and_b32 v2, 15, v{V_LANE}')
    k(f'v_lshrrev_b32 v3, 4, v{V_LANE}')
    k(f's_lshl_b32 s{S_M0K}, s{S_W}, 12')
    k(f's_lshl_b32 s46, s{S_W}, 17')
    k(f'v_lshlrev_b32 v4, 13, v3')
    k(f'v_add_u32 v4, s46, v4')
    for j in range(4):
        k(f'v_add_u32 v5, {4 * (j >> 1)}, v3')
        k(f'v_lshlrev_b32 v5, 1, v5')
        k(f'v_xor_b32 v5, v5, v2')
        k(f'v_lshl_add_u32 v5, v5, 4, v4')
        k(f'v_add_u32 v{V_WD + j}, {4 * j * 8192 - 1024 * j}, v5')
    k(f'v_lshlrev_b32 v{V_HD}, 4, v{V_LANE}')
    k('s_lshl_b32 s46, s41, 2')
    k(f's_add_u32 s46, s46, s{S_W}')
    k('s_lshl_b32 s47, s46, 12')
    k('s_lshl_b32 s48, s46, 12')
    k('s_lshl_b32 s49, s40, 19')
    k('s_add_u32 s48, s48, s49')
    k('s_waitcnt lgkmcnt(0)')
    srd(k, S_WQ, 28, 's43', 1024 * 8192 - 31 * 256)
    srd(k, S_H, 44, WS_H1, 2048 * 2048)

    def setup_rest():
        srd(k, S_K, 4, 's42', 524288)
        srd(k, S_V, 6, 's42', 524288)
        srd(k, S_OO, 44, WS_O, 2048 * 8192)
        k(f'v_lshlrev_b32 v4, 8, v3')
        k(f'v_add_u32 v4, s{S_M0K}, v4')
        for j in range(4):
            k(f'v_add_u32 v5, {4 * j}, v3')
            k(f'v_xor_b32 v5, v5, v2')
            k(f'v_lshl_add_u32 v{V_KD + j}, v5, 4, v4')
        for j in range(2):
            k(f'v_add_u32 v5, {4 * j}, v3')
            k(f'v_lshlrev_b32 v5, 1, v5')
            k(f'v_xor_b32 v5, v5, v2')
            k(f'v_lshl_add_u32 v{V_VD + j}, v5, 4, v4')
        k('v_and_b32 v4, 1, v3')
        k('v_lshlrev_b32 v4, 1, v4')
        k('v_lshrrev_b32 v5, 1, v3')
        k('v_or_b32 v4, v4, v5')
        k('v_lshlrev_b32 v6, 8, v2')
        k(f'v_lshl_add_u32 v{V_KG}, v4, 4, v6')
        for s in range(4):
            k(f'v_add_u32 v5, {4 * s}, v4')
            k('v_xor_b32 v5, v5, v2')
            k(f'v_lshl_add_u32 v{V_KA + s}, v5, 4, v6')
        k('v_lshrrev_b32 v4, 2, v2')
        k('v_and_b32 v5, 1, v3')
        k('v_lshl_or_b32 v5, v5, 2, v4')
        k('v_lshlrev_b32 v5, 1, v5')
        k('v_bfe_u32 v6, v2, 1, 1')
        k('v_xor_b32 v5, v5, v6')
        k('v_lshl_add_u32 v4, v3, 3, v4')
        k('v_lshlrev_b32 v4, 8, v4')
        k('v_and_b32 v6, 1, v2')
        k('v_lshl_add_u32 v4, v6, 3, v4')
        k(f'v_add_u32 v4, {LDS_W}, v4')
        for dt in range(8):
            k(f'v_xor_b32 v6, {2 * dt}, v5')
            k(f'v_lshl_add_u32 v{V_VA + dt}, v6, 4, v4')
        k(f'v_lshlrev_b32 v{V_CK}, 10, v3')
        k(f'v_add_u32 v{V_CK}, {LDS_W - LDS_V}, v{V_CK}')
        k(f's_mov_b32 s{S_THR}, {f32(2.0 ** (BIAS if thr is None else thr))}')
        k(f's_mov_b32 s{S_PF + 2}, {4096 * 2048}')
        k(f's_mov_b32 s{S_PF + 3}, 0x00020000')
        k(f's_lshl_b32 s{S_PFO}, s2, 2')
        k(f's_add_u32 s{S_PFO}, s{S_PFO}, s{S_W}')
        k(f's_lshl_b32 s{S_PFO}, s{S_PFO}, 13')
        k(f'v_lshlrev_b32 v{V_PF}, 7, v{V_LANE}')
        k(f'v_cmp_gt_u32 vcc, 16, v{V_LANE}')
        k(f'v_mov_b32 v5, 0x40000000')
        k(f'v_cndmask_b32 v{V_PF}, v5, v{V_PF}, vcc')
        for qt in range(4):
            k(f'v_mov_b32 v{V_L + qt}, 0')
            k(f'v_mov_b32 v{V_LT + qt}, 0')
        srd(k, S_WM, S_PT + 6, 0, 1024 * 12288)
        k(f'v_lshrrev_b32 v4, 1, v{V_LANE}')
        k('s_movk_i32 s53, 12288')
        k('v_mul_lo_u32 v4, v4, s53')
        k(f'v_and_b32 v5, 1, v{V_LANE}')
        k(f'v_lshl_add_u32 v{V_MD}, v5, 4, v4')
        k('s_and_b32 s28, s2, 7')
        k('s_lshl_b32 s28, s28, 5')
        k('s_lshr_b32 s29, s2, 3')
        k('s_add_u32 s28, s28, s29')
        k(f's_mul_i32 s29, s{S_W}, {256 * 12288}')
        k('s_lshl_b32 s53, s28, 5')
        k('s_add_u32 s29, s29, s53')
        k('s_add_u32 s29, s29, 4096')
        k(f's_lshr_b32 s{S_PFN}, s{S_PFO}, 13')
        k(f's_mul_i32 s{S_PFN}, s{S_PFN}, 12288')
        k(f's_add_u32 s{S_PFN}, s{S_PFN}, 4096')

    vm = []

    def vwait(tag):
        last = max(i for i, t in enumerate(vm) if t == tag)
        return min(63, len(vm) - 1 - last)

    def wq_dma(st):
        ops = [f's_add_u32 m0, s{S_M0K}, {LDS_W + (st & 3) * 16384}', f's_mov_b32 s50, {st * 64 * 8192}']
        for j in range(4):
            ops.append((f'buffer_load_dwordx4 v{V_WD + j}, s[{S_WQ}:{S_WQ + 3}], s50 offen offset:{j * 1024} lds', ('W', st)))
        return ops

    def h_loads(st):
        ops = []
        for s in range(2):
            ops.append(f's_add_u32 s51, s47, {(st * 2 + s) * 131072}')
            for qt in range(4):
                b = (st & 3) * 32 + (qt * 2 + s) * 4
                ops.append((f'buffer_load_dwordx4 {r4("a", b)}, v{V_HD}, s[{S_H}:{S_H + 3}], s51 offen offset:{qt * 1024} {hflag if fln else ""}', ('H', st)))
        return ops

    def kv_dma(which, t, soff):
        ops = []
        if which == 'K':
            ops.append(f's_add_u32 m0, s{S_M0K}, {LDS_K + (t & 3) * 16384}')
            for j in range(4):
                ops.append((f'buffer_load_dwordx4 v{V_KD + j}, s[{S_K}:{S_K + 3}], {soff} offen offset:{j * 1024} lds', ('K', t)))
        else:
            ops.append(f's_add_u32 m0, s{S_M0K}, {LDS_V + (t & 3) * 16384}')
            for j in range(4):
                ops.append((f'buffer_load_dwordx4 v{V_VD + (j & 1)}, s[{S_V}:{S_V + 3}], {soff} offen offset:{j * 1024} lds', ('V', t)))
        return ops

    def emit_ops(ops):
        for o in ops:
            if isinstance(o, tuple):
                k(o[0]); vm.append(o[1])
            else:
                k(o)

    def wread(dt, s, half, st):
        b = A_X2 + (dt & 3) * 8 + s * 4 + half * 2
        return f'ds_read_b64_tr_b16 a[{b}:{b + 1}], v{V_VA + dt} offset:{(st & 3) * 16384 + s * 8192 + half * 1024}'

    def qacc(dt, qt):
        return 64 + (qt * 8 + dt) * 4

    NST = 16
    queue = []
    for st in range(NST):
        if not (fln and st < late_w):
            queue.append((st - 3, wq_dma(st)))
        queue.append((st - 3, h_loads(st)))
    for w, t, e in [('K', 0, 0), ('V', 0, 0), ('K', 1, 0), ('V', 1, 0), ('K', 2, 0), ('V', 2, 13), ('K', 3, 0)]:
        queue.append((e, [f's_mov_b32 s52, {t * 16384}'] + kv_dma(w, t, 's52')))
    flat = [(e, o) for e, ops in queue for o in ops]
    nvm = lambda ops: sum(1 for o in ops if isinstance(o, tuple))

    def take(stage, maxv):
        out = []
        while flat and flat[0][0] <= stage:
            if isinstance(flat[0][1], tuple) and nvm(out) >= maxv:
                break
            if not isinstance(flat[0][1], tuple) and nvm(out) >= maxv:
                break
            out.append(flat.pop(0)[1])
        return out
    P = lambda b: f'v[{b}:{b + 1}]'
    if fln:
        X, Yb, PB, MS, MH, TT = 192, 64, 96, 160, 176, 208
        post = math.log2(math.e) / math.sqrt(128)
        k(f's_mov_b32 s{S_K + 2}, {2048 * 2048}')
        k(f's_mov_b32 s{S_K + 3}, 0x00020000')
        srd(k, S_V, 44, 0, 64 << 20)
        k('s_lshl_b32 s50, s41, 8')
        k('s_lshl_b32 s51, s40, 3')
        k('s_add_u32 s50, s50, s51')
        k(f's_lshl_b32 s51, s{S_W}, 1')
        k('s_add_u32 s51, s51, s50')
        k('s_lshl_b32 s51, s51, 11')
        for r in range(2):
            for h in range(2):
                b = X + 8 * r + 4 * h
                emit_ops([(f'buffer_load_dwordx4 {r4("v", b)}, v{V_HD}, s[{S_K}:{S_K + 3}], s51 offen offset:{r * 2048 + h * 1024}', ('L', 0))])
        k(f'v_lshlrev_b32 v{TT + 8}, 4, v0')
        def part_loads():
            k('s_mov_b32 s52, 65536')
            for p in range(8):
                for h in range(2):
                    b = PB + 8 * p + 4 * h
                    emit_ops([(f'buffer_load_dwordx4 {r4("v", b)}, v{TT + 8}, s[{S_V}:{S_V + 3}], s52 offen {"sc1" if chain_in else ""}', ('L', 1))])
                    k('s_add_u32 s52, s52, 4096')
        if not chain_in:
            part_loads()
        k('s_lshr_b32 s53, s50, 4')
        k('s_lshl_b32 s53, s53, 10')
        k('s_and_b32 s52, s50, 8')
        k('s_lshl_b32 s52, s52, 4')
        k('s_add_u32 s53, s53, s52')
        k(f's_lshl_b32 s52, s{S_W}, 20')
        k('s_add_u32 s53, s53, s52')
        for st in range(early_w):
            emit_ops(wq_dma(st))
    else:
        emit_ops(take(-1, 12))
        setup_rest()
        emit_ops(take(-1, qp0 - 12))
    def wq_prefetch():
        if wqpf == 1:
            k('s_lshr_b32 s50, s2, 3')
            k('s_lshl_b32 s50, s50, 2')
            k(f's_add_u32 s50, s50, s{S_W}')
            k('s_lshl_b32 s50, s50, 16')
            k('s_lshr_b32 s51, s2, 6')
            k('s_lshl_b32 s51, s51, 8')
            k('s_add_u32 s50, s50, 8192')
            k('s_sub_u32 s50, s50, s51')
            k(f'v_lshrrev_b32 v4, 3, v{V_LANE}')
            k('v_lshlrev_b32 v4, 13, v4')
            k(f'v_and_b32 v5, 7, v{V_LANE}')
            k('v_lshl_add_u32 v4, v5, 7, v4')
            emit_ops([(f'buffer_load_dword v{V_PFD}, v4, s[{S_WQ}:{S_WQ + 3}], s50 offen', ('P', 0))])
        elif wqpf == 2:
            k('s_lshr_b32 s37, s2, 3')
            k('s_lshl_b32 s37, s37, 2')
            k(f's_add_u32 s37, s37, s{S_W}')
            k('s_lshl_b32 s37, s37, 14')
            k('s_lshr_b32 s51, s2, 6')
            k('s_lshl_b32 s51, s51, 8')
            k(f's_add_u32 s37, s37, {(wq0 - (0 if wqfirst else 256)) * 8192}')
            k('s_sub_u32 s37, s37, s51')
            k(f'v_lshrrev_b32 v4, 3, v{V_LANE}')
            k('v_lshlrev_b32 v4, 13, v4')
            k(f'v_and_b32 v5, 7, v{V_LANE}')
            k('v_lshl_add_u32 v4, v5, 7, v4')
            k(f'v_cmp_gt_u32 vcc, 16, v{V_LANE}')
            k('v_mov_b32 v5, 0x40000000')
            k('v_cndmask_b32 v7, v5, v4, vcc')
            if wqfirst:
                emit_ops([(f'buffer_load_dword v{V_PFD}, v7, s[{S_WQ}:{S_WQ + 3}], s37 offen', ('P', 0))])
        pass
    if not fln:
        wq_prefetch()
    if fln:
        A0, A1 = TT, TT + 2
        for r in range(2):
            for d in range(8):
                k(f'v_lshlrev_b32 v{Yb + 16 * r + 2 * d}, 16, v{X + 8 * r + d}')
                k(f'v_and_b32 v{Yb + 16 * r + 2 * d + 1}, 0xffff0000, v{X + 8 * r + d}')
        for r in range(2):
            k(f'v_pk_add_f32 {P(TT + 2 * r)}, {P(Yb + 16 * r)}, {P(Yb + 16 * r + 2)}')
        for e in range(4, 16, 2):
            for r in range(2):
                k(f'v_pk_add_f32 {P(TT + 2 * r)}, {P(TT + 2 * r)}, {P(Yb + 16 * r + e)}')
        for r in range(2):
            k(f'v_add_f32 v{TT + 2 * r}, v{TT + 2 * r}, v{TT + 2 * r + 1}')
        wave_allreduce_add(k, [TT, TT + 2], [TT + 1, TT + 3])
        for r in range(2):
            k(f'v_mul_f32 v{TT + 2 * r}, {f32(-1.0 / 1024)}, v{TT + 2 * r}')
        for r in range(2):
            for e in range(0, 16, 2):
                o = Yb + 16 * r + e
                k(f'v_pk_add_f32 {P(o)}, {P(o)}, {P(TT + 2 * r)} op_sel_hi:[1,0]')
        for r in range(2):
            k(f'v_pk_mul_f32 {P(TT + 2 * r)}, {P(Yb + 16 * r)}, {P(Yb + 16 * r)}')
        for e in range(2, 16, 2):
            for r in range(2):
                o = Yb + 16 * r + e
                k(f'v_pk_fma_f32 {P(TT + 2 * r)}, {P(o)}, {P(o)}, {P(TT + 2 * r)}')
        for r in range(2):
            k(f'v_add_f32 v{TT + 2 * r}, v{TT + 2 * r}, v{TT + 2 * r + 1}')
        if chain_in:
            k(f's_mov_b32 s{S_OO + 2}, 256')
            k(f's_mov_b32 s{S_OO + 3}, 0x00020000')
            k(f'v_and_b32 v{TT + 10}, {nsh - 1}, v{V_LANE}')
            k(f'v_lshlrev_b32 v{TT + 10}, {8 - (nsh.bit_length() - 1)}, v{TT + 10}')
            k(f's_cmp_lg_u32 s{S_W}, 0')
            k(f's_cbranch_scc1 {k.L("mgot")}')
            k('s_mov_b32 s52, 0')
            k.label('mpoll')
            k(f'buffer_load_dword v{TT + 11}, v{TT + 10}, s[{S_OO}:{S_OO + 3}], 0 offen sc1')
            k('s_waitcnt vmcnt(0)')
            k(f'v_cmp_ne_u32 vcc, {256 // nsh}, v{TT + 11}')
            k(f's_cbranch_vccz {k.L("mgot")}')
            k('s_sleep 4')
            k('s_add_u32 s52, s52, 1')
            k('s_cmp_lt_u32 s52, 0x40000')
            k(f's_cbranch_scc1 {k.L("mpoll")}')
            k.label('mgot')
            k('s_barrier')
            if dbg: T.stamp()
            part_loads()
        k(f's_mov_b32 s50, {f32(post)}')
        for p in range(1, 8):
            for e in range(0, 8, 2):
                k(f'v_pk_add_f32 {P(PB + e)}, {P(PB + e)}, {P(PB + 8 * p + e)}')
        if midpf:
            k('s_mov_b32 s36, s50')
            wq_prefetch()
            k('s_mov_b32 s50, s36')
        for e in range(0, 8, 2):
            k(f'v_cvt_pk_bf16_f32 v{PB + 8 + e // 2}, v{PB + e}, v{PB + 1 + e}')
        for e in range(0, 8, 2):
            k(f'v_lshlrev_b32 v{PB + e}, 16, v{PB + 8 + e // 2}')
            k(f'v_and_b32 v{PB + 1 + e}, 0xffff0000, v{PB + 8 + e // 2}')
        for e in range(4):
            k(f'v_mul_f32 v{PB + e}, s50, v{PB + e}')
            k(f'v_add_f32 v{PB + 4 + e}, 1.0, v{PB + 4 + e}')
        for e in range(0, 4, 2):
            k(f'v_cvt_pk_bf16_f32 v{PB + 8 + e // 2}, v{PB + 4 + e}, v{PB + 5 + e}')
        for e in range(0, 4, 2):
            k(f'v_lshlrev_b32 v{PB + 4 + e}, 16, v{PB + 8 + e // 2}')
            k(f'v_and_b32 v{PB + 5 + e}, 0xffff0000, v{PB + 8 + e // 2}')
        k(f'ds_write_b128 v{TT + 8}, {r4("v", PB)}')
        k(f'ds_write_b128 v{TT + 8}, {r4("v", PB + 4)} offset:4096')
        k(f'v_lshlrev_b32 v{TT + 9}, 5, v{V_LANE}')
        k('s_waitcnt lgkmcnt(0)')
        k('s_barrier')
        for h in range(2):
            for j in range(2):
                k(f'ds_read_b128 {r4("v", MS + 8 * h + 4 * j)}, v{TT + 9} offset:{4096 + h * 2048 + j * 16}')
                k(f'ds_read_b128 {r4("v", MH + 8 * h + 4 * j)}, v{TT + 9} offset:{h * 2048 + j * 16}')
        wave_allreduce_add(k, [TT, TT + 2], [TT + 1, TT + 3])
        k(f's_mov_b32 s51, {f32(1.0 / 1024)}')
        k(f'v_mov_b32 v{TT + 4}, {f32(1e-5)}')
        for r in range(2):
            k(f'v_fma_f32 v{TT + 2 * r}, v{TT + 2 * r}, s51, v{TT + 4}')
        for r in range(2):
            k(f'v_rsq_f32 v{TT + 2 * r}, v{TT + 2 * r}')
        for r in range(2):
            k(f'v_mul_f32 v{TT + 2 * r}, s50, v{TT + 2 * r}')
        k(f'v_lshlrev_b32 v{TT + 10}, 7, v{V_LANE}')
        k(f'v_and_b32 v{TT + 11}, 7, v{V_LANE}')
        k(f's_lshl_b32 s51, s{S_W}, 1')
        for r in range(2):
            for e in range(0, 16, 2):
                o = Yb + 16 * r + e
                k(f'v_pk_mul_f32 {P(o)}, {P(o)}, {P(TT + 2 * r)} op_sel_hi:[1,0]')
            for e in range(0, 16, 2):
                o = Yb + 16 * r + e
                k(f'v_pk_fma_f32 {P(o)}, {P(o)}, {P(MS + e)}, {P(MH + e)}')
            for d in range(8):
                o = Yb + 16 * r + 2 * d
                k(f'v_cvt_pk_bf16_f32 v{Yb + 16 * r + d}, v{o}, v{o + 1}')
            k(f'v_xor_b32 v{TT + 12}, s51, v{TT + 11}')
            k(f'v_lshl_add_u32 v{TT + 12}, v{TT + 12}, 4, v{TT + 10}')
            k(f'ds_write_b128 v{TT + 12}, {r4("v", Yb + 16 * r)} offset:8192')
            k(f'ds_write_b128 v{TT + 12}, {r4("v", Yb + 16 * r + 4)} offset:16384')
            k('s_add_u32 s51, s51, 1')
        k(f'v_lshrrev_b32 v{TT + 13}, 3, v{V_LANE}')
        k(f'v_xor_b32 v{TT + 12}, v{TT + 13}, v{TT + 11}')
        k(f'v_lshlrev_b32 v{TT + 12}, 4, v{TT + 12}')
        k(f'v_lshl_add_u32 v{TT + 12}, v{TT + 13}, 7, v{TT + 12}')
        k(f'v_add_u32 v{TT + 12}, s{S_M0K}, v{TT + 12}')
        k(f'v_lshrrev_b32 v{TT + 14}, 2, v{TT + 13}')
        k(f'v_lshlrev_b32 v{TT + 14}, 17, v{TT + 14}')
        k(f'v_and_b32 v{TT + 15}, 3, v{TT + 13}')
        k(f'v_lshl_add_u32 v{TT + 14}, v{TT + 15}, 8, v{TT + 14}')
        k(f'v_lshl_add_u32 v{TT + 14}, v{TT + 11}, 4, v{TT + 14}')
        k('s_waitcnt lgkmcnt(0)')
        k('s_barrier')
        for i in range(4):
            k(f'ds_read_b128 {r4("v", PB + 4 * i)}, v{TT + 12} offset:{8192 + i * 1024}')
        for i in range(4):
            emit_ops([(f'buffer_store_dwordx4 {r4("v", PB + 4 * i)}, v{TT + 14}, s[{S_H}:{S_H + 3}], s53 offen sc1', ('S', 0))])
            k(f's_add_u32 s53, s53, {2 * 131072}')
        k('s_lshl_b32 s52, s41, 7')
        k(f's_add_u32 s52, s52, {WS_FLG2}')
        k('s_lshl_b32 s53, s40, 2')
        k('s_add_u32 s53, s53, s52')
        k(f's_mov_b64 s[80:81], s[{S_V}:{S_V + 1}]')
        k(f's_mov_b32 s82, {64 << 20}')
        k(f's_mov_b32 s83, 0x00020000')
        k(f'v_mov_b32 v{TT}, 0')
        k(f'v_mov_b32 v{TT + 1}, 1')
        k(f'v_and_b32 v{TT + 2}, 31, v{V_LANE}')
        k(f'v_lshlrev_b32 v{TT + 2}, 2, v{TT + 2}')
        if dbg: T.stamp()
        k('s_mov_b32 s39, s52')
        k('s_mov_b32 s38, s53')
        setup_rest()
        k('s_waitcnt vmcnt(0)')
        k('s_barrier')
        k(f's_cmp_lg_u32 s{S_W}, 0')
        k(f's_cbranch_scc1 {k.L("noflag")}')
        k(f'buffer_store_dword v{TT + 1}, v{TT}, s[80:83], s38 offen sc1')
        k.label('noflag')
        if dbg: T.stamp()
        for st in range(early_w, late_w):
            emit_ops(wq_dma(st))
        if midpf:
            k(f's_add_u32 s37, s37, {256 * 8192}')
            k(f'buffer_load_dword v{V_PFD}, v7, s[{S_WQ}:{S_WQ + 3}], s37 offen')
            if kv0:
                k('s_and_b32 s53, s46, 15')
                k('s_lshl_b32 s53, s53, 11')
                k('s_cmp_lt_u32 s46, 16')
                k(f's_cbranch_scc0 {k.L("kvv")}')
                k(f'buffer_load_dword v{V_PFD}, v{V_PF}, s[{S_K}:{S_K + 3}], s53 offen')
                k(f's_branch {k.L("kve")}')
                k.label('kvv')
                k(f'buffer_load_dword v{V_PFD}, v{V_PF}, s[{S_V}:{S_V + 3}], s53 offen')
                k.label('kve')
        else:
            wq_prefetch()
        k(f's_cmp_lg_u32 s{S_W}, 0')
        k(f's_cbranch_scc1 {k.L("hgot")}')
        k('s_mov_b32 s53, 0')
        k.label('hpoll')
        k(f'buffer_load_dword v{TT + 3}, v{TT + 2}, s[80:83], s39 offen sc1')
        k('s_waitcnt vmcnt(0)')
        k(f'v_cmp_ne_u32 vcc, 1, v{TT + 3}')
        k(f's_cbranch_vccz {k.L("hgot")}')
        k('s_sleep 1')
        k('s_add_u32 s53, s53, 1')
        k('s_cmp_lt_u32 s53, 0x40000')
        k(f's_cbranch_scc1 {k.L("hpoll")}')
        k.label('hgot')
        k('s_waitcnt vmcnt(0)')
        k('s_barrier')
        if dbg: T.stamp()
        del vm[:]
        vm.extend([('W', i) for i in range(late_w)])
        emit_ops(take(-1, 8))
    else:
        k(f's_waitcnt vmcnt({vwait(("W", 0))})')
        k('s_barrier')
    T.stamp()
    PD = 3
    for dt in range(PD):
        for s in range(2):
            for h in range(2):
                k(wread(dt, s, h, 0))

    def qcvt(sp):
        ops = []
        for qt in range(4):
            q = Qreg(qt, sp)
            t0, t1 = qacc(2 * sp, qt), qacc(2 * sp + 1, qt)
            ops += [f'v_cvt_pk_bf16_f32 v{q}, v{t0}, v{t0 + 1}', f'v_cvt_pk_bf16_f32 v{q + 1}, v{t0 + 2}, v{t0 + 3}',
                    f'v_cvt_pk_bf16_f32 v{q + 2}, v{t1}, v{t1 + 1}', f'v_cvt_pk_bf16_f32 v{q + 3}, v{t1 + 2}, v{t1 + 3}']
        for qt in range(4):
            q = Qreg(qt, sp)
            ops += [f'v_permlane16_swap_b32 v{q}, v{q + 2}', f'v_permlane16_swap_b32 v{q + 1}, v{q + 3}']
        return ops
    for st in range(NST):
        gaps = {}

        def put(g, op):
            gaps.setdefault(g, []).append(op)
        M = []
        busy = set()
        BG = 6
        for dt in range(8):
            tgt = dt + PD
            rd = []
            if tgt < 8:
                rd = [wread(tgt, s, h, st) for s in range(2) for h in range(2)]
                pos = [0, 2, 4, 6]
            elif st + 1 < NST:
                if dt == 6:
                    rd = [wread(x, s, h, st + 1) for x in (0, 1) for s in range(2) for h in range(2)][:7]
                    pos = [1, 2, 3, 4, 5, 6, 7]
                elif dt == 7:
                    rd = [wread(1, 1, 1, st + 1)] + [wread(2, s, h, st + 1) for s in range(2) for h in range(2)]
                    pos = [0, 1, 2, 4, 6]
            else:
                if dt == 6:
                    rd = [kread(0, s, 0) for s in range(4)]
                    pos = [1, 3, 5, 7]
                elif dt == 7:
                    rd = [kread(1, s, 0) for s in range(4)]
                    pos = [0, 2, 4, 6]
            for r, p in zip(rd, pos):
                put(dt * 8 + p, r)
                busy.add(dt * 8 + p)
            for qt in range(4):
                for s in range(2):
                    d = r4('v', qacc(dt, qt))
                    a = r4('a', A_X2 + (dt & 3) * 8 + s * 4)
                    b = r4('a', (st & 3) * 32 + (qt * 2 + s) * 4)
                    M.append(mf(d, a, b, '0' if (st == 0 and s == 0) else d))
        side = take(st, qpn)
        if wqpf == 2 and st in wqst:
            side = [f's_add_u32 s37, s37, {256 * 8192}',
                    (f'buffer_load_dword v{V_PFD}, v7, s[{S_WQ}:{S_WQ + 3}], s37 offen', ('P', 0))] + side
        if kvpf and st == kvpf:
            side = [f's_lshl_b32 s53, s46, 11',
                    (f'buffer_load_dword v{V_PFD}, v{V_PF}, s[{S_K}:{S_K + 3}], s53 offen', ('P', 1)),
                    (f'buffer_load_dword v{V_PFD}, v{V_PF}, s[{S_V}:{S_V + 3}], s53 offen', ('P', 1))] + side
        free = [g for g in range(1, 63) if g not in busy and g not in (47, 48)]
        n = nvm(side)
        pos = [free[(i * len(free)) // n] for i in range(n)] if n else []
        vi = 0
        pend_s = []
        for o in side:
            if isinstance(o, tuple):
                put(pos[vi], ('V', pend_s, o))
                pend_s = []
                vi += 1
            else:
                pend_s.append(o)
        assert not pend_s
        if st >= 13:
            z = [f'v_accvgpr_write_b32 a{((st - 13) & 3) * 32 + i}, 0' for i in range(32)]
            for i, o in enumerate(z):
                put(2 * i + (1 if st < 15 else 0) if st < 15 else i // 2, o)
        if st == 15:
            for sp in range(3):
                for i, o in enumerate(qcvt(sp)):
                    put(16 * (sp + 1) + 3 + i // 2, o)
        for i, m in enumerate(M):
            k(m)
            ops = gaps.get(i, [])
            if i == 47:
                if st + 1 < NST:
                    k(f's_waitcnt vmcnt({vwait(("W", st + 1))}) lgkmcnt(0)')
                else:
                    k(f's_waitcnt vmcnt({vwait(("K", 0))})')
            if i == 48:
                k('s_barrier')
            nxt = [o for o in gaps.get(i + 1, []) if isinstance(o, tuple)]
            cur = [o for o in ops if isinstance(o, tuple)]
            if not cur:
                for o in nxt:
                    for sc in o[1]:
                        k(sc)
            for o in cur:
                emit_ops([o[2]])
            if cur:
                for o in nxt:
                    for sc in o[1]:
                        k(sc)
            for o in sorted([o for o in ops if not isinstance(o, tuple)], key=_cls):
                k(o)
        if dbg == 3: T.stamp()
    assert not flat, flat
    T.stamp()
    for o in qcvt(3):
        k(o)
    extras = [f'v_accvgpr_write_b32 a{96 + i}, 0' for i in range(32)]
    extras += [f'v_sub_u32 v{V_VA + dt}, v{V_VA + dt}, v{V_CK}' for dt in range(8)]
    gaps = {}
    for i, o in enumerate(extras):
        gaps.setdefault(i // 2, []).append(o)
    M = []
    for kt in range(4):
        for qt in range(4):
            for s in range(4):
                d = r4('v', Sreg(0, kt, qt))
                M.append(mf(d, r4('a', A_KF + (kt & 1) * 16 + s * 4), r4('v', Qreg(qt, s)), '0' if s == 0 else d))
            if kt < 3:
                b = Sreg(0, kt, qt)
                g = 16 * kt + 4 * qt + 12
                if kt == 0:
                    gaps.setdefault(g + 8, []).append(f'v_max3_f32 v{V_TM + qt}, v{b}, v{b + 1}, v{b + 2}')
                    gaps.setdefault(g + 9, []).append(f'v_max_f32 v{V_TM + qt}, v{V_TM + qt}, v{b + 3}')
                else:
                    gaps.setdefault(g, []).append(f'v_max3_f32 v{V_TM + qt}, v{V_TM + qt}, v{b}, v{b + 1}')
                    gaps.setdefault(g + 1, []).append(f'v_max3_f32 v{V_TM + qt}, v{V_TM + qt}, v{b + 2}, v{b + 3}')
        if kt + 2 < 4:
            for s in range(4):
                gaps.setdefault(16 * (kt + 1) + 2 * s, []).append(kread(kt + 2, s, 0))
    gaps.setdefault(55, []).append(f's_waitcnt vmcnt({min(vwait(("V", 0)), vwait(("K", 1)))}) lgkmcnt(0)')
    gaps.setdefault(56, []).append('s_barrier')
    for s in range(4):
        gaps.setdefault(57 + s, []).append(kread(0, s, 1))
    emit_phase(k, M, gaps)
    for qt in range(4):
        b = Sreg(0, 3, qt)
        k(f'v_max3_f32 v{V_TM + qt}, v{V_TM + qt}, v{b}, v{b + 1}')
        k(f'v_max3_f32 v{V_TM + qt}, v{V_TM + qt}, v{b + 2}, v{b + 3}')

    def rowmax(st, dst, local=True):
        for qt in range(4 if local else 0):
            regs = [Sreg(st, kt, qt) + r for kt in range(4) for r in range(4)]
            d = dst + qt
            k(f'v_max3_f32 v{d}, v{regs[0]}, v{regs[1]}, v{regs[2]}')
            for i in range(3, 15, 2):
                k(f'v_max3_f32 v{d}, v{d}, v{regs[i]}, v{regs[i + 1]}')
            k(f'v_max_f32 v{d}, v{d}, v{regs[15]}')
        for sw in ('v_permlane16_swap_b32', 'v_permlane32_swap_b32'):
            for qt in range(4):
                k(f'v_mov_b32 v{V_T0 + qt}, v{dst + qt}')
            for qt in range(4):
                k(f'{sw} v{V_T0 + qt}, v{dst + qt}')
            for qt in range(4):
                k(f'v_max_f32 v{dst + qt}, v{dst + qt}, v{V_T0 + qt}')

    rowmax(0, V_TM, local=False)
    k(f's_mov_b32 s53, {f32(BIAS)}')
    for qt in range(4):
        k(f'v_add_f32 v{V_TM + qt}, s53, v{V_TM + qt}')
        for r in range(4):
            k(f'v_sub_f32 v{V_CI + qt * 4 + r}, 0, v{V_TM + qt}')
    for kt in range(4):
        for qt in range(4):
            for r in range(4):
                x = Sreg(0, kt, qt) + r
                k(f'v_sub_f32 v{x}, v{x}, v{V_TM + qt}')
    k(f's_mov_b32 s{S_KOFF}, {4 * 16384}')
    k(f's_mov_b32 s{S_VOFF}, {3 * 16384}')
    k(f's_mov_b32 s{S_TOFF}, 0')
    k(f's_mov_b32 s{S_CNT}, 0')
    if wol2:
        k(f's_mov_b64 s[76:77], s[{S_PF}:{S_PF + 1}]')
        k('s_lshr_b32 s78, s2, 3')
        k('s_lshl_b32 s78, s78, 2')
        k(f's_add_u32 s78, s78, s{S_W}')
        k('s_lshl_b32 s78, s78, 15')
        k('s_and_b32 s53, s2, 1')
        k('s_lshl_b32 s53, s53, 22')
        k('s_add_u32 s78, s78, s53')
        k('s_bfe_u32 s53, s2, 0x10001')
        k('s_lshl_b32 s53, s53, 10')
        k('s_add_u32 s78, s78, s53')
        k(f'v_lshrrev_b32 v4, 3, v{V_LANE}')
        k('v_lshlrev_b32 v4, 13, v4')
        k(f'v_and_b32 v5, 7, v{V_LANE}')
        k('v_lshl_add_u32 v4, v5, 7, v4')
        k(f'v_cmp_gt_u32 vcc, 32, v{V_LANE}')
        k('v_mov_b32 v5, 0x40000000')
        k('v_cndmask_b32 v7, v5, v4, vcc')
    if tailpf:
        k('s_getpc_b64 s[80:81]')
        k.label('tpc')
        k(f's_add_u32 s80, s80, {k.L("tail")}-{k.L("tpc")}')
        k('s_addc_u32 s81, s81, 0')
        k(f's_mov_b32 s82, {k.L("end")}-{k.L("tail")}')
        k(f's_and_b32 s37, s{S_W}, 1')
        k('s_lshl_b32 s37, s37, 13')
    tramps = []

    def epi_ops(j):
        ops = [f's_add_u32 s49, s48, {j * 131072}']
        for qt in range(4):
            gi = j * 4 + qt
            t = (64 + gi * 8) if gi < 8 else (192 + (gi - 8) * 8)
            for h in range(2):
                for r in range(4):
                    ops.append(f'v_accvgpr_read_b32 v{t + h * 4 + r}, a{Oreg(2 * j + h, qt) + r}')
            for e in range(8):
                ops.append(f'v_mul_f32 v{t + e}, v{t + e}, v{V_L + qt}')
            for e in range(4):
                ops.append(f'v_cvt_pk_bf16_f32 v{t + e}, v{t + 2 * e}, v{t + 2 * e + 1}')
            ops.append(f'buffer_store_dwordx4 {r4("v", t)}, v{V_HD}, s[{S_OO}:{S_OO + 3}], s49 offen offset:{qt * 1024} {stflag}')
        return ops

    def tile(t4, last=False, tag='', pf=False, peel=False):
        st, sn = t4 & 1, (t4 + 1) & 1
        M = []
        gaps = {}

        def put(g, op):
            gaps.setdefault(g, []).append(op)
        for pos, _, op in softmax_stream(st):
            if pos >= 128:
                put(pos - 128, op)
        put(58, f'v_max3_f32 v{V_CK}, v{V_LT}, v{V_LT + 1}, v{V_LT + 2}')
        put(58, f'v_max_f32 v{V_CK}, v{V_CK}, v{V_LT + 3}')
        put(59, f'v_cmp_nge_f32 vcc, s{S_THR}, v{V_CK}')
        lab = k.newlabel('tr')
        put(60, f's_cbranch_vccnz {k.L(lab)}')
        put(60, k.L(lab + 'r') + ':')
        tramps.append((lab, st))
        if not last:
            for pos, _, op in softmax_stream(sn):
                if pos < 128:
                    put(pos, op)
        else:
            lops = [f'v_add_f32 v{V_L + qt}, v{V_L + qt}, v{V_LT + qt}' for qt in range(4)]
            for sw in ('v_permlane16_swap_b32', 'v_permlane32_swap_b32'):
                lops += [f'v_mov_b32 v{V_T0 + qt}, v{V_L + qt}' for qt in range(4)]
                lops += [f'{sw} v{V_T0 + qt}, v{V_L + qt}' for qt in range(4)]
                lops += [f'v_add_f32 v{V_L + qt}, v{V_L + qt}, v{V_T0 + qt}' for qt in range(4)]
            lops += [f'v_rcp_f32 v{V_L + qt}, v{V_L + qt}' for qt in range(4)]
            for i, o in enumerate(lops):
                put(64 + i // 2, o)
            put(61, f's_add_u32 s{S_H}, s44, {WS_MOD}')
            put(61, f's_addc_u32 s{S_H + 1}, s45, 0')
            put(61, f's_mov_b32 s{S_H + 2}, 65536')
            put(62, f's_lshl_b32 s50, s{S_W}, 9')
            put(62, f's_add_u32 s50, s50, 32768')
            put(62, f'v_and_b32 v{V_KG}, 0x30, v{V_LANE}')
            put(63, f's_waitcnt vmcnt(0)')
            put(63, f'v_lshlrev_b32 v{V_CK}, 4, v{V_KG}')
            put(63, f'v_and_b32 v{V_MD}, 15, v{V_LANE}')
            put(63, f'v_lshl_add_u32 v{V_CK}, v{V_MD}, 3, v{V_CK}')
            put(63, f's_lshl_b32 s51, s{S_M0K}, 1')
            put(63, f's_add_u32 s51, s51, {LDS_M}')
            put(63, ('raw', f'v_add_u32 v{V_CK}, s51, v{V_CK}'))
            for s8 in range(8):
                put(64 + 2 * s8, f'buffer_load_dwordx4 {r4("a", A_X2 + 4 * s8)}, v{V_KG}, s[{S_H}:{S_H + 3}], s50 offen offset:{s8 * 64}')
                for h in range(2):
                    b = A_X2 + 32 + 4 * s8 + 2 * h
                    put(106 + 2 * s8 + h, f'ds_read_b64_tr_b16 a[{b}:{b + 1}], v{V_CK} offset:{s8 * 1024 + h * 128}')
            for j in range(3):
                eo = epi_ops(j)
                g0 = 64 + 16 * (j + 1) + 2
                span = min(16, 128 - g0)
                for i, o in enumerate(eo):
                    put(g0 + (i * span) // len(eo), ('raw', o))
        kslot = (t4 + 1) & 3
        if not last:
            for kt in range(4):
                for qt in range(4):
                    for s in range(4):
                        d = r4('v', Sreg(sn, kt, qt))
                        c = r4('v', V_CI + qt * 4) if s == 0 else d
                        M.append(mf(d, r4('a', A_KF + (kt & 1) * 16 + s * 4), r4('v', Qreg(qt, s)), c))
                if kt + 1 < 4:
                    for s, g in enumerate([1, 3, 5, 9]):
                        put(16 * kt + g, kread(kt + 1, s, kslot))
            ops = kv_dma('V', t4 + 3, f's{S_VOFF}') + [f's_add_u32 s{S_VOFF}, s{S_VOFF}, 16384'] \
                + kv_dma('K', t4, f's{S_KOFF}') + [f's_add_u32 s{S_KOFF}, s{S_KOFF}, 16384']
            ops = [o[0] if isinstance(o, tuple) else o for o in ops]
            slots = [10, 11, 13, 27, 29, 30, 42, 43, 45, 47, 49, 50]
            if peel:
                def wm(half):
                    o = [f's_lshl_b32 m0, s{S_M0K}, 1', f's_add_u32 m0, m0, {LDS_M + half * 4096}']
                    sl = [40, 42]
                    for j, g in enumerate([43, 45, 47, 49]):
                        o += [f'buffer_load_dwordx4 v{V_MD}, s[{S_WM}:{S_WM + 3}], s29 offen offset:{j * 1024} lds',
                              f's_add_u32 s29, s29, {32 * 12288 - 1024 + (4096 if j == 3 else 0)}']
                        sl += [g, g + 1]
                    return o, sl
                ops, slots = (ops[:6], slots[:6]) if t4 == 0 else ([], [])
                if t4 < 2:
                    o, sl = wm(t4)
                    ops, slots = ops + o, slots + sl
            for o, g in zip(ops, slots):
                put(g, o)
        else:
            M = [None] * 64
        vr = [vread(dt, ks, h, t4) for dt in range(3) for ks in range(2) for h in range(2)]
        for i, g in enumerate([7, 15, 23, 31, 39, 51, 53, 55, 57, 59, 61, 63]):
            put(g, vr[i])
        for dt in range(8):
            for qt in range(4):
                for ks in range(2):
                    d = r4('a', Oreg(dt, qt))
                    M.append(mf(d, r4('a', A_VF + (dt & 3) * 8 + ks * 4), r4('v', Preg(st, qt, ks)), d))
            if dt + 3 < 8:
                vr = [vread(dt + 3, ks, h, t4) for ks in range(2) for h in range(2)]
                for i, g in enumerate([1, 3, 5, 7]):
                    put(64 + 8 * dt + g, vr[i])
        put(66, f's_add_u32 s{S_TOFF}, s{S_TOFF}, 16384')
        if pf:
            put(105, f'buffer_load_dword v{V_PFD}, v{V_PF}, s[{S_PF}:{S_PF + 3}], s{S_PFO} offen offset:{(t4 & 1) * 2048}')
            if t4 == 1:
                put(106, f's_add_u32 s{S_PFO}, s{S_PFO}, 4096')
            if t4 == 3:
                rot = [f's_sub_u32 s{S_PFO}, s{S_PFO}, 4096',
                       f's_mov_b64 s[{S_PF}:{S_PF + 1}], s[{S_PT}:{S_PT + 1}]',
                       f's_mov_b64 s[{S_PT}:{S_PT + 1}], s[{S_PT + 2}:{S_PT + 3}]',
                       f's_mov_b64 s[{S_PT + 2}:{S_PT + 3}], s[{S_PT + 4}:{S_PT + 5}]',
                       f's_mov_b64 s[{S_PT + 4}:{S_PT + 5}], s[{S_PT + 6}:{S_PT + 7}]',
                       f's_mov_b64 s[{S_PT + 6}:{S_PT + 7}], s[44:45]',
                       f's_cmp_lt_u32 s{S_CNT}, 3',
                       f's_cselect_b32 s{S_PF + 2}, {1024 * 7168}, 0',
                       f's_cmp_eq_u32 s{S_CNT}, 3',
                       f's_cselect_b32 s{S_PF + 2}, {1024 * 12288}, s{S_PF + 2}',
                       f's_cselect_b32 s{S_PFO}, s{S_PFN}, s{S_PFO}']
                if xpf:
                    rot += [f's_cmp_eq_u32 s{S_CNT}, 4',
                            f's_cselect_b32 s{S_PF + 2}, {64 << 20}, s{S_PF + 2}',
                            f's_cselect_b32 s{S_PFO}, s37, s{S_PFO}']
                for o, g in zip(rot, [106, 107, 108, 109, 110, 114, 116, 118, 119, 120, 122, 123, 124, 126]):
                    put(g, o)
        if not last:
            put(111, f's_waitcnt vmcnt({[16, 12, 4][t4] if peel else 17 if pf else 16}) lgkmcnt(0)')
            put(112, 's_barrier')
            for s, g in enumerate([113, 115, 117, 121]):
                put(g, kread(0, s, (t4 + 2) & 3))
        emit_phase(k, M, gaps)

    SCH = sched_attn.best(**(skw or {})) if v2 else None
    V_ONE = V_WD

    def sop(o, ss):
        if o[0] == 'E':
            r = Preg(ss, o[1], o[2]) + o[3]
            return f'v_exp_f32 v{r}, v{r}'
        if o[0] == 'C':
            b = Preg(ss, o[1], o[2])
            return f'v_cvt_pk_bf16_f32 v{b + o[3]}, v{b + 2 * o[3]}, v{b + 2 * o[3] + 1}'
        if o[0] == 'L':
            return f'v_add_f32 v{V_L + o[1]}, v{V_L + o[1]}, v{V_LT + o[1]}'
        if o[0] == 'A':
            b = Preg(ss, o[1], 1)
            lt = V_LT + o[1]
            if o[2] == 1:
                return f'v_add_f32 v{lt}, v{b}, v{b + 1}'
            if o[2] == 8:
                return f'v_add_f32 v{lt}, v{lt}, v{Preg(ss, o[1], 0) + 4}'
            return f'v_add_f32 v{lt}, v{lt}, v{b + o[2]}'
        if o[0] == 'X':
            return [f'v_max3_f32 v{V_CK}, v{V_LT}, v{V_LT + 1}, v{V_LT + 2}', f'v_max_f32 v{V_CK}, v{V_CK}, v{V_LT + 3}',
                    f'v_cmp_nge_f32 vcc, s{S_THR}, v{V_CK}'][o[1]]

    def summ(q, ss):
        b = Preg(ss, q, 0)
        return mf(r4('v', b + 4), r4('v', V_ONE), r4('v', b), '0')

    def tile2(t4, last=False, pf=False, peel=False):
        NG, G0, BAR = sched_attn.NG, 63, 68
        _, MS, SG, _ = SCH
        st, sn = t4 & 1, (t4 + 1) & 1
        gaps = {}

        def put(g, op):
            gaps.setdefault(g, []).append(op)
        M = []
        for i, m in enumerate(MS):
            if m[0] == 'QK':
                _, kt, qt, s = m
                d = r4('v', Sreg(sn, kt, qt))
                M.append(None if last else mf(d, r4('a', A_KF + (kt & 1) * 16 + s * 4), r4('v', Qreg(qt, s)), r4('v', V_CI + qt * 4) if s == 0 else d))
            elif m[0] == 'PV':
                _, dt, qt, ks = m
                d = r4('a', Oreg(dt, qt))
                M.append(mf(d, r4('a', A_VF + (dt & 3) * 8 + ks * 4), r4('v', Preg(st, qt, ks)), d))
            else:
                M.append(summ(m[1], st) if i < G0 else (None if last else summ(m[1], sn)))
        seen = set()
        wg = {BAR - 1, BAR, G0}
        for i, m in enumerate(MS):
            key = (m[0], m[1], m[3]) if m[0] != 'SUM' else None
            if key and key not in seen:
                seen.add(key)
                wg.add((i - 1) % NG)
        used_s = set(wg)

        def put_s(lo, hi, op):
            for g in range(lo, hi + 1):
                if g not in used_s:
                    used_s.add(g)
                    put(g, op)
                    return g
            put(hi, op)
            return hi
        vd = [o[0] if isinstance(o, tuple) else o for o in kv_dma('V', t4 + 3, f's{S_VOFF}')]
        kd = [o[0] if isinstance(o, tuple) else o for o in kv_dma('K', t4, f's{S_KOFF}')]
        dpos = {}
        for u, ops in SG.items():
            g = u % NG
            for o in ops:
                if o[0] in 'ECLAX':
                    if u >= NG:
                        put(g, sop(o, st))
                    elif not last:
                        put(g, sop(o, sn))
                elif o[0] == 'K':
                    if not last:
                        put(g, kread(o[1], o[2], (t4 + (1 if u >= NG else 2)) & 3))
                elif o[0] == 'V':
                    put(g, vread(o[1], o[2], o[3], t4))
                elif o[0] == 'D':
                    dpos[o[1]] = g
        lab = k.newlabel('tr')
        put(G0, f's_cbranch_vccnz {k.L(lab)}')
        put(G0, k.L(lab + 'r') + ':')
        tramps.append((lab, st))
        put_s(G0 + 1, G0 + 12, f's_add_u32 s{S_TOFF}, s{S_TOFF}, 16384')
        if not last:
            if not peel or t4 == 0:
                put_s(BAR + 1, dpos[0] - 1, vd[0])
                for j in range(4):
                    put(dpos[j], vd[1 + j])
                put(dpos[3] + 1, f's_add_u32 s{S_VOFF}, s{S_VOFF}, 16384')
                used_s.add(dpos[3] + 1)
            if not peel:
                put_s(4, dpos[4] - 1, kd[0])
                for j in range(4):
                    put(dpos[4 + j], kd[1 + j])
                put_s(dpos[7] + 1, G0 - 1, f's_add_u32 s{S_KOFF}, s{S_KOFF}, 16384')
            elif t4 < 2:
                g = put_s(4, dpos[4] - 3, f's_lshl_b32 m0, s{S_M0K}, 1')
                put_s(g + 1, dpos[4] - 1, f's_add_u32 m0, m0, {LDS_M + t4 * 4096}')
                for j in range(4):
                    put(dpos[4 + j], f'buffer_load_dwordx4 v{V_MD}, s[{S_WM}:{S_WM + 3}], s29 offen offset:{j * 1024} lds')
                    put_s(dpos[4 + j] + 1, dpos[5 + j] - 1, f's_add_u32 s29, s29, {32 * 12288 - 1024 + (4096 if j == 3 else 0)}')
            if sent and peel and t4 in (1, 2):
                for r in range(4):
                    put(G0 + 1 + r, f'v_accvgpr_write_b32 a{A_X2 + r}, -1')
                for j in range(4):
                    put(dpos[j], f'buffer_store_dwordx4 {r4("a", A_X2)}, v{V_HD}, s[{S_H}:{S_H + 3}], s37 offen sc1')
                    put(dpos[j] + 1, f's_add_u32 s37, s37, {1 << 20}')
                    used_s.add(dpos[j] + 1)
            put(BAR - 1, f's_waitcnt vmcnt({4 if (peel and t4 == 2) else 12})')
            put(BAR, 's_barrier')
        if pf:
            put(dpos[8], f'buffer_load_dword v{V_PFD}, v{V_PF}, s[{S_PF}:{S_PF + 3}], s{S_PFO} offen offset:{(t4 & 1) * 2048}')
            if t4 == 1:
                put_s(80, 100, f's_add_u32 s{S_PFO}, s{S_PFO}, 4096')
            if t4 == 3:
                rot = [f's_sub_u32 s{S_PFO}, s{S_PFO}, 4096',
                       f's_mov_b64 s[{S_PF}:{S_PF + 1}], s[{S_PT}:{S_PT + 1}]',
                       f's_mov_b64 s[{S_PT}:{S_PT + 1}], s[{S_PT + 2}:{S_PT + 3}]',
                       f's_mov_b64 s[{S_PT + 2}:{S_PT + 3}], s[{S_PT + 4}:{S_PT + 5}]',
                       f's_mov_b64 s[{S_PT + 4}:{S_PT + 5}], s[{S_PT + 6}:{S_PT + 7}]',
                       f's_cmp_lt_u32 s{S_CNT}, 3',
                       f's_cselect_b32 s{S_PF + 2}, {1024 * 7168}, 0',
                       f's_cmp_eq_u32 s{S_CNT}, 3',
                       f's_cselect_b32 s{S_PF + 2}, {1024 * 12288}, s{S_PF + 2}',
                       f's_cselect_b32 s{S_PFO}, s{S_PFN}, s{S_PFO}']
                if tailpf:
                    rot += [f's_cmp_eq_u32 s{S_CNT}, {4 if wol2 else 5}',
                            f's_cselect_b64 s[{S_PF}:{S_PF + 1}], s[80:81], s[{S_PF}:{S_PF + 1}]',
                            f's_cselect_b32 s{S_PF + 2}, s82, s{S_PF + 2}',
                            f's_cselect_b32 s{S_PFO}, s37, s{S_PFO}']
                if wol2:
                    rot += [f's_cmp_eq_u32 s{S_CNT}, 5',
                            f's_cselect_b64 s[{S_PF}:{S_PF + 1}], s[76:77], s[{S_PF}:{S_PF + 1}]',
                            f's_cselect_b32 s{S_PF + 2}, {4096 * 2048}, s{S_PF + 2}',
                            f's_cselect_b32 s{S_PFO}, s78, s{S_PFO}',
                            's_cselect_b64 s[74:75], -1, 0']
                    put(125, f'v_cndmask_b32 v{V_PF}, v{V_PF}, v7, s[74:75]')
                rot += [f's_add_u32 s{S_CNT}, s{S_CNT}, 1']
                g = 80
                for o in rot:
                    g = put_s(g + 1, 122, o)
        if hoist and peel and t4 >= 2:
            slots = [dpos[j] for j in range(4)] if t4 == 2 else list(range(2, 50, 4))
            for g in slots:
                pend = []
                while not HD[0].startswith('buffer_'):
                    pend.append(HD.pop(0))
                for o in pend:
                    put(g - 1, ('raw', o))
                put(g, HD.pop(0))
        if last:
            B0 = 66
            lops = [f'v_add_f32 v{V_L + qt}, v{V_L + qt}, v{V_LT + qt}' for qt in range(4)]
            for sw in ('v_permlane16_swap_b32', 'v_permlane32_swap_b32'):
                lops += [f'v_mov_b32 v{V_T0 + qt}, v{V_L + qt}' for qt in range(4)]
                lops += [f'{sw} v{V_T0 + qt}, v{V_L + qt}' for qt in range(4)]
                lops += [f'v_add_f32 v{V_L + qt}, v{V_L + qt}, v{V_T0 + qt}' for qt in range(4)]
            lops += [f'v_rcp_f32 v{V_L + qt}, v{V_L + qt}' for qt in range(4)]
            for i, o in enumerate(lops):
                put(B0 + i // 2, o)
            for o in [f's_add_u32 s{S_H}, s44, {WS_MOD}', f's_addc_u32 s{S_H + 1}, s45, 0', f's_mov_b32 s{S_H + 2}, 65536',
                      f's_lshl_b32 s50, s{S_W}, 9', f's_add_u32 s50, s50, 32768', f'v_and_b32 v{V_KG}, 0x30, v{V_LANE}',
                      f's_waitcnt vmcnt({16 if hoist else 0})', f'v_lshlrev_b32 v{V_CK}, 4, v{V_KG}', f'v_and_b32 v{V_MD}, 15, v{V_LANE}',
                      f'v_lshl_add_u32 v{V_CK}, v{V_MD}, 3, v{V_CK}', f's_lshl_b32 s51, s{S_M0K}, 1', f's_add_u32 s51, s51, {LDS_M}',
                      f'v_add_u32 v{V_CK}, s51, v{V_CK}']:
                put(65, ('raw', o))
            for s8 in range(8):
                put(B0 + 2 * s8, f'buffer_load_dwordx4 {r4("a", A_X2 + 4 * s8)}, v{V_KG}, s[{S_H}:{S_H + 3}], s50 offen offset:{s8 * 64} {"sc1" if chain_in else ""}')
                for h in range(2):
                    b = A_X2 + 32 + 4 * s8 + 2 * h
                    put(114 + 2 * s8 + h, f'ds_read_b64_tr_b16 a[{b}:{b + 1}], v{V_CK} offset:{s8 * 1024 + h * 128}')
            for j in range(3):
                eo = epi_ops(j)
                g0 = max(i for i, m in enumerate(MS) if m[0] == 'PV' and m[1] == 2 * j + 1) + 3
                span = min(16, NG - g0)
                for i, o in enumerate(eo):
                    put(g0 + (i * span) // len(eo), ('raw', o))
        emit_phase(k, M, gaps)

    if not v2:
        pre = [(pos + (0 if kind == 0 else 3), op) for pos, kind, op in softmax_stream(0) if pos < 128]
        pre.sort(key=lambda x: x[0])
        for pos, op in pre:
            k(op)
    else:
        for r in range(4):
            k(f'v_mov_b32 v{V_ONE + r}, 0x3e803e80')
        for u in sorted(SCH[2]):
            if u >= sched_attn.NG:
                break
            if SCH[1][u][0] == 'SUM':
                k(summ(SCH[1][u][1], 0))
            for o in SCH[2][u]:
                if o[0] in 'ECLA':
                    k(sop(o, 0))
                elif o[0] == 'K' and o[1] == 1:
                    k(kread(1, o[2], 1))
    T.stamp()
    k('.p2align 6')
    k.label('loop')
    for t4 in range(4):
        (tile2 if v2 else tile)(t4, pf=mallpf)
    if not (v2 and mallpf):
        k(f's_add_u32 s{S_CNT}, s{S_CNT}, 1')
    k(f's_cmp_lt_u32 s{S_CNT}, 7')
    k(f's_cbranch_scc1 {k.L("loop")}')
    k.label('tail')
    HD = []
    if hoist:
        su, HD = stub_small(4096, False, 92, V_KD, V_PF, V_LANE, (86, 87, 88))
        for o in su:
            k(o)
    if sent:
        k(f's_mov_b64 s[{S_H}:{S_H + 1}], s[44:45]')
        k(f's_mov_b32 s{S_H + 2}, {64 << 20}')
        k('s_lshl_b32 s37, s2, 2')
        k(f's_add_u32 s37, s37, s{S_W}')
        k('s_lshl_b32 s37, s37, 10')
        k(f's_add_u32 s37, s37, {48 << 20}')
    T.stamp()
    for t4 in range(4):
        (tile2 if v2 else tile)(t4, last=(t4 == 3), peel=True)
    T.stamp()

    for s8 in range(8):
        k(mf(r4('v', V_TM), r4('a', A_X2 + 32 + 4 * s8), r4('a', A_X2 + 4 * s8), '0' if s8 == 0 else r4('v', V_TM)))
    for o in epi_ops(3):
        k(o)
    k(f'v_lshlrev_b32 v2, 6, v{V_LANE}')
    k(f's_lshl_b32 s51, s{S_W}, 6')
    k(f'v_add_u32 v3, s51, v{V_KG}')
    GS = 65536 - 256 if False else 0
    k(f'v_add_u32 v3, {LDS_V if hoist else 0}, v3')
    k(f'ds_write_b128 v3, {r4("v", V_TM)}')
    k('s_waitcnt lgkmcnt(0)')
    k('s_barrier')
    k(f's_cmp_lg_u32 s{S_W}, 0')
    k(f's_cbranch_scc1 {k.L("fin")}')
    k(f'v_lshlrev_b32 v2, 2, v{V_MD}')
    k(f'v_add_u32 v3, {LDS_V if hoist else 0}, v2')
    for w in range(4):
        k(f'ds_read_b32 v{4 + w}, v3 offset:{w * 64}')
    k('v_add_f32 v4, v4, v5')
    k('v_add_f32 v6, v6, v7')
    k('v_add_f32 v4, v4, v6')
    k('v_cvt_pk_bf16_f32 v4, v4, v4')
    k('v_and_b32 v4, 0xffff0000, v4')
    k('s_lshr_b32 s29, s28, 6')
    k('s_cmp_eq_u32 s29, 2')
    k('s_cselect_b32 s29, 1.0, 0')
    k('v_add_f32 v4, s29, v4')
    k('v_cvt_pk_bf16_f32 v4, v4, v4')
    k('v_and_b32 v4, 0xffff0000, v4')
    k('s_lshl_b32 s29, s28, 6')
    k('s_add_u32 s29, s29, 8192')
    k(f'buffer_store_dword v4, v2, s[{S_H}:{S_H + 3}], s29 offen {"sc1" if chain_out else ""}')
    k.label('fin')
    k('s_waitcnt vmcnt(0)') if dbg else None
    T.stamp()
    T.dump(44, S_W, 0)
    if chain_out:
        k('s_lshl_b32 s3, s41, 5')
        k('s_add_u32 s3, s3, s40')
        k('s_lshl_b32 s3, s3, 2')
        k(f's_add_u32 s3, s3, {WS_FLG3}')
        k('s_lshl_b32 s79, s28, 2')
        k(f's_add_u32 s79, s79, {WS_FLG3 + 3072}')
        k(f's_branch {chain_out}')
    k.label('end')
    k('s_endpgm')

    for lab, st in tramps:
        k.label(lab)
        k(f's_call_b64 s[{S_RET}:{S_RET + 1}], {k.L("slow%d" % st)}')
        k(f's_branch {k.L(lab + "r")}')
    for st in range(2):
        sn = st ^ 1
        k.label(f'slow{st}')
        for kt in range(4):
            k(f's_add_u32 s52, s{S_TOFF}, {kt * 4096}')
            for s in range(4):
                k(f'buffer_load_dwordx4 {r4("a", A_X2 + (kt * 4 + s) * 4)}, v{V_KG}, s[{S_K}:{S_K + 3}], s52 offen offset:{s * 64}')
        k('s_waitcnt vmcnt(0)')
        for kt in range(4):
            for qt in range(4):
                for s in range(4):
                    d = r4('v', Sreg(st, kt, qt))
                    c = r4('v', V_CI + qt * 4) if s == 0 else d
                    k(mf(d, r4('a', A_X2 + (kt * 4 + s) * 4), r4('v', Qreg(qt, s)), c))
        rowmax(st, V_TM)
        k(f's_mov_b32 s53, {f32(BIAS)}')
        for qt in range(4):
            k(f'v_add_f32 v{V_TM + qt}, s53, v{V_TM + qt}')
            k(f'v_max_f32 v{V_TM + qt}, 0, v{V_TM + qt}')
            k(f'v_sub_f32 v{V_T0 + qt}, 0, v{V_TM + qt}')
            k(f'v_exp_f32 v{V_T0 + qt}, v{V_T0 + qt}')
            for r in range(4):
                k(f'v_sub_f32 v{V_CI + qt * 4 + r}, v{V_CI + qt * 4 + r}, v{V_TM + qt}')
            k(f'v_mul_f32 v{V_L + qt}, v{V_L + qt}, v{V_T0 + qt}')
        for ss in (st, sn):
            for kt in range(4):
                for qt in range(4):
                    for r in range(4):
                        x = Sreg(ss, kt, qt) + r
                        k(f'v_sub_f32 v{x}, v{x}, v{V_TM + qt}')
        for dt in range(8):
            for qt in range(4):
                for r in range(4):
                    a = Oreg(dt, qt) + r
                    k(f'v_accvgpr_read_b32 v6, a{a}')
                    k(f'v_mul_f32 v6, v6, v{V_T0 + qt}')
                    k(f'v_accvgpr_write_b32 a{a}, v6')
        for qt in range(4):
            k(f'v_mov_b32 v{V_LT + qt}, 0')
        for ks in range(2):
            ex, ad, cv = softmax_half_ops(st, ks, False)
            g0 = {}
            place_softmax(g0, ex, ad, cv)
            emit_phase(k, [None] * 64, g0)
        k(f's_setpc_b64 s[{S_RET}:{S_RET + 1}]')
    return k
```

```python
from common import *
import math


def r4(f, b):
    return f'{f}[{b}:{b + 3}]'


def mf(d, a, b, c):
    return f'v_mfma_f32_16x16x32_bf16 {d}, {a}, {b}, {c}'


def _cls(t):
    if t.startswith('s_'):
        return 0
    if t.startswith(('ds_', 'buffer_', 'global_')):
        return 1
    return 2


def lane_decomp(k):
    k('v_lshrrev_b32 v2, 6, v0')
    k('v_and_b32 v1, 63, v0')
    k('v_readfirstlane_b32 s30, v2')
    k('v_and_b32 v2, 15, v1')
    k('v_lshrrev_b32 v3, 4, v1')


def mainloop(k, NST, R, D, NT, MT, KS, WB, PD, acc, wfrag, afrag, wread, dma_ops, act_ops, adv_ops, T=None, need_lgkm=True, pf=None, fill=None, chain=None):
    assert NST % R == 0
    nv = lambda ops: sum(1 for o in ops if o.startswith('buffer_'))
    per_stage = dma_ops(0) + act_ops(0) + adv_ops
    ndma, nact = nv(dma_ops(0)), nv(act_ops(0))
    npf = lambda st: (nv(pf[2]) if (pf and st % pf[0] == 0) else 0)
    if pf:
        for _ in range(pf[1]):
            for o in pf[2]:
                k(o)
    fill = list(fill or [])
    if chain:
        nf = chain[2]
        for _ in range(min(nf, len(fill))):
            k(fill.pop(0))
        chain[0]()
        nper = -(-len(fill) // (D * ndma))
        for st in range(D):
            for o in dma_ops(st % R) + adv_ops:
                if chain[3] and o.startswith('buffer_'):
                    continue
                k(o)
                if o.startswith('buffer_'):
                    for _ in range(nper):
                        if fill:
                            k(fill.pop(0))
        for o in fill:
            k(o)
        chain[1]()
        for g in range(PD):
            for s in range(KS):
                for h in range(2):
                    k(wread(g, s, h, 0, g % WB))
        for st in range(D):
            for o in act_ops(st % R):
                k(o)
            if False and st == 0 and pf and D >= 2:
                for _ in range(ndma):
                    k(pf[2][0])
        yield 'after_issue'
    else:
        nper = -(-len(fill) // max(1, D * (ndma + nact) - 4))
        cnt = 0
        for st in range(D):
            for o in dma_ops(st % R) + act_ops(st % R) + adv_ops:
                k(o)
                if o.startswith('buffer_'):
                    cnt += 1
                    if cnt > 4:
                        for _ in range(nper):
                            if fill:
                                k(fill.pop(0))
        for o in fill:
            k(o)
        yield 'after_issue'
        k(f's_waitcnt vmcnt({min(63, nact + (D - 1) * (ndma + nact))})')
        k('s_barrier')
    if T: T.stamp()
    for g in range(0 if chain else PD):
        for s in range(KS):
            for h in range(2):
                k(wread(g, s, h, 0, g % WB))
    k('s_mov_b32 s34, 0')
    k('.p2align 6')
    k.label('loop')
    GL = MT * KS
    BG = NT - PD + (1 if need_lgkm else 0)
    assert (NT * R) % WB == 0
    for st in range(R):
        gaps = {}

        def put(g, op):
            gaps.setdefault(g, []).append(op)
        M = []
        pend = []
        busy = set()
        for nt in range(NT):
            G = st * NT + nt
            tgt = nt + PD
            rd = [wread(tgt % NT, s, h, (st + tgt // NT) % R, (G + PD) % WB) for s in range(KS) for h in range(2)]
            if tgt >= NT and nt < BG:
                pend += rd
                rd = []
            elif tgt >= NT:
                rd = pend + rd
                pend = []
            first = 1 if nt == BG else 0
            step = 1 if len(rd) * 2 > GL - first else 2
            for i, r in enumerate(rd):
                g = nt * GL + min(first + i * step, GL - 1)
                put(g, r)
                busy.add(g)
            for mt in range(MT):
                for s in range(KS):
                    d = acc(nt, mt)
                    M.append(mf(d, wfrag(G % WB, s), afrag(st, mt, s), d))
        assert not pend
        side = dma_ops((st + D) % R) + act_ops((st + D) % R) + adv_ops
        if pf and st % pf[0] == 0:
            side = pf[2] + side
        limit = NT * GL - 4 if D >= 2 else (NT * GL * 3) // 4
        free = [g for g in range(limit) if g not in busy and g not in (BG * GL - 1, BG * GL)]
        nvm = nv(side)
        if len(free) < 2 * nvm:
            free = [g for g in range(limit) if g not in (BG * GL - 1, BG * GL)]
        pos = [free[1 + (i * (len(free) - 1)) // nvm] for i in range(nvm)]
        vi = 0
        for i, o in enumerate(side):
            if o.startswith('buffer_'):
                put(pos[vi], o)
                vi += 1
            else:
                g = pos[vi] - 1 if vi < nvm else pos[-1] + 1
                if vi > 0:
                    g = max(g, pos[vi - 1] + (1 if vi >= nvm else 0))
                    if g == pos[vi - 1]:
                        put(g, ('late', o))
                        continue
                put(g, o)
        nbefore = sum(1 for p in pos if p < BG * GL - 1) - npf(st)
        assert nbefore >= 0 and (D >= 2 or nbefore >= ndma)
        w = f's_waitcnt vmcnt({min(63, nact + (D - 2) * (ndma + nact) + nbefore)})' + (' lgkmcnt(0)' if need_lgkm else '')
        put(BG * GL - 1, w)
        put(BG * GL, 's_barrier')
        if st == R - 1:
            put(NT * GL - 3, 's_add_u32 s34, s34, 1')
            put(NT * GL - 2, f's_cmp_lt_u32 s34, {NST // R}')
        for i, m in enumerate(M):
            k(m)
            ops = gaps.get(i, [])
            early = sorted([o for o in ops if not isinstance(o, tuple)], key=_cls)
            for o in early:
                k(o)
            for o in ops:
                if isinstance(o, tuple):
                    k(o[1])
    k(f's_cbranch_scc1 {k.L("loop")}')
    if T: T.stamp()


def gen_gateup(dbg=False, cpf=True, stflag='sc1', D=2):
    k = Kernel('gateup_kernel', vgprs=256, agprs=256, sgprs=96, grid=224, block=256, lds=128 * 1024)
    T = Stamper(k, dbg)
    k('s_cmp_ge_u32 s2, 224')
    k(f's_cbranch_scc1 {k.L("end")}')
    T.start()
    k(f's_load_dwordx4 s[4:7], s[0:1], {B_WG}')
    k(f's_load_dwordx2 s[44:45], s[0:1], {D_WS}')
    if cpf:
        code_prefetch(k, 88, 60, 61, 0, 256, 32768)
    lane_decomp(k)
    k('s_and_b32 s40, s2, 7')
    k('s_lshr_b32 s41, s2, 3')
    k('s_and_b32 s42, s40, 1')
    k('s_lshl_b32 s42, s42, 2')
    k('s_and_b32 s43, s41, 3')
    k('s_add_u32 s42, s42, s43')
    k('s_lshr_b32 s43, s40, 1')
    k('s_mul_i32 s43, s43, 7')
    k('s_lshr_b32 s46, s41, 2')
    k('s_add_u32 s43, s43, s46')
    k('s_lshl_b32 s46, s43, 8')
    k('s_lshl_b32 s33, s30, 12')
    V_WD, V_HD, V_WA = 8, 12, 16
    k('s_mul_i32 s47, s30, %d' % (16 * 7168))
    k('s_movk_i32 s48, 7168')
    k('v_mul_lo_u32 v4, v3, s48')
    k('v_add_u32 v4, s47, v4')
    for j in range(4):
        k(f'v_add_u32 v5, {4 * (j >> 1)}, v3')
        k('v_lshlrev_b32 v5, 1, v5')
        k('v_xor_b32 v5, v5, v2')
        k('v_lshl_add_u32 v5, v5, 4, v4')
        k(f'v_add_u32 v{V_WD + j}, {4 * j * 7168 - 1024 * j}, v5')
    k(f'v_lshlrev_b32 v{V_HD}, 4, v1')
    k('s_waitcnt lgkmcnt(0)')
    srd(k, 8, 4, 's46', 1024 * 7168 - 27 * 256)
    srd(k, 12, 6, 's46', 1024 * 7168 - 27 * 256)
    srd(k, 16, 44, WS_H2, 2048 * 2048)
    srd(k, 20, 44, WS_ACT, 2048 * 7168)
    k('s_lshl_b32 s47, s42, 2')
    k('s_add_u32 s47, s47, s30')
    k('s_lshl_b32 s47, s47, 12')
    k('s_mov_b32 s31, 0')
    k('s_mov_b32 s32, s47')

    def dma_ops(slot):
        ops = []
        for mat in range(2):
            ops.append(f's_add_u32 m0, s33, {mat * 65536 + slot * 16384}')
            for j in range(4):
                ops.append(f'buffer_load_dwordx4 v{V_WD + j}, s[{8 + 4 * mat}:{11 + 4 * mat}], s31 offen offset:{j * 1024} lds')
        return ops

    def afrag(slot, mt, s):
        return r4('a', 128 + slot * 32 + (mt * 2 + s) * 4)

    def act_ops(slot):
        ops = []
        for s in range(2):
            for mt in range(4):
                ops.append(f'buffer_load_dwordx4 {afrag(slot, mt, s)}, v{V_HD}, s[16:19], s32 offen offset:{mt * 1024}')
            ops.append('s_add_u32 s32, s32, 131072')
        return ops
    adv = [f's_add_u32 s31, s31, {64 * 7168}']

    def acc(nt, mt):
        return r4('v', 128 + (nt * 4 + mt) * 4) if nt < 8 else r4('a', ((nt - 8) * 4 + mt) * 4)

    def wfrag(buf, s):
        return r4('v', 64 + buf * 8 + s * 4)

    def wread(nt, s, h, slot, buf):
        b = 64 + buf * 8 + s * 4 + h * 2
        return f'ds_read_b64_tr_b16 v[{b}:{b + 1}], v{V_WA + nt} offset:{slot * 16384 + s * 8192 + h * 1024}'

    fill = []
    f = fill.append
    f('v_lshrrev_b32 v4, 2, v2')
    f('v_and_b32 v5, 1, v3')
    f('v_lshl_or_b32 v5, v5, 2, v4')
    f('v_lshlrev_b32 v5, 1, v5')
    f('v_bfe_u32 v6, v2, 1, 1')
    f('v_xor_b32 v5, v5, v6')
    f('v_lshl_add_u32 v4, v3, 3, v4')
    f('v_lshlrev_b32 v4, 8, v4')
    f('v_and_b32 v6, 1, v2')
    f('v_lshl_add_u32 v4, v6, 3, v4')
    for nt in range(8):
        f(f'v_xor_b32 v6, {2 * nt}, v5')
        f(f'v_lshl_add_u32 v{V_WA + nt}, v6, 4, v4')
        f(f'v_add_u32 v{V_WA + 8 + nt}, 0x10000, v{V_WA + nt}')
    for i in range(0, 128, 2):
        f(f'v_mov_b64 v[{128 + i}:{129 + i}], 0')
    for i in range(128):
        f(f'v_accvgpr_write_b32 a{i}, 0')
    gen = mainloop(k, 16, 4, D, 16, 4, 2, 4, 3, acc, wfrag, afrag, wread, dma_ops, act_ops, adv, T, need_lgkm=(D == 3), fill=fill)
    for _ in gen:
        pass
    c0 = -2.0 * math.sqrt(2.0 / math.pi) * math.log2(math.e)
    c1 = c0 * 0.044715
    k(f'v_mov_b32 v8, {f32(c0)}')
    k(f'v_mov_b32 v9, {f32(c0)}')
    k(f'v_mov_b32 v10, {f32(c1)}')
    k(f'v_mov_b32 v11, {f32(c1)}')
    k('v_mov_b32 v14, 1.0')
    k('v_mov_b32 v15, 1.0')
    k('s_lshl_b32 s48, s43, 19')
    k('s_add_u32 s48, s48, s47')
    for j in range(4):
        k(f's_add_u32 s49, s48, {j * 131072}')
        for mt in range(4):
            tb = 32 + ((j * 4 + mt) & 1) * 24
            G = [128 + ((2 * j + h) * 4 + mt) * 4 + r for h in range(2) for r in range(4)]
            U = [((2 * j + h) * 4 + mt) * 4 + r for h in range(2) for r in range(4)]
            P = lambda b: f'v[{b}:{b + 1}]'
            for e in range(8):
                k(f'v_accvgpr_read_b32 v{tb + e}, a{U[e]}')
            for e in range(0, 8, 2):
                k(f'v_pk_mul_f32 {P(tb + 8 + e)}, {P(G[e])}, {P(G[e])}')
            for e in range(0, 8, 2):
                k(f'v_pk_fma_f32 {P(tb + 8 + e)}, {P(tb + 8 + e)}, v[10:11], v[8:9]')
            for e in range(0, 8, 2):
                k(f'v_pk_mul_f32 {P(tb + 8 + e)}, {P(tb + 8 + e)}, {P(G[e])}')
            for e in range(8):
                k(f'v_exp_f32 v{tb + 8 + e}, v{tb + 8 + e}')
            for e in range(0, 8, 2):
                k(f'v_pk_mul_f32 {P(tb + e)}, {P(tb + e)}, {P(G[e])}')
            for e in range(0, 8, 2):
                k(f'v_pk_add_f32 {P(tb + 8 + e)}, {P(tb + 8 + e)}, v[14:15]')
            for e in range(8):
                k(f'v_rcp_f32 v{tb + 8 + e}, v{tb + 8 + e}')
            for e in range(0, 8, 2):
                k(f'v_pk_mul_f32 {P(tb + e)}, {P(tb + e)}, {P(tb + 8 + e)}')
            for e in range(4):
                k(f'v_cvt_pk_bf16_f32 v{tb + 16 + e}, v{tb + 2 * e}, v{tb + 2 * e + 1}')
            k(f'buffer_store_dwordx4 {r4("v", tb + 16)}, v{V_HD}, s[20:23], s49 offen offset:{mt * 1024} {stflag}')
    if dbg:
        k('s_waitcnt vmcnt(0)')
    T.stamp()
    T.dump(44, 30, 2)
    k.label('end')
    k('s_endpgm')
    return k


def gen_gateup7(dbg=False, cpf=2, stflag='sc1', D=2, sflag2='', recpf=True, chain_in=False, chain_out=None, nf=0, wsleep=3, a3=True, KS=2, prefilled=False, hoist=False):
    RR = 4 if KS == 2 else 2
    if KS == 4: D = 1
    SS = KS * 8192
    k = Kernel('gateup_kernel', vgprs=256, agprs=256, sgprs=96, grid=256, block=256, lds=128 * 1024)
    T = Stamper(k, dbg)
    if not chain_in:
        k('s_cmp_ge_u32 s2, 256')
        k(f's_cbranch_scc1 {k.L("end")}')
    SC = 'sc1' if chain_in else ''
    if chain_out:
        sflag2 = 'sc1'
    T.start()
    k(f's_load_dwordx4 s[4:7], s[0:1], {B_WG}')
    k(f's_load_dwordx2 s[44:45], s[0:1], {D_WS}')
    if hoist:
        k(f's_load_dwordx2 s[96:97], s[0:1], {B_WD}')
    if cpf == 1:
        code_prefetch(k, 88, 60, 61, 0, 256, 32768)
    lane_decomp(k)
    if cpf == 2:
        code_prefetch_light(k, 88, 59, 60, 6, 61, 1, 30, 32)
    k('s_and_b32 s40, s2, 7')
    k('s_lshr_b32 s41, s2, 3')
    k('s_and_b32 s42, s40, 1')
    k('s_lshl_b32 s42, s42, 2')
    k('s_and_b32 s43, s41, 3')
    k('s_add_u32 s42, s42, s43')
    k('s_lshr_b32 s43, s40, 1')
    k('s_lshl_b32 s43, s43, 3')
    k('s_lshr_b32 s46, s41, 2')
    k('s_add_u32 s43, s43, s46')
    k('s_mul_i32 s46, s43, 224')
    k('s_and_b32 s39, s43, 1')
    k('s_lshl_b32 s33, s30, 12')
    V_WD, V_HD, V_WA = 8, 12, 16
    k('s_mul_i32 s47, s30, %d' % (16 * 7168))
    k('s_movk_i32 s48, 7168')
    k('v_mul_lo_u32 v4, v3, s48')
    k('v_mov_b32 v7, 0x40000000')
    k('v_add_u32 v4, s47, v4')
    for j in range(4):
        k(f'v_add_u32 v5, {4 * (j >> 1)}, v3')
        k('v_lshlrev_b32 v5, 1, v5')
        k('v_xor_b32 v5, v5, v2')
        k('v_cmp_gt_u32 vcc, 14, v5')
        k('v_lshl_add_u32 v5, v5, 4, v4')
        k(f'v_add_u32 v5, {4 * j * 7168 - 1024 * j}, v5')
        k(f'v_cndmask_b32 v{V_WD + j}, v7, v5, vcc')
    k(f'v_lshlrev_b32 v{V_HD}, 4, v1')
    k('s_waitcnt lgkmcnt(0)')
    srd(k, 8, 4, 's46', 1023 * 7168 + 224)
    srd(k, 12, 6, 's46', 1023 * 7168 + 224)
    srd(k, 16, 44, WS_H2, 2048 * 2048)
    srd(k, 20, 44, WS_ACT, 2048 * 7168)
    k('s_lshl_b32 s47, s42, 2')
    k('s_add_u32 s47, s47, s30')
    k('s_lshl_b32 s47, s47, 12')
    k('s_mov_b32 s31, 0')
    k('s_mov_b32 s32, s47')

    def dma_ops(slot):
        ops = []
        for hh in range(KS // 2):
            for mat in range(2):
                ops.append(f's_add_u32 m0, s33, {mat * 65536 + slot * SS + hh * 16384}')
                for j in range(4):
                    ops.append(f'buffer_load_dwordx4 v{V_WD + j}, s[{8 + 4 * mat}:{11 + 4 * mat}], s31 offen offset:{j * 1024} lds')
            if hh + 1 < KS // 2:
                ops.append(f's_add_u32 s31, s31, {64 * 7168}')
        return ops

    def afrag(slot, mt, s):
        return r4('a', 128 + slot * 16 * KS + (mt * KS + s) * 4)

    def act_ops(slot):
        ops = []
        for s in range(KS):
            for mt in range(4):
                ops.append(f'buffer_load_dwordx4 {afrag(slot, mt, s)}, v{V_HD}, s[16:19], s32 offen offset:{mt * 1024} {SC}')
            ops.append('s_add_u32 s32, s32, 131072')
        return ops
    adv = [f's_add_u32 s31, s31, {64 * 7168}']

    def acc(nt, mt):
        return r4('v', 128 + (nt * 4 + mt) * 4) if nt < 7 else r4('a', ((nt - 7) * 4 + mt) * 4)

    def wfrag(buf, s):
        return r4('v', 64 + buf * 4 * KS + s * 4)

    def wread(nt, s, h, slot, buf):
        b = 64 + buf * 4 * KS + s * 4 + h * 2
        return f'ds_read_b64_tr_b16 v[{b}:{b + 1}], v{V_WA + nt} offset:{slot * SS + s * 8192 + h * 1024}'

    fill = []
    f = fill.append
    f('v_lshrrev_b32 v4, 2, v2')
    f('v_and_b32 v5, 1, v3')
    f('v_lshl_or_b32 v5, v5, 2, v4')
    f('v_lshlrev_b32 v5, 1, v5')
    f('v_bfe_u32 v6, v2, 1, 1')
    f('v_xor_b32 v5, v5, v6')
    f('v_lshl_add_u32 v4, v3, 3, v4')
    f('v_lshlrev_b32 v4, 8, v4')
    f('v_and_b32 v6, 1, v2')
    f('v_lshl_add_u32 v4, v6, 3, v4')
    for nt in range(7):
        f(f's_mul_i32 s50, s39, {2 if nt < 6 else -12}')
        f(f's_add_u32 s50, s50, {2 * nt}')
        f('v_xor_b32 v6, s50, v5')
        f(f'v_lshl_add_u32 v{V_WA + nt}, v6, 4, v4')
        f(f'v_add_u32 v{V_WA + 7 + nt}, 0x10000, v{V_WA + nt}')
    for i in range(0, 112, 2):
        f(f'v_mov_b64 v[{128 + i}:{129 + i}], 0')
    for i in range(112):
        f(f'v_accvgpr_write_b32 a{i}, 0')
    pf = None
    if recpf and cpf:
        for o in ['s_lshl_b32 s59, s41, 2', 's_add_u32 s59, s59, s30', 's_and_b32 s59, s59, 31', 's_lshl_b32 s59, s59, 9',
                  'v_lshlrev_b32 v60, 7, v1', 'v_cmp_gt_u32 vcc, 4, v1', 'v_cndmask_b32 v60, v7, v60, vcc']:
            f(o)
        pf = (RR, 0, ['buffer_load_dword v61, v60, s[88:91], s59 offen'])
    chain = None
    if chain_in:
        srd(k, 24, 44, 0, 64 << 20)

        def c1():
            k('s_lshl_b32 s52, s42, 7')
            k(f's_add_u32 s52, s52, {WS_FLG3 + 1024}')
            k('v_and_b32 v41, 31, v1')
            k('v_lshlrev_b32 v41, 2, v41')
            phase_wait(k, 24, 30, 41, 40, 52, 53, sleep=wsleep)
            if dbg: T.stamp()
        chain = (lambda: phase_publish(k, 24, 30, 36, 37), c1, nf, prefilled)
    gen = mainloop(k, 32 // KS, RR, D, 14, 4, KS, 4, 3 if KS == 2 else 2, acc, wfrag, afrag, wread, dma_ops, act_ops, adv, T, need_lgkm=(RR < D + 2), fill=fill, pf=pf, chain=chain)
    for _ in gen:
        pass
    k('s_waitcnt vmcnt(0)')
    hd = []
    if hoist:
        su, hd = stub_small(3584, a3, 8, 16, 20, 1, (31, 32, 33))
        for o in su:
            k(o)
        k('s_waitcnt lgkmcnt(0)')
        k('s_barrier')
    c0 = -2.0 * math.sqrt(2.0 / math.pi) * math.log2(math.e)
    c1 = c0 * 0.044715
    k(f'v_mov_b32 v8, {f32(c0)}')
    k(f'v_mov_b32 v9, {f32(c0)}')
    k(f'v_mov_b32 v10, {f32(c1)}')
    k(f'v_mov_b32 v11, {f32(c1)}')
    k('v_mov_b32 v14, 1.0')
    k('v_mov_b32 v15, 1.0')
    if not a3:
        k('s_mul_i32 s48, s43, 7')
        k('s_cmp_eq_u32 s39, 0')
        k('s_cselect_b32 s51, 6, 0')
        k('s_add_u32 s51, s51, s48')
        k('s_lshr_b32 s51, s51, 1')
        k('s_lshl_b32 s51, s51, 17')
        k('s_add_u32 s51, s51, s47')
        k('s_lshl_b32 s52, s39, 3')
        k('s_add_u32 s51, s51, s52')
        k('s_add_u32 s48, s48, s39')
        k('s_lshr_b32 s48, s48, 1')
        k('s_lshl_b32 s48, s48, 17')
        k('s_add_u32 s48, s48, s47')
    else:
        k('s_lshr_b32 s48, s43, 4')
        k('s_mul_i32 s48, s48, 56')
        k('s_and_b32 s52, s43, 15')
        k('s_lshr_b32 s51, s52, 1')
        k('s_add_u32 s51, s51, s48')
        k('s_add_u32 s51, s51, 48')
        k('s_lshl_b32 s51, s51, 17')
        k('s_add_u32 s51, s51, s47')
        k('s_lshl_b32 s53, s39, 10')
        k('s_add_u32 s51, s51, s53')
        k('s_mul_i32 s52, s52, 3')
        k('s_add_u32 s48, s48, s52')
        k('s_lshl_b32 s48, s48, 17')
        k('s_add_u32 s48, s48, s47')
    P = lambda b: f'v[{b}:{b + 1}]'
    cnt = 0
    for j in (3, 0, 1, 2):
        nh = 2 if j < 3 else 1
        if j < 3:
            k(f's_add_u32 s49, s48, {j * 131072}')
        for mt in range(4) if j < 3 else range(0, 4, 2):
            tb = 32 + (cnt & 1) * 24
            cnt += 1
            if j < 3:
                G = [128 + ((2 * j + h) * 4 + mt) * 4 + r for h in range(2) for r in range(4)]
                U = [((2 * j + h) * 4 + mt) * 4 + r for h in range(2) for r in range(4)]
            else:
                G = [128 + (6 * 4 + mt + h) * 4 + r for h in range(2) for r in range(4)]
                U = [(6 * 4 + mt + h) * 4 + r for h in range(2) for r in range(4)]
            for e in range(8):
                k(f'v_accvgpr_read_b32 v{tb + e}, a{U[e]}')
            for e in range(0, 8, 2):
                k(f'v_pk_mul_f32 {P(tb + 8 + e)}, {P(G[e])}, {P(G[e])}')
            for e in range(0, 8, 2):
                k(f'v_pk_fma_f32 {P(tb + 8 + e)}, {P(tb + 8 + e)}, v[10:11], v[8:9]')
            for e in range(0, 8, 2):
                k(f'v_pk_mul_f32 {P(tb + 8 + e)}, {P(tb + 8 + e)}, {P(G[e])}')
            for _ in range(2):
                while hd:
                    o = hd.pop(0)
                    k(o)
                    if o.startswith('buffer_'):
                        break
            for e in range(8):
                k(f'v_exp_f32 v{tb + 8 + e}, v{tb + 8 + e}')
            for e in range(0, 8, 2):
                k(f'v_pk_mul_f32 {P(tb + e)}, {P(tb + e)}, {P(G[e])}')
            for e in range(0, 8, 2):
                k(f'v_pk_add_f32 {P(tb + 8 + e)}, {P(tb + 8 + e)}, v[14:15]')
            for e in range(8):
                k(f'v_rcp_f32 v{tb + 8 + e}, v{tb + 8 + e}')
            for e in range(0, 8, 2):
                k(f'v_pk_mul_f32 {P(tb + e)}, {P(tb + e)}, {P(tb + 8 + e)}')
            for e in range(4):
                k(f'v_cvt_pk_bf16_f32 v{tb + 16 + e}, v{tb + 2 * e}, v{tb + 2 * e + 1}')
            if j < 3:
                k(f'buffer_store_dwordx4 {r4("v", tb + 16)}, v{V_HD}, s[20:23], s49 offen offset:{mt * 1024} {stflag}')
            elif a3:
                k(f'buffer_store_dwordx4 {r4("v", tb + 16)}, v{V_HD}, s[20:23], s51 offen offset:{mt * 1024} {stflag}')
            else:
                for h in range(2):
                    k(f'buffer_store_dwordx2 {P(tb + 16 + 2 * h)}, v{V_HD}, s[20:23], s51 offen offset:{(mt + h) * 1024} {sflag2}')
    if dbg:
        k('s_waitcnt vmcnt(0)')
    T.stamp()
    T.dump(44, 30, 2)
    if chain_out:
        k('s_lshl_b32 s3, s42, 5')
        k('s_add_u32 s3, s3, s43')
        k('s_lshl_b32 s3, s3, 2')
        k(f's_add_u32 s3, s3, {WS_FLG3 + 2048}')
        k(f's_branch {chain_out}')
    k.label('end')
    k('s_endpgm')
    return k


def gen_small(name, K, w_arg, act_off, res_arg, res_off, out_arg, out_off, gate_seg, R, D, slot_dbg, dbg=False, pfd=0, same=False):
    NST = K // 128
    EPI = R * 16384
    k = Kernel(name, vgprs=160, agprs=256, sgprs=96, grid=256, block=256, lds=R * 16384 + 4 * 8704 if R * 16384 + 4 * 8704 <= 163840 else R * 16384)
    alias_epi = R * 16384 + 4 * 8704 > 163840
    if alias_epi:
        EPI = 0
    T = Stamper(k, dbg)
    k('s_cmp_ge_u32 s2, 256')
    k(f's_cbranch_scc1 {k.L("end")}')
    T.start()
    k(f's_load_dwordx2 s[4:5], s[0:1], {w_arg}')
    k(f's_load_dwordx2 s[6:7], s[0:1], {res_arg}')
    k(f's_load_dwordx2 s[28:29], s[0:1], {out_arg}')
    k(f's_load_dwordx2 s[44:45], s[0:1], {D_WS}')
    lane_decomp(k)
    k('s_and_b32 s40, s2, 7')
    k('s_lshr_b32 s41, s2, 3')
    k('s_lshr_b32 s42, s40, 1')
    k('s_lshl_b32 s42, s42, 2')
    k('s_and_b32 s43, s41, 3')
    k('s_add_u32 s42, s42, s43')
    k('s_and_b32 s43, s40, 1')
    k('s_lshl_b32 s43, s43, 3')
    k('s_lshr_b32 s46, s41, 2')
    k('s_add_u32 s43, s43, s46')
    if same:
        k('s_mov_b32 s42, 0')
        k('s_mov_b32 s43, 0')
    k('s_lshl_b32 s46, s43, 7')
    k('s_lshl_b32 s33, s30, 12')
    V_WD, V_HD, V_WA = 8, 12, 16
    k('v_lshrrev_b32 v4, 3, v1')
    k('v_lshlrev_b32 v4, 11, v4')
    k('s_lshl_b32 s47, s30, 16')
    k('v_add_u32 v4, s47, v4')
    k('v_and_b32 v5, 7, v1')
    k('v_lshlrev_b32 v6, 1, v3')
    k('v_xor_b32 v5, v5, v6')
    k('v_lshl_add_u32 v4, v5, 4, v4')
    for j in range(4):
        k(f'v_add_u32 v{V_WD + j}, {j * (16384 - 1024)}, v4')
    k(f'v_lshlrev_b32 v{V_HD}, 4, v1')
    k('s_waitcnt lgkmcnt(0)')
    if dbg == 2: T.stamp()
    srd(k, 8, 4, 's46', K * 2048 - 15 * 128)
    srd(k, 16, 44, act_off, 2048 * K * 2)
    srd(k, 12, 6, res_off, 2048 * 2048)
    srd(k, 20, 28, out_off, 2048 * 2048)
    srd(k, 24, 44, WS_MOD, 6144 * 4)
    k('s_lshl_b32 s47, s42, 2')
    k('s_add_u32 s47, s47, s30')
    k('s_lshl_b32 s32, s47, 11')
    k('s_mov_b32 s31, 0')

    def dma_ops(slot):
        ops = [f's_add_u32 m0, s33, {slot * 16384}']
        for j in range(4):
            ops.append(f'buffer_load_dwordx4 v{V_WD + j}, s[8:11], s31 offen offset:{j * 1024} lds')
        return ops

    def afrag(slot, mt, s):
        return r4('a', slot * 32 + (mt * 4 + s) * 4)

    def act_ops(slot):
        ops = []
        for s in range(4):
            for mt in range(2):
                ops.append(f'buffer_load_dwordx4 {afrag(slot, mt, s)}, v{V_HD}, s[16:19], s32 offen offset:{mt * 1024}')
            ops.append('s_add_u32 s32, s32, 131072')
        return ops
    adv = [f's_add_u32 s31, s31, {128 * 2048}']

    def acc(nt, mt):
        return r4('v', 128 + (nt * 2 + mt) * 4)

    def wfrag(buf, s):
        return r4('v', 64 + buf * 16 + s * 4)

    def wread(nt, s, h, slot, buf):
        b = 64 + buf * 16 + s * 4 + h * 2
        return f'ds_read_b64_tr_b16 v[{b}:{b + 1}], v{V_WA + nt + 4 * (slot // 4)} offset:{(slot % 4) * 16384 + s * 4096 + h * 2048}'

    pf = None
    if pfd:
        k('s_cmp_lt_u32 s41, 16')
        k('s_cselect_b32 s52, s16, s4')
        k('s_cselect_b32 s53, s17, s5')
        k(f's_mov_b32 s54, {K * 2048}')
        k(f's_cselect_b32 s54, {2048 * K * 2}, s54')
        k('s_mov_b32 s55, 0x00020000')
        k(f's_mov_b32 s57, {128 * 2048}')
        k(f's_cselect_b32 s57, {4 * 131072}, s57')
        k('s_lshr_b32 s58, s41, 2')
        k('s_lshl_b32 s58, s58, 17')
        k('s_lshr_b32 s59, s40, 1')
        k('s_lshl_b32 s59, s59, 15')
        k('s_add_u32 s58, s58, s59')
        k('s_and_b32 s59, s41, 3')
        k('s_lshl_b32 s59, s59, 13')
        k('s_add_u32 s58, s58, s59')
        k('s_and_b32 s59, s41, 15')
        k('s_lshl_b32 s59, s59, 14')
        k('s_and_b32 s60, s40, 1')
        k('s_lshl_b32 s60, s60, 10')
        k('s_add_u32 s59, s59, s60')
        k('s_cmp_lt_u32 s41, 16')
        k('s_cselect_b32 s56, s58, s59')
        k('s_mul_i32 s58, s57, s30')
        k('s_add_u32 s56, s56, s58')
        k('s_lshl_b32 s57, s57, 2')
        k('v_lshlrev_b32 v28, 7, v1')
        k('v_lshrrev_b32 v4, 3, v1')
        k('v_lshlrev_b32 v4, 11, v4')
        k('v_and_b32 v5, 7, v1')
        k('v_lshl_add_u32 v4, v5, 7, v4')
        k('s_cmp_lt_u32 s41, 16')
        k('s_cselect_b64 vcc, -1, 0')
        k('v_cndmask_b32 v28, v4, v28, vcc')
        one = ['buffer_load_dword v29, v28, s[52:55], s56 offen', 's_add_u32 s56, s56, s57']
        if R % 4 == 0:
            pf = (4, pfd // 4, one)
        else:
            pf = (R, (pfd + 7) // 8, one + one)
    gen = mainloop(k, NST, R, D, 4, 2, 4, 4, 2, acc, wfrag, afrag, wread, dma_ops, act_ops, adv, T, need_lgkm=(R < D + 2), pf=pf)
    next(gen)
    if dbg == 2: T.stamp()
    k('v_lshrrev_b32 v4, 2, v2')
    k('v_lshl_add_u32 v4, v3, 2, v4')
    k('v_and_b32 v5, 6, v4')
    k('v_bfe_u32 v6, v2, 1, 1')
    k('v_xor_b32 v5, v5, v6')
    k('v_lshlrev_b32 v4, 7, v4')
    k('v_and_b32 v6, 1, v2')
    k('v_lshl_add_u32 v4, v6, 3, v4')
    for nt in range(4):
        k(f'v_xor_b32 v6, {2 * nt}, v5')
        k(f'v_lshl_add_u32 v{V_WA + nt}, v6, 4, v4')
        k(f'v_add_u32 v{V_WA + 4 + nt}, 0x10000, v{V_WA + nt}')
    for i in range(32):
        k(f'v_mov_b32 v{128 + i}, 0')
    k(f's_mul_i32 s48, s30, 8704')
    k(f's_add_u32 s48, s48, {EPI}')
    k('s_movk_i32 s49, 272')
    k('v_mul_lo_u32 v24, v2, s49')
    k('v_lshl_add_u32 v24, v3, 4, v24')
    k('v_add_u32 v24, s48, v24')
    k('v_lshrrev_b32 v4, 3, v1')
    k('v_and_b32 v5, 7, v1')
    k('v_mul_lo_u32 v25, v4, s49')
    k('v_lshl_add_u32 v25, v5, 5, v25')
    k('v_add_u32 v25, s48, v25')
    k('v_lshlrev_b32 v26, 11, v4')
    k('v_lshl_add_u32 v26, v5, 4, v26')
    k('v_lshlrev_b32 v27, 5, v5')
    k('s_lshl_b32 s50, s47, 16')
    k('s_add_u32 s50, s50, s46')
    k('s_lshl_b32 s51, s43, 8')
    k(f's_add_u32 s51, s51, {gate_seg * 4096}')
    if dbg == 2: T.stamp()
    for _ in gen:
        pass
    for j in range(4):
        k(f's_add_u32 s52, s50, {j * 16384}')
        k(f'buffer_load_dwordx4 {r4("v", 32 + 4 * j)}, v26, s[12:15], s52 offen')
    k('buffer_load_dwordx4 v[48:51], v27, s[24:27], s51 offen')
    k('buffer_load_dwordx4 v[52:55], v27, s[24:27], s51 offen offset:16')
    if alias_epi:
        k('s_waitcnt vmcnt(6) lgkmcnt(0)')
        k('s_barrier')
    for nt in range(4):
        for mt in range(2):
            k(f'ds_write_b128 v24, {acc(nt, mt)} offset:{mt * 16 * 272 + nt * 64}')
    k('s_waitcnt lgkmcnt(0)')
    for j in range(4):
        k(f'ds_read_b128 {r4("v", 64 + 8 * j)}, v25 offset:{j * 8 * 272}')
        k(f'ds_read_b128 {r4("v", 68 + 8 * j)}, v25 offset:{j * 8 * 272 + 16}')
    for j in range(4):
        for d in range(4):
            x = 32 + 4 * j + d
            a = 64 + 8 * j + 2 * d
            k(f'v_lshlrev_b32 v4, 16, v{x}')
            k(f'v_and_b32 v5, 0xffff0000, v{x}')
            k(f'v_fma_f32 v4, v{a}, v{48 + 2 * d}, v4')
            k(f'v_fma_f32 v5, v{a + 1}, v{49 + 2 * d}, v5')
            k(f'v_cvt_pk_bf16_f32 v{x}, v4, v5')
        k(f's_add_u32 s52, s50, {j * 16384}')
        k(f'buffer_store_dwordx4 {r4("v", 32 + 4 * j)}, v26, s[20:23], s52 offen')
    if dbg:
        k('s_waitcnt vmcnt(0)')
    T.stamp()
    T.dump(44, 30, slot_dbg)
    k.label('end')
    k('s_endpgm')
    return k
```

```python
from common import *
from k_gemm import r4, mf, _cls, lane_decomp
import math

WS_XCH = 48 << 20
WS_FLG = 60 << 20
WS_STAT = 61 << 20


class Unrolled:
    def __init__(self, k, groups, R, MT, KS, WB, PD, acc, wfrag, afrag, wread, dma_ops, act_ops, first_zero=True):
        self.__dict__.update(locals())
        self.GL = MT * KS
        self.vm = []
        self.gaps = {}

    def put(self, g, op):
        self.gaps.setdefault(g, []).append(op)

    def vwait(self, tag):
        last = max(i for i, t in enumerate(self.vm) if t == tag)
        return min(63, len(self.vm) - 1 - last)

    def emit_ops(self, ops, tag):
        for o in ops:
            self.k(o)
            if o.startswith('buffer_'):
                self.vm.append(tag)

    def plan(self, pro_stages=1, spacing=4, fast=2, NL=0):
        groups, PD, GL, R = self.groups, self.PD, self.GL, self.R
        NG = len(groups)
        stages = sorted({s for s, _ in groups})
        first = {s: min(i for i, (a, _) in enumerate(groups) if a == s) for s in stages}
        last = {s: max(i for i, (a, _) in enumerate(groups) if a == s) for s in stages}
        self.bar = {s: max(first[s] - PD, 0) for s in stages}
        bar_groups = sorted(self.bar[s] for s in stages if s > 0)
        busy = set()
        for i in range(NG):
            t = i + PD
            if t >= NG:
                continue
            s, nt = groups[t]
            rd = [self.wread(nt, q, h, s % R, t % self.WB) for q in range(self.KS) for h in range(2)]
            f = 1 if i in bar_groups else 0
            step = 1 if len(rd) * 2 > GL - f else 2
            for j, r in enumerate(rd):
                g = i * GL + min(f + j * step, GL - 1)
                self.put(g, r)
                busy.add(g)
        self.busy = busy
        q = []
        for s in stages:
            if s < R:
                e_w = e_a = -1
            else:
                e_w = min(b for b in bar_groups if b >= last[s - R] + 1) * GL + 1
                e_a = (last[s - R] + 1) * GL
            two = [(s, 'W', e_w, self.dma_ops(s)), (s, 'A', e_a, self.act_ops(s))]
            q += two if (s < R or NL) else two[::-1]
        self.pro = [x for x in q if x[0] < pro_stages]
        pos = 0
        for s, kind, e, ops in q:
            if s < pro_stages:
                continue
            pend = []
            for o in ops:
                if not o.startswith('buffer_'):
                    pend.append(o)
                    continue
                ahead = (first[s] * GL - pos) / (GL * (last[0] + 1))
                sp = fast if (ahead < 1.3 or s < R) else spacing
                if NL and s - 2 < NL:
                    SL = GL * (last[0] + 1)
                    base = (s - 2) * SL
                    cnt = self.__dict__.setdefault('_cnt', {})
                    cnt[s] = cnt.get(s, -1) + 1
                    pos = base + [1, 5, 9, 13, 17, 21, 25, 29, 33, 37, 41, 45, 50, 54, 58, 62][cnt[s]]
                    assert pos >= e
                else:
                    pos = max(pos + sp, e, 1)
                while (pos % GL == GL - 1 and (pos // GL + 1) in bar_groups) or (pos % GL == 0 and pos // GL in bar_groups):
                    pos += 1
                self.put(pos, ('V', pend, o, (kind, s)))
                pend = []
            assert not pend
            if kind == 'W':
                assert pos < self.bar[s] * GL - 1, (s, pos, self.bar[s] * GL)
            else:
                assert pos < first[s] * GL - 1, (s, pos)
            self.slack = getattr(self, 'slack', []) + [(kind, s, (self.bar[s] if kind == 'W' else first[s]) * GL - pos)]

    def prologue_issue(self, kinds='WA', scalars_only=False):
        for s, kind, e, ops in self.pro:
            if kind in kinds:
                self.emit_ops([o for o in ops if not (scalars_only and o.startswith('buffer_'))], (kind, s))

    def start(self, sync=True):
        k = self.k
        if sync:
            k(f's_waitcnt vmcnt({self.vwait(("W", 0))})')
            k('s_barrier')
        for t in range(self.PD):
            s, nt = self.groups[t]
            for q in range(self.KS):
                for h in range(2):
                    k(self.wread(nt, q, h, s % self.R, t % self.WB))

    def emit(self, g0, g1):
        k, GL = self.k, self.GL
        barat = {v: s for s, v in self.bar.items() if s > 0}
        for i in range(g0, g1):
            s, nt = self.groups[i]
            j = 0
            for mt in range(self.MT):
                for q in range(self.KS):
                    d = self.acc(nt, mt)
                    c = '0' if (self.first_zero and s == 0 and q == 0) else d
                    k(mf(d, self.wfrag(i % self.WB, q), self.afrag(s % self.R, mt, q), c))
                    g = i * GL + j
                    ops = self.gaps.get(g, [])
                    if j == GL - 1 and (i + 1) in barat:
                        k(f's_waitcnt vmcnt({self.vwait(("W", barat[i + 1]))})')
                    if j == 0 and i in barat:
                        k('s_barrier')
                    cur = [o for o in ops if isinstance(o, tuple) and o[0] == 'V']
                    nxt = [o for o in self.gaps.get(g + 1, []) if isinstance(o, tuple) and o[0] == 'V']
                    plain = sorted([o for o in ops if not isinstance(o, tuple)], key=_cls)
                    for o in plain:
                        if _cls(o) == 0:
                            k(o)
                    if not cur:
                        for o in nxt:
                            for sc in o[1]:
                                k(sc)
                    for o in plain:
                        if _cls(o) == 1:
                            k(o)
                    for o in cur:
                        self.emit_ops([o[2]], o[3])
                    if cur:
                        for o in nxt:
                            for sc in o[1]:
                                k(sc)
                    for o in plain:
                        if _cls(o) == 2:
                            k(o)
                    for o in ops:
                        if isinstance(o, tuple) and o[0] == 'raw':
                            self.emit_ops([o[1]], ('X', 0))
                    j += 1


def gen_small2(name, K, w_arg, act_off, res_arg, res_off, out_arg, out_off, gate_seg, slot_dbg, flag_idx, dbg=False,
               TS=3, spacing=4, fast=3, pro=2, stflag='sc1', cpf=2, lateflag=True, ln=False, psleep=8, hflag='', nbx=0, map8=True, split=False, recpf=True, roll=True, wflag='', rowpf=4, xl=1, xbf=True, hx=True, chain_in=False, chain_out=None, early=False, narrow=True, wsleep=3, latepub=False, a3=False, dummy=False, sent=False, prefilled=False, hoist=False):
    if roll and K == 3584: TS = min(TS, 2)
    KH = K // 2
    NST = KH // 128
    R = 4
    k = Kernel(name, vgprs=256, agprs=136, sgprs=96, grid=256, block=256, lds=R * 32768)
    T = Stamper(k, dbg)
    if not chain_in:
        k('s_cmp_ge_u32 s2, 256')
        k(f's_cbranch_scc1 {k.L("end")}')
    SC = 'sc1' if chain_in else ''
    T.start()
    k(f's_load_dwordx2 s[4:5], s[0:1], {w_arg}')
    k(f's_load_dwordx2 s[44:45], s[0:1], {D_WS}')
    k(f's_load_dwordx2 s[6:7], s[0:1], {res_arg}')
    k(f's_load_dwordx2 s[28:29], s[0:1], {out_arg}')
    if hoist:
        k(f's_load_dwordx4 s[96:99], s[0:1], {B_WG}')
    if cpf == 1:
        code_prefetch(k, 92, 39, 38, 0, 256, 32768)
    lane_decomp(k)
    if cpf == 2:
        code_prefetch_light(k, 92, 59, 39, 6, 38, 1, 30, 32)
    k('s_and_b32 s39, s2, 1')
    if map8:
        k('s_bfe_u32 s42, s2, 0x10002')
        k('s_lshl_b32 s42, s42, 3')
        k('s_bfe_u32 s43, s2, 0x30003')
        k('s_add_u32 s42, s42, s43')
        k('s_bfe_u32 s43, s2, 0x10001')
        k('s_lshl_b32 s43, s43, 2')
        k('s_lshr_b32 s46, s2, 6')
        k('s_add_u32 s43, s43, s46')
    else:
        k('s_bfe_u32 s42, s2, 0x20001')
        k('s_lshl_b32 s42, s42, 2')
        k('s_bfe_u32 s43, s2, 0x20003')
        k('s_add_u32 s42, s42, s43')
        k('s_lshr_b32 s43, s2, 5')
    if nbx: k(f's_xor_b32 s43, s43, {nbx}')
    PS = 2 if split else 1
    if split:
        k('s_lshr_b32 s46, s43, 1')
        k('s_lshl_b32 s46, s46, 2')
        k('s_and_b32 s43, s43, 1')
        k('s_add_u32 s43, s43, s46')
    else:
        k('s_lshl_b32 s43, s43, 1')
    k('s_lshl_b32 s46, s43, 7')
    k(f's_mul_i32 s40, s39, {PS}')
    k('s_add_u32 s43, s43, s40')
    k(f's_mul_i32 s40, s39, {KH * 2048}')
    k('s_add_u32 s40, s40, s46')
    k('s_lshl_b32 s33, s30, 13')
    V_WD, V_HD, V_WA = 8, 12, 16
    k('s_lshl_b32 s47, s30, 16')
    k('v_lshlrev_b32 v4, 11, v3')
    if not a3:
        k('v_add_u32 v4, s47, v4')
    else:
        k('s_mov_b32 s36, s30')
        k('s_cmp_eq_u32 s30, 3')
        k('s_cselect_b32 s37, 4, s30')
    for j in range(4):
        k(f'v_add_u32 v5, {4 * (j & 1)}, v3')
        k('v_lshlrev_b32 v5, 1, v5')
        k('v_xor_b32 v5, v5, v2')
        if split:
            k('v_and_b32 v6, 8, v5')
            k('v_add_u32 v5, v5, v6')
        k('v_lshl_add_u32 v5, v5, 4, v4')
        k(f'v_add_u32 v{V_WD + j}, {j * (8192 - 1024)}, v5')
    k(f'v_lshlrev_b32 v{V_HD}, 4, v1')
    k('s_lshl_b32 s47, s42, 2')
    k('s_add_u32 s47, s47, s30')
    k('s_lshl_b32 s32, s47, 11')
    k(f's_mul_i32 s41, s39, {(KH // 32) * 131072}')
    k('s_add_u32 s32, s32, s41')
    k('s_sub_u32 s35, s32, 131072')
    k(f's_mov_b32 s31, {(-112 * 2048) & 0xffffffff}')
    k('s_waitcnt lgkmcnt(0)')
    srd(k, 8, 4, 's40', (KH - 1) * 2048 + (384 if split else 256))
    srd(k, 16, 44, act_off, 2048 * K * 2)

    def dma_ops(s):
        ops = []
        nxt = [[], ['s_add_u32 s36, s36, 4', 's_add_u32 s37, s36, 3'], ['s_mul_hi_u32 s37, s37, 0x2aaaaaab'], ['s_add_u32 s37, s37, s36'],
               [], ['s_mul_i32 s38, s36, 7'], [f's_sub_u32 s38, s38, {7 * 48 - 3}'], ['s_cmp_lt_u32 s36, 48', 's_cselect_b32 s37, s37, s38']]
        for half in range(2):
            ops.append(f's_add_u32 m0, s33, {(s % R) * 32768 + half * 4096}')
            if a3 and half == 0:
                ops.append('s_lshl_b32 s31, s37, 16')
            else:
                ops.append(f's_add_u32 s31, s31, {(16 if half else 112) * 2048}')
            for j in range(4):
                if a3:
                    ops += nxt[half * 4 + j]
                ops.append(f'buffer_load_dwordx4 v{V_WD + j}, s[8:11], s31 offen offset:{j * 1024} {wflag} lds')
        return ops

    def afrag(slot, mt, q):
        return r4('a', slot * 32 + (mt * 4 + q) * 4)

    def act_ops(s):
        ops = []
        for q in range(4):
            ops.append('s_add_u32 s35, s35, 131072')
            for mt in range(2):
                ops.append(f'buffer_load_dwordx4 {afrag(s % R, mt, q)}, v{V_HD}, s[16:19], s35 offen offset:{mt * 1024} {SC}')
        return ops

    def acc(nt, mt):
        return r4('v', 128 + (nt * 2 + mt) * 4)

    def wfrag(buf, q):
        return r4('v', 64 + buf * 16 + q * 4)

    def wread(nt, q, h, slot, buf):
        b = 64 + buf * 16 + q * 4 + h * 2
        return f'ds_read_b64_tr_b16 v[{b}:{b + 1}], v{V_WA + nt + 8 * (slot // 2)} offset:{(slot % 2) * 32768 + q * 8192 + h * 4096}'

    groups = [(s, nt) for s in range(NST - TS) for nt in (4, 5, 6, 7, 0, 1, 2, 3)]
    groups += [(s, nt) for s in range(NST - TS, NST) for nt in range(4, 8)]
    gsend = len(groups)
    groups += [(s, nt) for s in range(NST - TS, NST) for nt in range(4)]
    NL = 12 if roll else 0
    assert NST - TS >= NL
    U = Unrolled(k, groups, R, 2, 4, 4, 2, acc, wfrag, afrag, wread, dma_ops, act_ops, first_zero=not roll)
    U.plan(pro_stages=pro, spacing=spacing, fast=fast, NL=NL)
    if dbg: print(name, 'slack', U.slack)
    srd(k, 24, 44, 0, 64 << 20)
    if chain_in and early:
        k('s_barrier')
        U.prologue_issue('W', scalars_only=prefilled)
    elif chain_in and latepub:
        pass
    elif chain_in:
        phase_publish(k, 24, 30, 36, 37, second=79 if (ln and narrow) else None)
        U.prologue_issue('W', scalars_only=prefilled)
    else:
        U.prologue_issue()
    srd(k, 12, 6, res_off, 2048 * 2048)
    srd(k, 20, 28, out_off, 2048 * 2048)
    k('v_lshrrev_b32 v4, 2, v2')
    k('v_lshl_add_u32 v4, v3, 2, v4')
    k('v_and_b32 v5, 7, v4')
    k('v_lshlrev_b32 v5, 1, v5')
    k('v_bfe_u32 v6, v2, 1, 1')
    k('v_xor_b32 v5, v5, v6')
    k('s_lshl_b32 s48, s39, 3')
    k('v_xor_b32 v5, s48, v5')
    k('v_lshlrev_b32 v4, 8, v4')
    k('v_and_b32 v6, 1, v2')
    k('v_lshl_add_u32 v4, v6, 3, v4')
    for nt in range(8):
        k(f'v_xor_b32 v6, {2 * nt}, v5')
        k(f'v_lshl_add_u32 v{V_WA + nt}, v6, 4, v4')
        k(f'v_add_u32 v{V_WA + 8 + nt}, 0x10000, v{V_WA + nt}')
    k('s_mul_i32 s48, s30, 8704')
    if hoist:
        k('s_add_u32 s48, s48, 98304')
    k('s_movk_i32 s49, 272')
    k('v_mul_lo_u32 v32, v2, s49')
    k('v_lshl_add_u32 v32, v3, 4, v32')
    k('v_add_u32 v32, s48, v32')
    k('v_lshrrev_b32 v4, 3, v1')
    k('v_and_b32 v5, 7, v1')
    k('v_mul_lo_u32 v33, v4, s49')
    k('v_lshl_add_u32 v33, v5, 5, v33')
    k('v_add_u32 v33, s48, v33')
    k('v_lshlrev_b32 v34, 11, v4')
    k('v_lshl_add_u32 v34, v5, 4, v34')
    k('v_lshlrev_b32 v35, 5, v5')
    k('s_lshl_b32 s50, s47, 16')
    k('s_lshl_b32 s51, s43, 7')
    k('s_add_u32 s50, s50, s51')
    k('s_lshl_b32 s51, s43, 8')
    k(f's_add_u32 s51, s51, {gate_seg * 4096}')
    k('s_lshl_b32 s53, s2, 2')
    k('s_add_u32 s53, s53, s30')
    k('s_xor_b32 s54, s53, 4')
    k(f's_lshl_b32 s55, s53, {10 if xl else 13}')
    k(f's_add_u32 s55, s55, {WS_XCH + flag_idx * (4 << 20)}')
    k(f's_lshl_b32 s56, s54, {10 if xl else 13}')
    k(f's_add_u32 s56, s56, {WS_XCH + flag_idx * (4 << 20)}')
    k('s_lshl_b32 s57, s53, 6')
    k(f's_add_u32 s57, s57, {WS_FLG + flag_idx * 65536}')
    k('s_lshl_b32 s58, s54, 6')
    k(f's_add_u32 s58, s58, {WS_FLG + flag_idx * 65536}')
    k('v_mov_b32 v36, 0')
    k('v_mov_b32 v37, 1')
    if ln:
        k('v_lshl_add_u32 v240, v5, 3, v4')
        k('v_lshlrev_b32 v240, 3, v240')
        k('v_cmp_gt_u32 vcc, 4, v5')
        k('v_mov_b32 v6, 0x40000000')
        k('v_cndmask_b32 v240, v6, v240, vcc')
        k('v_cmp_eq_u32 s[86:87], 1, v5')
        k('v_cmp_eq_u32 s[88:89], 2, v5')
        k('v_cmp_eq_u32 s[90:91], 3, v5')
        k('v_lshlrev_b32 v241, 4, v2')
        k('v_add_u32 v241, s48, v241')
        k('v_lshlrev_b32 v243, 3, v4')
        k('v_add_u32 v243, s48, v243')
        cc, rr = ('v4', 'v5') if hx else ('v5', 'v4')
        k(f'v_lshrrev_b32 v6, 2, {cc}')
        k('v_lshlrev_b32 v242, 17, v6')
        k(f'v_and_b32 v6, 3, {cc}')
        k('v_lshl_add_u32 v242, v6, 8, v242')
        k(f'v_lshl_add_u32 v242, {rr}, 4, v242')
        if hx:
            k('v_xor_b32 v6, v4, v5')
            k('v_lshl_add_u32 v244, v5, 3, v6')
            k('v_lshlrev_b32 v244, 4, v244')
            k('v_add_u32 v244, s48, v244')
            k('v_lshl_add_u32 v245, v4, 3, v6')
            k('v_lshlrev_b32 v245, 4, v245')
            k('v_add_u32 v245, s48, v245')
        k('s_lshl_b32 s36, s47, 12')
        k(f's_add_u32 s36, s36, {WS_STAT}')
        k('s_mov_b32 s37, s43')
        k('s_lshl_b32 s38, s37, 18')
        k('s_lshl_b32 s37, s37, 8')
        k('s_add_u32 s37, s37, s36')
        k('s_lshl_b32 s34, s47, 11')
        k('s_add_u32 s38, s38, s34')
        k(f's_add_u32 s38, s38, {WS_H2}')
    if roll:
        for i in range(0, 64, 2):
            k(f'v_mov_b64 v[{128 + i}:{129 + i}], 0')
        k('s_mov_b32 s34, 0')
        if cpf != 2:
            k('s_lshr_b32 s59, s2, 3')
            k('s_lshl_b32 s59, s59, 2')
            k('s_add_u32 s59, s59, s30')
            k('s_and_b32 s59, s59, 31')
            k('s_lshl_b32 s59, s59, 9')
            k('v_lshlrev_b32 v39, 7, v1')
            k('v_cmp_gt_u32 vcc, 4, v1')
            k('v_mov_b32 v6, 0x40000000')
            k('v_cndmask_b32 v39, v6, v39, vcc')
    if chain_in and early:
        phase_publish(k, 24, 30, 36, 37, younger=8 * pro)
    if chain_in and latepub:
        phase_publish(k, 24, 30, 36, 37, second=79 if (ln and narrow) else None)
        U.prologue_issue('W', scalars_only=prefilled)
    if rowpf:
        assert map8 and roll and not split
        srd(k, 80, 4, 0, K * 2048)
        k('s_lshr_b32 s84, s2, 3')
        k('s_lshl_b32 s84, s84, 2')
        k('s_add_u32 s84, s84, s30')
        k('s_lshl_b32 s84, s84, 11')
        k(f's_mul_i32 s85, s39, {KH * 2048}')
        k('s_add_u32 s84, s84, s85')
        k('s_bfe_u32 s85, s2, 0x10001')
        k('s_lshl_b32 s85, s85, 10')
        k('s_add_u32 s84, s84, s85')
        k(f's_add_u32 s84, s84, {2 * 128 * 2048}')
        k('v_lshlrev_b32 v7, 7, v1')
        k('v_cmp_gt_u32 vcc, 8, v1')
        k('v_mov_b32 v6, 0x40000000')
        k('v_cndmask_b32 v7, v6, v7, vcc')
        for _ in range(2, rowpf):
            k('buffer_load_dword v38, v7, s[80:83], s84 offen')
            k(f's_add_u32 s84, s84, {128 * 2048}')
        for st_ in range(4, 8):
            U.put(st_ * 64 + 3, ('raw', 'buffer_load_dword v38, v7, s[80:83], s84 offen'))
            U.put(st_ * 64 + 6, f's_add_u32 s84, s84, {128 * 2048}')
    if chain_in:
        if ln and narrow:
            k('s_lshr_b32 s52, s42, 1')
            k('s_lshl_b32 s52, s52, 7')
            k('s_lshl_b32 s49, s39, 6')
            k('s_add_u32 s52, s52, s49')
            k('v_lshlrev_b32 v41, 2, v2')
            k('v_add_u32 v41, s52, v41')
            k('v_lshrrev_b32 v42, 2, v2')
            k('v_lshlrev_b32 v42, 6, v42')
            k('v_and_b32 v43, 3, v2')
            k('v_add_u32 v42, v42, v43')
            k('s_lshl_b32 s49, s43, 2')
            k('v_add_u32 v42, s49, v42')
            k('v_lshlrev_b32 v42, 2, v42')
            k('v_add_u32 v42, 3072, v42')
            k('v_and_b32 v43, 1, v3')
            k('v_cmp_eq_u32 vcc, 0, v43')
            k('v_cndmask_b32 v41, v42, v41, vcc')
            if sent:
                k('s_xor_b32 s49, s2, 1')
                k('s_and_b32 s49, s49, 7')
                k('s_lshl_b32 s49, s49, 2')
                k('s_lshr_b32 s52, s2, 6')
                k('s_add_u32 s49, s49, s52')
                k('s_bfe_u32 s52, s2, 0x30003')
                k('s_lshl_b32 s52, s52, 5')
                k('s_add_u32 s49, s49, s52')
                k('s_lshl_b32 s49, s49, 2')
                k('v_mov_b32 v42, s49')
                k('v_cmp_gt_u32 vcc, 32, v1')
                k('v_cndmask_b32 v41, v42, v41, vcc')
            k(f's_mov_b32 s52, {WS_FLG3}')
            phase_wait(k, 24, 30, 41, 40, 52, 49, sleep=wsleep)
        elif ln:
            k(f's_mov_b32 s52, {WS_FLG3}')
            phase_wait(k, 24, 30, V_HD, 40, 52, 49, wide=True, sleep=wsleep)
        else:
            k('s_lshr_b32 s52, s42, 1')
            k('s_lshl_b32 s52, s52, 7')
            k('s_lshl_b32 s49, s39, 6')
            k('s_add_u32 s52, s52, s49')
            k(f's_add_u32 s52, s52, {WS_FLG3 + 2048}')
            k('v_lshlrev_b32 v41, 2, v2')
            phase_wait(k, 24, 30, 41, 40, 52, 49, sleep=wsleep)
        if dbg: T.stamp()
        U.start(sync=False)
        for s_, kind, e, ops in U.pro:
            if kind == 'A':
                U.emit_ops(ops, (kind, s_))
                if s_ == 0 and dummy:
                    for _ in range(8):
                        k('buffer_load_dword v38, v39, s[92:95], s59 offen')
        U.vm = [t for st_ in range(pro) for kind in 'WA' for t in [(kind, st_)] * 8]
    else:
        U.start()
    T.stamp()
    GL = 8
    st_ops = []
    for j in range(4):
        for mt in range(2):
            i = j * 2 + mt
            if xl:
                if i:
                    st_ops.append(f's_add_u32 s55, s55, {1 << 20}')
                st_ops.append(f'buffer_store_dwordx4 {acc(4 + j, mt)}, v{V_HD}, s[24:27], s55 offen sc1')
                continue
            if i == 4:
                st_ops.append('s_add_u32 s55, s55, 4096')
            st_ops.append(f'buffer_store_dwordx4 {acc(4 + j, mt)}, v{V_HD}, s[24:27], s55 offen offset:{(i % 4) * 1024} sc1')
    if xbf:
        st_ops = []
        for j in range(4):
            b = 128 + (4 + j) * 8
            for e in range(4):
                st_ops.append(f'v_cvt_pk_bf16_f32 v{b + e}, v{b + 2 * e}, v{b + 2 * e + 1}')
            if j:
                st_ops.append(f's_add_u32 s55, s55, {1 << 20}')
            st_ops.append(f'buffer_store_dwordx4 {r4("v", b)}, v{V_HD}, s[24:27], s55 offen sc1')
    for i, o in enumerate(st_ops):
        U.put(gsend * GL + 2 + i, ('raw', o))
    gflag = min(gsend + 5, len(groups) - 2)
    if not lateflag:
        U.put(gflag * GL, 's_waitcnt vmcnt(0)')
        U.put(gflag * GL + 1, ('raw', 'buffer_store_dword v37, v36, s[24:27], s57 offen sc1'))
    else:
        gflag = gsend - 3
    rl = []
    for j in range(4):
        rl.append(f's_add_u32 s52, s50, {j * 16384}')
        rl.append(f'buffer_load_dwordx4 {r4("v", 40 + 4 * j)}, v34, s[12:15], s52 offen {SC}')
    rl.append('buffer_load_dwordx4 v[56:59], v35, s[24:27], s51 offen '+SC)
    rl.append('buffer_load_dwordx4 v[60:63], v35, s[24:27], s51 offen offset:16 '+SC)
    if ln:
        rl.append('s_add_u32 s52, s51, 4096')
        rl.append('buffer_load_dwordx4 v[224:227], v35, s[24:27], s52 offen '+SC)
        rl.append('buffer_load_dwordx4 v[228:231], v35, s[24:27], s52 offen offset:16 '+SC)
        rl.append('s_add_u32 s52, s51, 8192')
        rl.append('buffer_load_dwordx4 v[232:235], v35, s[24:27], s52 offen '+SC)
        rl.append('buffer_load_dwordx4 v[236:239], v35, s[24:27], s52 offen offset:16 '+SC)
    for i, o in enumerate(rl):
        U.put(gflag * GL + 2 + i, ('raw', o))
    if roll:
        sink = Kernel('sink')
        U.k = sink
        U.emit(0, 32)
        U.k = k
        U.put(7 * 64 + 59, 's_add_u32 s34, s34, 1')
        U.put(7 * 64 + 63, ('raw', 's_cmp_lt_u32 s34, 3'))
        if recpf:
            U.put(6 * 64 + 32, ('raw', 'buffer_load_dword v38, v39, s[92:95], s59 offen'))
        k('.p2align 6')
        k.label('loop')
        n0 = len(U.vm)
        U.emit(32, 64)
        k(f's_cbranch_scc1 {k.L("loop")}')
        U.vm = [t for t in U.vm if t != ('X', 0)]
        U.k = sink
        U.emit(64, 96)
        U.k = k
        if dbg == 2: T.stamp()
        if a3:
            def swaps(st_):
                o = []
                for q in range(4):
                    x = (st_ % R) * 32 + q * 4
                    y = x + 16
                    for e in range(2):
                        o += [f'v_accvgpr_mov_b32 a{128 + e}, a{x + 2 + e}']
                    for e in range(2):
                        o += [f'v_accvgpr_mov_b32 a{x + 2 + e}, a{y + e}']
                    for e in range(2):
                        o += [f'v_accvgpr_mov_b32 a{y + e}, a{128 + e}']
                return o
            for o in swaps(12):
                k(o)
            for i, o in enumerate(swaps(13)):
                U.put(96 * 8 + 6 + i, o)
        for g in range(96, len(groups), 8):
            U.emit(g, min(g + 8, len(groups)))
            if dbg == 2 and g + 8 < len(groups): T.stamp()
    elif dbg == 2:
        for g in range(0, len(groups), 8):
            U.emit(g, min(g + 8, len(groups)))
            if g + 8 < len(groups): T.stamp()
    else:
        U.emit(0, len(groups))
    T.stamp()
    if not sent:
        if lateflag:
            k('s_waitcnt vmcnt(0)')
            k('buffer_store_dword v37, v36, s[24:27], s57 offen sc1')
        k('s_barrier')
        k('s_mov_b32 s59, 0')
        k.label('poll')
        k('buffer_load_dword v38, v36, s[24:27], s58 offen sc1')
        k('s_waitcnt vmcnt(0)')
        k('v_cmp_ne_u32 vcc, 1, v38')
        k(f's_cbranch_vccz {k.L("got")}')
        k('s_sleep 2')
        k('s_add_u32 s59, s59, 1')
        k('s_cmp_lt_u32 s59, 0x40000')
        k(f's_cbranch_scc1 {k.L("poll")}')
        k.label('got')
        if dbg: T.stamp()
        for i in range(4 if xbf else 8):
            if xl:
                if i:
                    k(f's_add_u32 s56, s56, {1 << 20}')
                k(f'buffer_load_dwordx4 {r4("v", 192 + 4 * i)}, v{V_HD}, s[24:27], s56 offen sc1')
                continue
            if i == 4:
                k('s_add_u32 s56, s56, 4096')
            k(f'buffer_load_dwordx4 {r4("v", 192 + 4 * i)}, v{V_HD}, s[24:27], s56 offen offset:{(i % 4) * 1024} sc1')
    else:
        assert xbf and xl
        k('s_barrier')
        k('s_mov_b32 s59, 0')
        k.label('poll')
        for i in range(4):
            k(f's_add_u32 s57, s56, {i << 20}')
            k(f'buffer_load_dwordx4 {r4("v", 192 + 4 * i)}, v{V_HD}, s[24:27], s57 offen sc1')
        k('s_waitcnt vmcnt(0)')
        k('v_max3_u32 v38, v192, v193, v194')
        for i in range(195, 207, 2):
            k(f'v_max3_u32 v38, v38, v{i}, v{i + 1}')
        k('v_max_u32 v38, v38, v207')
        k('v_cmp_eq_u32 vcc, -1, v38')
        k(f's_cbranch_vccz {k.L("got")}')
        k('s_sleep 2')
        k('s_add_u32 s59, s59, 1')
        k('s_cmp_lt_u32 s59, 0x40000')
        k(f's_cbranch_scc1 {k.L("poll")}')
        k.label('got')
        if dbg: T.stamp()
    P = lambda b: f'v[{b}:{b + 1}]'
    for i in range(8):
        a = 128 + 4 * i
        for e in (0, 2):
            if xbf:
                src = 192 + 2 * i + e // 2
                t = 208 + 4 * (i % 4) + e
                k(f'v_lshlrev_b32 v{t}, 16, v{src}')
                k(f'v_and_b32 v{t + 1}, 0xffff0000, v{src}')
                k(f'v_pk_add_f32 {P(a + e)}, {P(a + e)}, {P(t)}')
            else:
                k(f'v_pk_add_f32 {P(a + e)}, {P(a + e)}, {P(192 + 4 * i + e)}')
        nt, mt = i // 2, i % 2
        k(f'ds_write_b128 v32, {r4("v", a)} offset:{mt * 16 * 272 + nt * 64}')
    k('s_waitcnt lgkmcnt(0)')
    for j in range(4):
        k(f'ds_read_b128 {r4("v", 64 + 8 * j)}, v33 offset:{j * 8 * 272}')
        k(f'ds_read_b128 {r4("v", 68 + 8 * j)}, v33 offset:{j * 8 * 272 + 16}')
    for j in range(4):
        for d in range(4):
            x = 40 + 4 * j + d
            a = 64 + 8 * j + 2 * d
            k(f'v_lshlrev_b32 v4, 16, v{x}')
            k(f'v_and_b32 v5, 0xffff0000, v{x}')
            k(f'v_pk_fma_f32 v[4:5], {P(a)}, {P(56 + 2 * d)}, v[4:5]')
            k(f'v_cvt_pk_bf16_f32 v{x}, v4, v5')
        k(f's_add_u32 s52, s50, {j * 16384}')
        k(f'buffer_store_dwordx4 {r4("v", 40 + 4 * j)}, v34, s[20:23], s52 offen {stflag}')
    if ln:
        def red8(regs):
            for m in ('quad_perm:[1,0,3,2]', 'quad_perm:[2,3,0,1]', 'row_half_mirror'):
                for r in regs:
                    k(f'v_add_f32_dpp v{r}, v{r}, v{r} {m} row_mask:0xf bank_mask:0xf')
        Y = lambda j: 64 + 8 * j
        D_ = lambda j: 96 + 8 * j
        S = lambda j: 128 + 2 * j
        for j in range(4):
            for d in range(4):
                k(f'v_lshlrev_b32 v{Y(j) + 2 * d}, 16, v{40 + 4 * j + d}')
                k(f'v_and_b32 v{Y(j) + 2 * d + 1}, 0xffff0000, v{40 + 4 * j + d}')
        for j in range(4):
            k(f'v_pk_add_f32 {P(S(j))}, {P(Y(j))}, {P(Y(j) + 2)}')
        for e in (4, 6):
            for j in range(4):
                k(f'v_pk_add_f32 {P(S(j))}, {P(S(j))}, {P(Y(j) + e)}')
        for j in range(4):
            k(f'v_add_f32 v{S(j)}, v{S(j)}, v{S(j) + 1}')
        red8([S(j) for j in range(4)])
        for j in range(4):
            k(f'v_mul_f32 v{S(j)}, {f32(1.0 / 64)}, v{S(j)}')
        for j in range(4):
            for e in range(0, 8, 2):
                k(f'v_pk_add_f32 {P(D_(j) + e)}, {P(Y(j) + e)}, {P(S(j))} op_sel_hi:[1,0] neg_lo:[0,1] neg_hi:[0,1]')
        for j in range(4):
            k(f'v_pk_mul_f32 {P(136 + 2 * j)}, {P(D_(j))}, {P(D_(j))}')
        for e in (2, 4, 6):
            for j in range(4):
                k(f'v_pk_fma_f32 {P(136 + 2 * j)}, {P(D_(j) + e)}, {P(D_(j) + e)}, {P(136 + 2 * j)}')
        for j in range(4):
            k(f'v_add_f32 v{S(j) + 1}, v{136 + 2 * j}, v{137 + 2 * j}')
        red8([S(j) + 1 for j in range(4)])
        for j in range(1, 4):
            for e in range(2):
                k(f'v_cndmask_b32 v{S(0) + e}, v{S(0) + e}, v{S(j) + e}, s[{84 + 2 * j}:{85 + 2 * j}]')
        k(f'buffer_store_dwordx2 {P(S(0))}, v240, s[24:27], s37 offen sc1')
        if dbg: T.stamp()
        k('s_mov_b32 s59, 0')
        if hoist:
            su, dm = stub_gateup(80, 92, 8, 16, 1, (31, 32, 33))
            for o in su + dm:
                k(o)
            k(f's_branch {k.L("poll2n")}')
        k.label('poll2')
        k(f's_sleep {psleep}')
        k.label('poll2n')
        for i in range(4):
            k(f'buffer_load_dwordx4 {r4("v", 144 + 4 * i)}, v{V_HD}, s[24:27], s36 offen offset:{i * 1024} sc1')
        k('s_waitcnt vmcnt(0)')
        k('v_min3_f32 v6, v145, v147, v149')
        k('v_min3_f32 v6, v6, v151, v153')
        k('v_min3_f32 v6, v6, v155, v157')
        k('v_min_f32 v6, v6, v159')
        k('v_cmp_eq_f32 vcc, -1.0, v6')
        k(f's_cbranch_vccz {k.L("got2")}')
        k('s_add_u32 s59, s59, 1')
        k('s_cmp_lt_u32 s59, 0x40000')
        k(f's_cbranch_scc1 {k.L("poll2")}')
        k.label('got2')
        if dbg: T.stamp()

        def red4g(regs, tmps):
            for sw in ('v_permlane16_swap_b32', 'v_permlane32_swap_b32'):
                for r, t in zip(regs, tmps):
                    k(f'v_mov_b32 v{t}, v{r}')
                for r, t in zip(regs, tmps):
                    k(f'{sw} v{t}, v{r}')
                for r, t in zip(regs, tmps):
                    k(f'v_add_f32 v{r}, v{r}, v{t}')
        for h in (0, 2):
            k(f'v_add_f32 v{160 + h}, v{144 + h}, v{148 + h}')
            k(f'v_add_f32 v{164 + h}, v{152 + h}, v{156 + h}')
            k(f'v_add_f32 v{161 + h}, v{145 + h}, v{149 + h}')
            k(f'v_add_f32 v{165 + h}, v{153 + h}, v{157 + h}')
        for e in range(4):
            k(f'v_add_f32 v{160 + e}, v{160 + e}, v{164 + e}')
        red4g([160, 162], [164, 165])
        for h in (0, 2):
            k(f'v_mul_f32 v{160 + h}, {f32(1.0 / 16)}, v{160 + h}')
        k(f's_mov_b32 s34, {f32(64.0)}')
        for h in (0, 2):
            for i in range(4):
                k(f'v_sub_f32 v{144 + 4 * i + h}, v{144 + 4 * i + h}, v{160 + h}')
            k(f'v_mul_f32 v{164 + h}, v{144 + h}, v{144 + h}')
            for i in range(1, 4):
                k(f'v_fmac_f32 v{164 + h}, v{144 + 4 * i + h}, v{144 + 4 * i + h}')
            k(f'v_fmac_f32 v{161 + h}, s34, v{164 + h}')
        red4g([161, 163], [164, 165])
        k(f's_mov_b32 s34, {f32(1.0 / 1024)}')
        k(f'v_mov_b32 v6, {f32(1e-5)}')
        for h in (0, 2):
            k(f'v_fma_f32 v{161 + h}, v{161 + h}, s34, v6')
        for h in (0, 2):
            k(f'v_rsq_f32 v{161 + h}, v{161 + h}')
        k('ds_write_b128 v241, v[160:163]')
        k('s_waitcnt lgkmcnt(0)')
        for j in range(4):
            k(f'ds_read_b64 {P(S(j))}, v243 offset:{64 * j}')
        for j in range(4):
            for e in range(0, 8, 2):
                k(f'v_pk_add_f32 {P(Y(j) + e)}, {P(Y(j) + e)}, {P(S(j))} op_sel_hi:[1,0] neg_lo:[0,1] neg_hi:[0,1]')
            for e in range(0, 8, 2):
                k(f'v_pk_mul_f32 {P(Y(j) + e)}, {P(Y(j) + e)}, {P(S(j))} op_sel:[0,1] op_sel_hi:[1,1]')
            for e in range(0, 8, 2):
                k(f'v_pk_fma_f32 {P(Y(j) + e)}, {P(Y(j) + e)}, {P(232 + e)}, {P(224 + e)}')
            for d in range(4):
                k(f'v_cvt_pk_bf16_f32 v{D_(j) + d}, v{Y(j) + 2 * d}, v{Y(j) + 2 * d + 1}')
            if hx:
                k(f'ds_write_b128 v244, {r4("v", D_(j))} offset:{1024 + j * 1024}')
                k(f'ds_read_b128 {r4("v", D_(j) + 4)}, v245 offset:{1024 + j * 1024}')
            else:
                k(f'buffer_store_dwordx4 {r4("v", D_(j))}, v242, s[24:27], s38 offen offset:{(j // 2) * 1024 + (j % 2) * 128} {hflag}')
        if hx:
            for j in range(4):
                k(f'buffer_store_dwordx4 {r4("v", D_(j) + 4)}, v242, s[24:27], s38 offen offset:{(j // 2) * 1024 + (j % 2) * 128} sc1')
    if dbg:
        k('s_waitcnt vmcnt(0)')
    T.stamp()
    T.dump(44, 30, slot_dbg)
    if chain_out:
        k('s_lshl_b32 s3, s42, 4')
        k('s_add_u32 s3, s3, s43')
        k('s_lshl_b32 s3, s3, 2')
        k(f's_add_u32 s3, s3, {WS_FLG3 + 1024}')
        k(f's_branch {chain_out}')
    k.label('end')
    k('s_endpgm')
    return k
```

```python
from build import build
build('v0.s', 0)
build('v1.s', 0, hoist=(1,0,0))
build('v2.s', 0, hoist=(0,1,0))
build('v3.s', 0, hoist=(0,0,1))
build('v4.s', 0, hoist=(1,1,1))
build('v5.s', 0, hoist=(1,1,1), sm=dict(wsleep=8), gateup=dict(wsleep=8))
```
